```python
import torch

def _softmax(x, axis=-1):
    return torch.softmax(x, dim=axis)
def _gelu(x):
    return torch.nn.functional.gelu(x, approximate="tanh")
def _silu(x):
    return torch.nn.functional.silu(x)
def _sigmoid(x):
    return torch.sigmoid(x)
def _layernorm(x, axis=-1, eps=1e-5):
    m = x.mean(dim=axis, keepdim=True)
    v = x.var(dim=axis, keepdim=True, unbiased=False)
    return (x - m) / torch.sqrt(v + eps)
def _scatter_add(tgt, idx, src, axis=0):
    return tgt.clone().index_add_(axis, idx, src)
def _segment_sum(src, seg, n):
    out = torch.zeros((n,) + src.shape[1:], dtype=src.dtype)
    return out.index_add_(0, seg, src)
def _pad(x, pw):
    flat = tuple(v for pair in reversed(pw) for v in pair)
    return torch.nn.functional.pad(x, flat)

kernel_name = 'concat_heads__ssm_conv_s4d__ssm_conv_h3__prompt'

def setup_inputs():

    _w = (lambda a: (lambda t: t.to(torch.bfloat16) if t.is_floating_point() else t)(torch.as_tensor(a)))
    def _A_setup():
        Bsz, L, D, N = 1, 2048, 448, 256
        return {
            "u": _w((lambda *s: torch.randn(*s, dtype=torch.bfloat16) * 0.05)(Bsz, L, D)),
            "log_A_real": _w((lambda *s: torch.randn(*s, dtype=torch.bfloat16) * 6.4)(D, N) * 0.5),
            "A_imag": _w((lambda *s: torch.randn(*s, dtype=torch.bfloat16) * 0.1)(D, N) * 3.14),
            "C_real": _w((lambda *s: torch.randn(*s, dtype=torch.bfloat16) * 0.2)(D, N) / N ** 0.5),
            "C_imag": _w((lambda *s: torch.randn(*s, dtype=torch.bfloat16) * 0.2)(D, N) / N ** 0.5),
            "log_dt": _w((lambda *s: torch.randn(*s, dtype=torch.bfloat16) * 0.1)(D) * 0.5 - 4.0),
            "D_skip": _w((lambda *s: torch.randn(*s, dtype=torch.bfloat16) * 0.1)(D)),
        }
    _A_in = _A_setup()

    def _B_setup():
        B, S, D = 1, 2048, 448
        ks = 4
        return {
            "q": _w((lambda *s: torch.randn(*s, dtype=torch.bfloat16) * 0.05)(B, S, D)),
            "k": _w((lambda *s: torch.randn(*s, dtype=torch.bfloat16) * 0.4)(B, S, D)),
            "v": _w((lambda *s: torch.randn(*s, dtype=torch.bfloat16) * 0.4)(B, S, D)),
            "shift_k": _w((lambda *s: torch.randn(*s, dtype=torch.bfloat16) * 0.4)(D, ks) * 0.5),
            "ssm_k": _w((lambda *s: torch.randn(*s, dtype=torch.bfloat16) * 0.4)(D, S) * (1.0 / S ** 0.5)),
            "ssm_D": _w((lambda *s: torch.randn(*s, dtype=torch.bfloat16) * 0.4)(D)),
        }
    _B_in = _B_setup()

    return {
        "A_u": _A_in["u"],
        "A_log_A_real": _A_in["log_A_real"],
        "A_A_imag": _A_in["A_imag"],
        "A_C_real": _A_in["C_real"],
        "A_C_imag": _A_in["C_imag"],
        "A_log_dt": _A_in["log_dt"],
        "A_D_skip": _A_in["D_skip"],
        "B_q": _B_in["q"],
        "B_k": _B_in["k"],
        "B_v": _B_in["v"],
        "B_shift_k": _B_in["shift_k"],
        "B_ssm_k": _B_in["ssm_k"],
        "B_ssm_D": _B_in["ssm_D"],
    }

def reference(A_u, A_log_A_real, A_A_imag, A_C_real, A_C_imag, A_log_dt, A_D_skip, B_q, B_k, B_v, B_shift_k, B_ssm_k, B_ssm_D):
    def _A_ref(u, log_A_real, A_imag, C_real, C_imag, log_dt, D_skip):
        L = u.shape[1]
        dt = torch.exp(log_dt)
        A = -torch.exp(log_A_real) + 1j * A_imag
        C = (C_real + 1j * C_imag) * dt[:, None]
        pos = (lambda x, dt: x.to(dt))(torch.arange(L), log_dt.dtype)
        P = torch.exp((A * dt[:, None])[:, :, None] * pos[None, None, :])
        K = 2.0 * torch.einsum("dn,dnl->dl", C, P).real
        L2 = 2 * L
        u_t = (lambda x, *d: x.permute(*d))(u, 0, 2, 1)
        Kf = (lambda x, *a, **k: torch.fft.rfft(x.float(), *a, **k))(K, L2)
        Uf = (lambda x, *a, **k: torch.fft.rfft(x.float(), *a, **k))(u_t, L2)
        y = (lambda x, *a, **k: torch.fft.irfft(x, *a, **k).to(torch.bfloat16))(Uf * Kf[None, :, :], L2)[:, :, :L]
        y = (lambda x, *d: x.permute(*d))(y, 0, 2, 1)
        return y + u * D_skip[None, None, :]

    def _B_ref(q, k, v, shift_k, ssm_k, ssm_D):
        B, S, D = q.shape
        ks = shift_k.shape[-1]
        k_pad = _pad(k, ((0, 0), (ks - 1, 0), (0, 0)))
        k_shift = torch.zeros_like(k)
        for t in range(ks):
            k_shift = k_shift + k_pad[:, t:t + S, :] * shift_k[:, ks - 1 - t][None, None, :]
        kv = k_shift * v
        L = 2 * S
        kv_pad = _pad(kv, ((0, 0), (0, S), (0, 0)))
        kf_pad = _pad(ssm_k, ((0, 0), (0, S)))
        kv_f = (lambda x, axes=(-2,-1): torch.fft.rfft2(x.float(), dim=axes))(kv_pad[:, None, :, :], axes=(1, 2))
        kf_f = (lambda x, axes=(-2,-1): torch.fft.rfft2(x.float(), dim=axes))(kf_pad[:, None, :], axes=(1, 2))
        kf_f = (lambda x, *d: x.permute(*d))(kf_f, 1, 2, 0)
        y_f = kv_f * kf_f[None, :, :, :]
        y = (lambda x, s, axes=(-2,-1): torch.fft.irfft2(x, s=s, dim=axes).to(torch.bfloat16))(y_f, (1, L), axes=(1, 2))[:, 0, :S, :]
        y = y + kv * ssm_D[None, None, :]
        return q * y

    a = _A_ref(A_u, A_log_A_real, A_A_imag, A_C_real, A_C_imag, A_log_dt, A_D_skip)
    b = _B_ref(B_q, B_k, B_v, B_shift_k, B_ssm_k, B_ssm_D)
    return torch.concatenate([a, b], axis=-1)
```

```python
import re

TRANS = ("v_exp_f32", "v_log_f32", "v_rcp_f32", "v_rsq_f32", "v_sqrt_f32", "v_sin_f32", "v_cos_f32")
NO_DST = ("buffer_store", "global_store", "ds_write", "s_cmp", "s_waitcnt", "s_barrier", "s_branch",
          "s_cbranch", "s_setprio", "s_nop", "s_sleep", "s_endpgm", "s_bitcmp", "buffer_wbl2", "buffer_inv",
          "global_atomic", "buffer_atomic")

_reg = re.compile(r"^(-|abs\()?([vsa])(\d+)\)?$")
_rng = re.compile(r"^(-)?([vsa])\[(\d+):(\d+)\]$")


def regs_of(op):
    op = op.strip()
    m = _reg.match(op)
    if m:
        return {(m.group(2), int(m.group(3)))}
    m = _rng.match(op)
    if m:
        return {(m.group(2), i) for i in range(int(m.group(3)), int(m.group(4)) + 1)}
    if op == "vcc":
        return {("s", 106), ("s", 107)}
    if op == "vcc_lo":
        return {("s", 106)}
    if op == "vcc_hi":
        return {("s", 107)}
    if op == "exec":
        return {("s", 126), ("s", 127)}
    if op == "exec_lo":
        return {("s", 126)}
    if op == "exec_hi":
        return {("s", 127)}
    if op == "m0":
        return {("s", 124)}
    return set()


class Instr:
    def __init__(self, text):
        self.text = text
        t = text.split(";")[0].strip()
        parts = t.split(None, 1)
        self.mn = parts[0]
        rest = parts[1] if len(parts) > 1 else ""
        ops = []
        depth = 0
        cur = ""
        for ch in rest:
            if ch in "[(":
                depth += 1
            if ch in "])":
                depth -= 1
            if ch == "," and depth == 0:
                ops.append(cur.strip())
                cur = ""
            else:
                cur += ch
        if cur.strip():
            ops.append(cur.strip())
        self.mods = ""
        if ops:
            last = ops[-1].split(None, 1)
            ops[-1] = last[0]
            self.mods = last[1] if len(last) > 1 else ""
        self.ops = ops
        mn = self.mn
        self.is_mfma = mn.startswith("v_mfma")
        self.is_valu = mn.startswith("v_") and not self.is_mfma
        self.is_trans = mn.startswith(TRANS)
        self.is_dpp = "_dpp" in mn
        self.is_ds = mn.startswith("ds_")
        self.is_vmem = mn.startswith(("buffer_", "global_"))
        self.is_salu = mn.startswith("s_")
        self.passes = 0
        if self.is_mfma:
            self.passes = 8 if "32x32x16" in mn else 4
        self.dst = set()
        self.src = set()
        self.srcC = set()
        if mn.startswith(NO_DST) or (mn.startswith("buffer_load") and " lds" in " " + self.mods):
            for o in ops:
                self.src |= regs_of(o)
            if mn.startswith(("global_atomic", "buffer_atomic")) and "sc0" in self.mods:
                self.dst = regs_of(ops[0])
        elif ops:
            self.dst = regs_of(ops[0])
            for o in ops[1:]:
                self.src |= regs_of(o)
            if mn.startswith(("v_fmac", "v_writelane")) or self.is_dpp:
                self.src |= self.dst
            if self.is_mfma:
                self.srcC = regs_of(ops[3])
                self.srcAB = regs_of(ops[1]) | regs_of(ops[2])
            if mn.startswith(("v_add_co", "v_addc_co", "v_sub_co")):
                self.dst |= regs_of(ops[1])
        if mn.startswith("v_cndmask") and len(ops) == 3:
            self.src |= regs_of("vcc")
        if "addtid" in mn:
            self.src |= regs_of("m0")
        self.states = 1
        if mn == "s_nop":
            self.states = int(ops[0], 0) + 1
        self.wide_store = self.is_vmem and "store" in mn and ("x3" in mn or "x4" in mn)


def need(p, c):
    n = 0
    pv = {r for r in p.dst if r[0] in "va"}
    ps = {r for r in p.dst if r[0] == "s"}
    if p.is_valu:
        if pv & c.src:
            if c.mn.startswith(("v_readfirstlane", "v_readlane")):
                n = max(n, 1)
            if c.is_dpp or c.mn.startswith("v_permlane"):
                n = max(n, 2)
            if c.is_mfma:
                n = max(n, 2)
            if p.is_trans and not c.is_trans:
                n = max(n, 1)
        if ps & c.src:
            if c.is_valu or c.is_mfma:
                n = max(n, 2)
                if c.mn.startswith(("v_readlane", "v_writelane")):
                    n = max(n, 4)
            if c.is_vmem:
                n = max(n, 5)
            if c.is_salu:
                n = max(n, 1)
    if p.is_mfma:
        big = 12 if p.passes == 8 else 8
        if c.is_mfma:
            if pv & c.srcAB:
                n = max(n, big)
            if pv & c.srcC:
                if not (pv == c.srcC and p.passes == c.passes):
                    n = max(n, big - 2)
            elif pv & c.dst:
                n = max(n, big - 2)
        else:
            if pv & (c.src | c.dst):
                n = max(n, big)
            if c.is_valu and (p.srcC & c.dst):
                n = max(n, 7 if p.passes == 8 else 3)
    if p.is_salu and ("s", 124) in ps and ("addtid" in c.mn or (c.is_vmem and " lds" in " " + c.mods)):
        n = max(n, 1)
    if p.wide_store:
        data = regs_of(p.ops[0]) if p.mn.startswith("buffer") else regs_of(p.ops[1])
        if data & c.dst:
            n = max(n, 2)
    return n


class Asm:
    def __init__(self):
        self.items = []

    def I(self, text):
        for line in text.split("\n"):
            line = line.strip()
            if line:
                self.items.append(Instr(line))

    def label(self, name):
        self.items.append(name + ":")

    def comment(self, text):
        self.items.append("; " + text)

    def raw(self, text):
        self.items.append(text)

    def finalize(self):
        out = []
        hist = []
        nops = 0
        for it in self.items:
            if isinstance(it, str):
                out.append(it)
                continue
            dist = 0
            req = 0
            for p in reversed(hist):
                r = need(p, it)
                if r - dist > req:
                    req = r - dist
                dist += p.states
                if dist >= 13:
                    break
            if req > 0:
                nop = Instr("s_nop %d" % (req - 1))
                out.append("    " + nop.text)
                hist.append(nop)
                nops += 1
            out.append("    " + it.text)
            hist.append(it)
            if len(hist) > 32:
                hist.pop(0)
        self.nops = nops
        return "\n".join(out) + "\n"

    def count(self):
        return sum(1 for it in self.items if not isinstance(it, str))


class LdsQueue:
    def __init__(self, asm):
        self.a = asm
        self.n = 0
        self.done = 0

    def op(self, text):
        self.a.I(text)
        self.n += 1
        return self.n - 1

    def wait_for(self, idx, lag=None):
        if idx < self.done:
            return
        N = self.n - idx - 1
        if lag is not None:
            N = min(N, lag)
        N = min(N, 15)
        self.a.I("s_waitcnt lgkmcnt(%d)" % N)
        self.done = self.n - N

    def drain(self):
        if self.done < self.n:
            self.a.I("s_waitcnt lgkmcnt(0)")
        self.done = self.n
```

```python
import sys
import json
from asmgen import Asm, LdsQueue

NAME = "concat_heads__ssm_conv_s4d__ssm_conv_h3__prompt"

cfg = dict(
    stamps=0,
    dump=None,
    nt_in="nt",
    nt_pf="nt",
    nt_out="",
    codepf=1,
    lag=8,
    p1=4,
)

CS = 4160
TS = 4 * CS + 32
T_OFF = 0
YS = 4672
Y_OFF = 4 * TS
ROWB = 2064
MSW = 28
RAW_OFF = 56 * ROWB
RS = 4576
R_OFF = RAW_OFF + 16416
RED_OFF = R_OFF + 4 * RS
LDS_SIZE = RED_OFF + 4 * 3072
IN_BYTES = 2048 * 896
OUT_BYTES = 2048 * 1792

sX, sSUB, sGRP, sW = 4, 5, 6, 7
U, LAR, AIM, CR, CI, LDT, DSK, Q = 8, 10, 12, 14, 16, 18, 20, 22
K, V, SHK, SSK, SSD, OUT, DBG, WS = 24, 26, 28, 30, 32, 34, 36, 38
sPC = 40
sT0, sT1 = 42, 43
SRD_OUT, SRD_IN, SRD_K, SRD_V, SRD_SK = 44, 48, 52, 56, 60
sCH, sHB, sC, sT2, sT3, sT4, sISB = 88, 89, 90, 91, 92, 93, 94
sST = 96
vSTAMP = 224
vDUMMY = 225
NVGPR = 232


def sp(n):
    return "s[%d:%d]" % (n, n + 1)


def s4(n):
    return "s[%d:%d]" % (n, n + 3)


def vp(n):
    assert n % 2 == 0
    return "v[%d:%d]" % (n, n + 1)


def v4(n):
    assert n % 2 == 0
    return "v[%d:%d]" % (n, n + 3)


def stamp(a, idx):
    if cfg["stamps"]:
        a.I("s_memrealtime %s" % sp(sST))
        a.I("s_waitcnt lgkmcnt(0)")
        a.I("v_writelane_b32 v%d, s%d, %d" % (vSTAMP, sST, idx))


def stamp_flush(a):
    if cfg["stamps"]:
        a.I("s_lshl_b32 s%d, s2, 11" % sT0)
        a.I("s_lshl_b32 s%d, s%d, 8" % (sT1, sW))
        a.I("s_add_u32 s%d, s%d, s%d" % (sT0, sT0, sT1))
        a.I("s_add_u32 s%d, s%d, 0x1000000" % (sT0, sT0))
        a.I("v_lshl_add_u32 v2, v1, 2, s%d" % sT0)
        a.I("global_store_dword v2, v%d, %s" % (vSTAMP, sp(WS)))


def srd(a, dst, ptr, nbytes):
    a.I("s_mov_b32 s%d, s%d" % (dst, ptr))
    a.I("s_mov_b32 s%d, s%d" % (dst + 1, ptr + 1))
    a.I("s_mov_b32 s%d, %d" % (dst + 2, nbytes))
    a.I("s_mov_b32 s%d, 0x20000" % (dst + 3))


def dump_lds(a):
    a.I("s_mul_i32 s%d, s2, 163840" % sT0)
    a.I("v_lshlrev_b32 v2, 4, v0")
    a.I("v_add_u32 v3, s%d, v2" % sT0)
    for j in range(LDS_SIZE // 8192 + 1):
        a.I("ds_read_b128 v[4:7], v2")
        a.I("s_waitcnt lgkmcnt(0)")
        a.I("global_store_dwordx4 v3, v[4:7], %s" % sp(WS))
        a.I("s_waitcnt vmcnt(0)")
        a.I("v_add_u32 v2, 8192, v2")
        a.I("v_add_u32 v3, 8192, v3")
    a.I("s_barrier")


def gen_entry(a):
    a.I("s_load_dwordx16 s[8:23], s[0:1], 0")
    a.I("s_load_dwordx16 s[24:39], s[0:1], 64")
    a.I("s_cmp_ge_u32 s2, 256")
    a.I("s_cbranch_scc1 L_end")
    a.I("s_and_b32 s%d, s2, 7" % sX)
    a.I("s_cmp_eq_u32 s%d, 7" % sX)
    a.I("s_cbranch_scc1 L_end")
    if cfg["codepf"]:
        a.I("s_getpc_b64 %s" % sp(sPC))
        a.label("L_pc")
        a.I("v_lshlrev_b32 v2, 7, v0")
        a.I("v_min_u32 v2, L_codeend-L_pc-4, v2")
        a.I("global_load_dword v%d, v2, %s" % (vDUMMY, sp(sPC)))
    if cfg["stamps"]:
        a.I("v_mov_b32 v%d, 0" % vSTAMP)
    a.I("v_lshrrev_b32 v2, 6, v0")
    a.I("v_and_b32 v1, 63, v0")
    a.I("v_readfirstlane_b32 s%d, v2" % sW)
    a.I("s_lshr_b32 s3, s2, 3")
    a.I("s_lshr_b32 s%d, s3, 1" % sSUB)
    a.I("s_lshl_b32 s%d, s%d, 4" % (sGRP, sX))
    a.I("s_add_u32 s%d, s%d, s%d" % (sGRP, sGRP, sSUB))
    a.I("s_and_b32 s%d, s3, 1" % sISB)
    a.I("s_and_b32 s%d, s%d, 3" % (sCH, sW))
    a.I("s_lshr_b32 s%d, s%d, 2" % (sHB, sW))
    a.I("s_lshl_b32 s%d, s%d, 2" % (sC, sGRP))
    a.I("s_add_u32 s%d, s%d, s%d" % (sC, sC, sCH))
    a.I("s_cmp_eq_u32 s%d, 1" % sISB)
    a.I("s_cbranch_scc1 L_B")


def zero_quad(a, q):
    for i in range(4):
        a.I("v_mov_b32 v%d, 0" % (q + i))


def zero_R_pad(a, zq, tmp):
    a.I("s_mul_i32 s%d, s%d, %d" % (sT0, sCH, RS))
    a.I("s_add_u32 s%d, s%d, %d" % (sT0, sT0, R_OFF + 4096))
    a.I("v_min_u32 v%d, 29, v1" % tmp)
    a.I("v_lshl_add_u32 v%d, v%d, 4, s%d" % (tmp, tmp, sT0))
    a.I("ds_write_b128 v%d, %s" % (tmp, v4(zq)))


def zero_RAW_front(a, zq, tmp):
    a.I("v_and_b32 v%d, 1, v1" % tmp)
    a.I("v_lshlrev_b32 v%d, 4, v%d" % (tmp, tmp))
    a.I("v_add_u32 v%d, %d, v%d" % (tmp, RAW_OFF, tmp))
    a.I("ds_write_b128 v%d, %s" % (tmp, v4(zq)))


def zero_T_pads(a, zq, t0, t1):
    a.I("v_bfe_u32 v%d, v1, 3, 2" % t0)
    a.I("v_mul_u32_u24 v%d, %d, v%d" % (t0, TS, t0))
    a.I("v_bfe_u32 v%d, v1, 1, 2" % t1)
    a.I("v_mul_u32_u24 v%d, %d, v%d" % (t1, CS, t1))
    a.I("v_add_u32 v%d, v%d, v%d" % (t0, t0, t1))
    a.I("v_and_b32 v%d, 1, v1" % t1)
    a.I("v_lshl_add_u32 v%d, v%d, 4, v%d" % (t0, t1, t0))
    a.I("ds_write_b128 v%d, %s offset:%d" % (t0, v4(zq), T_OFF))


vU = 8
vP = 16
vAB = 20
v2DT = 22
vOFFU = 24
vAA = 25
vZ, vC, vV, vW, vG, vXc, vQ, vT, vT2 = 28, 30, 32, 34, 36, 38, 40, 42, 44
vTMP = 46
vO = 52
vZQ = 56
vACC = 64
vOP = 80
sLHI, sLLO, sLN2 = 64, 65, 66
s8, s256 = 68, 70
sHM, sODD = 72, 74
sSO = 76
sM0 = 80


class KG:
    def __init__(self, a):
        self.a = a
        self.k = 0

    def cmul(self, D, X, Y, T=vT):
        a = self.a
        a.I("v_pk_mul_f32 %s, %s, %s op_sel:[1,1] op_sel_hi:[1,0] neg_lo:[1,0]" % (vp(T), vp(X), vp(Y)))
        a.I("v_pk_fma_f32 %s, %s, %s, %s op_sel_hi:[0,1,1]" % (vp(D), vp(X), vp(Y), vp(T)))

    def out(self, row, X, neg):
        a = self.a
        r = vO + (self.k & 3)
        self.k += 1
        a.I("v_cvt_pk_bf16_f32 v%d, v%d, %sv%d" % (r, X, "-" if neg else "", X + 1))
        if row == 0:
            a.I("s_mov_b32 m0, s%d" % sM0)
        if row == MSW:
            a.I("s_mov_b32 m0, s%d" % (sM0 + 1))
        a.I("ds_write_addtid_b32 v%d offset:%d" % (r, (row - (MSW if row >= MSW else 0)) * ROWB))

    def anchor(self, P, Zs):
        a = self.a
        a.I("v_fract_f32 v%d, v%d" % (vTMP + 1, Zs + 1))
        a.I("v_exp_f32 v%d, v%d" % (vTMP, Zs))
        a.I("v_cos_f32 v%d, v%d" % (P, vTMP + 1))
        a.I("v_sin_f32 v%d, v%d" % (P + 1, vTMP + 1))
        a.I("v_pk_mul_f32 %s, %s, %s op_sel_hi:[1,0]" % (vp(P), vp(P), vp(vTMP)))


def exp_bf16(a, dst, x, t0, t1):
    a.I("v_mul_f32 v%d, s%d, v%d" % (t0, sLHI, x))
    a.I("v_fma_f32 v%d, v%d, s%d, -v%d" % (t1, x, sLHI, t0))
    a.I("v_exp_f32 v%d, v%d" % (t0, t0))
    a.I("v_fmac_f32 v%d, s%d, v%d" % (t1, sLLO, x))
    a.I("v_mul_f32 v%d, s%d, v%d" % (t1, sLN2, t1))
    a.I("v_fmac_f32 v%d, v%d, v%d" % (t0, t0, t1))
    a.I("v_cvt_pk_bf16_f32 v%d, v%d, v%d" % (t0, t0, t0))
    a.I("v_lshlrev_b32 v%d, 16, v%d" % (dst, t0))


def kgen_batch(beta):
    b = Asm()
    kg = KG(b)

    def unpack(dst, src):
        if beta == 0:
            b.I("v_lshlrev_b32 v%d, 16, v%d" % (dst, src))
        else:
            b.I("v_and_b32 v%d, 0xffff0000, v%d" % (dst, src))

    unpack(vTMP + 2, vP + 0)
    unpack(vZ + 1, vP + 1)
    unpack(vC, vP + 2)
    unpack(vC + 1, vP + 3)
    exp_bf16(b, vZ, vTMP + 2, vTMP + 3, vTMP + 4)
    b.I("v_pk_mul_f32 %s, %s, %s op_sel_hi:[1,0]" % (vp(vC), vp(vC), vp(v2DT)))
    b.I("v_pk_mul_f32 %s, %s, %s" % (vp(vZ), vp(vZ), vp(vAB)))
    kg.out(0, vC, True)
    b.I("v_pk_mul_f32 %s, %s, %s op_sel_hi:[1,0]" % (vp(vT2), vp(vZ), sp(s256)))
    kg.anchor(vG, vT2)
    b.I("v_pk_mul_f32 %s, %s, %s op_sel_hi:[1,0]" % (vp(vT2), vp(vZ), sp(s8)))
    kg.anchor(vW, vT2)
    kg.anchor(vV, vZ)
    src = vC
    for row in (8, 12, 16, 20, 18, 22, 19, 23):
        kg.cmul(vQ, src, vG)
        kg.out(row, vQ, True)
        src = vQ
    src = vC
    for r in range(1, 8):
        kg.cmul(vXc, src, vV)
        kg.out(r, vXc, True)
        src = vXc
        if r == 2:
            kg.cmul(vQ, vXc, vG)
            kg.out(9, vQ, True)
        if r == 4:
            kg.cmul(vQ, vXc, vG)
            kg.out(10, vQ, True)
            kg.cmul(vQ, vQ, vG)
            kg.out(13, vQ, True)
            kg.cmul(vQ, vQ, vG)
            kg.out(17, vQ, True)
        if r == 6:
            kg.cmul(vQ, vXc, vG)
            kg.out(11, vQ, True)
    kg.out(25, vW, False)
    src = vW
    for j in range(2, 32):
        kg.cmul(vXc, src, vW)
        kg.out(24 + j, vXc, False)
        src = vXc
    return [it.text for it in b.items]


def kgen_mfma(a, first):
    q = LdsQueue(a)
    idx = []
    for s in range(8):
        ia = q.op("ds_read_b128 %s, v%d offset:%d" % (v4(vOP + 8 * s), vAA, 32 * s))
        ib = q.op("ds_read_b128 %s, v%d offset:%d" % (v4(vOP + 8 * s + 4), vAA, 24 * ROWB + 32 * s))
        idx.append(ib)
        if s == 3:
            pass
    for s in range(8):
        q.wait_for(idx[s])
        c = "0" if (first and s == 0) else "v[%d:%d]" % (vACC, vACC + 15)
        a.I("v_mfma_f32_32x32x16_bf16 v[%d:%d], %s, %s, %s" % (vACC, vACC + 15, v4(vOP + 8 * s), v4(vOP + 8 * s + 4), c))


def gen_A(a):
    a.label("L_A")
    a.I("s_lshl_b32 s3, s%d, 9" % sC)
    a.I("s_lshl_b32 s%d, s%d, 8" % (sT0, sHB))
    a.I("s_add_u32 s3, s3, s%d" % sT0)
    a.I("v_lshl_add_u32 v4, v1, 2, s3")
    a.I("s_lshl_b32 s%d, s%d, 7" % (sT0, sSUB))
    a.I("s_lshl_b32 s%d, s%d, 4" % (sT1, sW))
    a.I("s_add_u32 s%d, s%d, s%d" % (sT0, sT0, sT1))
    a.I("s_mul_i32 s%d, s%d, 896" % (sT0, sT0))
    a.I("s_lshl_b32 s%d, s%d, 7" % (sT1, sX))
    a.I("s_add_u32 s%d, s%d, s%d" % (sT0, sT0, sT1))
    a.I("v_and_b32 v5, 15, v1")
    a.I("v_mul_u32_u24 v5, 896, v5")
    a.I("v_add_u32 v5, s%d, v5" % sT0)
    a.I("s_lshr_b32 s3, s%d, 1" % sC)
    a.I("s_lshl_b32 s3, s3, 2")
    a.I("s_waitcnt lgkmcnt(0)")
    for i, p in enumerate((LAR, AIM, CR, CI)):
        a.I("global_load_dword v%d, v4, %s %s" % (vP + i, sp(p), cfg["nt_in"]))
    a.I("s_load_dword s%d, %s, s3" % (sT2, sp(LDT)))
    a.I("s_load_dword s%d, %s, s3" % (sT3, sp(DSK)))
    a.I("global_load_dword v%d, v5, %s %s" % (vDUMMY, sp(U), cfg["nt_pf"]))
    stamp(a, 0)
    srd(a, SRD_IN, U, IN_BYTES)
    srd(a, SRD_OUT, OUT, OUT_BYTES)
    for j in range(4):
        a.I("s_mov_b32 s%d, %d" % (sSO + j, j * 512 * 896))
    a.I("s_lshl_b32 s3, s%d, 3" % sGRP)
    a.I("v_mul_u32_u24 v%d, 896, v0" % vOFFU)
    a.I("v_add_u32 v%d, s3, v%d" % (vOFFU, vOFFU))
    a.I("s_mov_b32 s%d, 0x3fb8aa3b" % sLHI)
    a.I("s_mov_b32 s%d, 0x32a57060" % sLLO)
    a.I("s_mov_b32 s%d, 0x3f317218" % sLN2)
    a.I("s_mov_b32 s%d, 0x41000000" % s8)
    a.I("s_mov_b32 s%d, 0x43800000" % s256)
    a.I("s_mov_b32 s%d, 0" % sHM)
    a.I("s_mov_b32 s%d, -1" % (sHM + 1))
    a.I("s_mov_b32 s%d, 0xaaaaaaaa" % sODD)
    a.I("s_mov_b32 s%d, 0xaaaaaaaa" % (sODD + 1))
    a.I("s_lshl_b32 s3, s%d, 8" % sW)
    a.I("s_mov_b32 s%d, s3" % sM0)
    a.I("s_add_u32 s%d, s3, %d" % (sM0 + 1, MSW * ROWB))
    a.I("s_mov_b32 m0, s3")
    a.I("v_and_b32 v2, 31, v1")
    a.I("v_mul_u32_u24 v2, %d, v2" % ROWB)
    a.I("v_lshrrev_b32 v4, 5, v1")
    a.I("v_lshl_add_u32 v2, v4, 4, v2")
    a.I("v_add_u32 v%d, s3, v2" % vAA)
    zero_quad(a, vZQ)
    zero_R_pad(a, vZQ, 2)
    zero_RAW_front(a, vZQ, 4)
    a.I("v_mov_b32 v%d, 0x3f80" % vO)
    a.I("ds_write_addtid_b32 v%d offset:%d" % (vO, 24 * ROWB))
    a.I("s_and_b32 s3, s%d, 1" % sC)
    a.I("s_lshl_b32 s3, s3, 4")
    a.I("s_waitcnt lgkmcnt(0)")
    a.I("s_lshr_b32 s%d, s%d, s3" % (sT2, sT2))
    a.I("s_lshl_b32 s%d, s%d, 16" % (sT2, sT2))
    a.I("s_lshr_b32 s%d, s%d, s3" % (sT3, sT3))
    a.I("s_lshl_b32 s%d, s%d, 16" % (sT3, sT3))
    a.I("v_mov_b32 v%d, s%d" % (vTMP + 2, sT2))
    exp_bf16(a, vTMP + 5, vTMP + 2, vTMP + 3, vTMP + 4)
    a.I("v_mul_f32 v%d, 0xbfb8aa3b, v%d" % (vAB, vTMP + 5))
    a.I("v_mul_f32 v%d, 0.15915494, v%d" % (vAB + 1, vTMP + 5))
    a.I("v_add_f32 v%d, v%d, v%d" % (v2DT, vTMP + 5, vTMP + 5))
    a.I("s_waitcnt vmcnt(1)")
    stamp(a, 1)
    uload = ["buffer_load_dwordx2 %s, v%d, %s, s%d offen" % (vp(vU + 2 * j), vOFFU, s4(SRD_IN), sSO + j) for j in range(4)]
    b0 = kgen_batch(0)
    b1 = kgen_batch(1)
    n = len(b0)
    pos0 = {int(n * cfg.get("u0", 0.7)): 0}
    pos1 = {int(n * 0.05): 1, int(n * 0.35): 2, int(n * 0.65): 3}
    for i, t in enumerate(b0):
        if i in pos0:
            a.I(uload[pos0[i]])
        a.I(t)
    kgen_mfma(a, True)
    for i, t in enumerate(b1):
        if i in pos1:
            a.I(uload[pos1[i]])
        a.I(t)
    kgen_mfma(a, False)
    stamp(a, 2)
    a.I("v_lshlrev_b32 v2, 3, v0")
    a.I("v_add_u32 v2, %d, v2" % (RAW_OFF + 32))
    a.I("s_waitcnt vmcnt(0)")
    for j in range(4):
        a.I("ds_write_b64 v2, %s offset:%d" % (vp(vU + 2 * j), 4096 * j))
    a.I("s_cmp_eq_u32 s%d, 0" % sHB)
    a.I("s_cbranch_scc1 L_A_lo")
    a.I("s_mul_i32 s3, s%d, 3072" % sCH)
    a.I("s_add_u32 s3, s3, %d" % RED_OFF)
    a.I("v_lshl_add_u32 v2, v1, 4, s3")
    for k in range(3):
        a.I("ds_write_b128 v2, %s offset:%d" % (v4(vACC + 4 * k), 1024 * k))
    a.I("v_and_b32 v4, 3, v1")
    a.I("v_bfe_u32 v5, v1, 2, 2")
    a.I("v_lshrrev_b32 v6, 4, v1")
    a.I("v_lshlrev_b32 v7, 2, v4")
    a.I("v_add_u32 v7, v7, v5")
    a.I("v_lshl_add_u32 v7, v6, 4, v7")
    a.I("v_subrev_u32 v7, s%d, v7" % sCH)
    a.I("v_lshlrev_b32 v7, 3, v7")
    a.I("v_add_u32 v7, %d, v7" % (RAW_OFF + 32))
    a.I("v_lshl_add_u32 v5, v6, 2, v5")
    a.I("v_lshlrev_b32 v5, 3, v5")
    a.I("v_mul_u32_u24 v4, %d, v4" % TS)
    a.I("v_add_u32 v5, v5, v4")
    a.I("s_mul_i32 s3, s%d, %d" % (sCH, CS))
    a.I("s_add_u32 s3, s3, %d" % (T_OFF + 32))
    a.I("v_add_u32 v5, s3, v5")
    a.I("s_waitcnt lgkmcnt(0)")
    a.I("s_barrier")
    stamp(a, 3)
    q = LdsQueue(a)
    D = 7
    rd = {}
    for blk in range(32 + D):
        if blk < 32:
            rd[blk] = q.op("ds_read_b64_tr_b16 %s, v7 offset:%d" % (vp(vOP + 2 * (blk % 8)), 512 * blk))
        w = blk - D
        if w >= 0:
            q.wait_for(rd[w])
            q.op("ds_write_b64 v5, %s offset:%d" % (vp(vOP + 2 * (w % 8)), 128 * w))
    a.I("s_cmp_lg_u32 s%d, 4" % sW)
    a.I("s_cbranch_scc1 L_A_t0")
    zero_T_pads(a, vZQ, 4, 5)
    a.label("L_A_t0")
    a.I("s_waitcnt lgkmcnt(0)")
    a.I("s_barrier")
    stamp(a, 4)
    if cfg["dump"]:
        dump_lds(a)
    a.I("s_branch L_HELP")
    a.label("L_A_lo")
    a.I("s_mul_i32 s3, s%d, 3072" % sCH)
    a.I("s_add_u32 s3, s3, %d" % RED_OFF)
    a.I("v_lshl_add_u32 v2, v1, 4, s3")
    a.I("s_mul_i32 s3, s%d, %d" % (sCH, RS))
    a.I("s_add_u32 s3, s3, %d" % (R_OFF + 4080 - 2 * 1792))
    a.I("v_lshlrev_b32 v4, 4, v1")
    a.I("v_sub_u32 v4, s3, v4")
    a.I("v_and_b32 v5, 31, v1")
    a.I("v_lshlrev_b32 v5, 4, v5")
    a.I("v_lshrrev_b32 v6, 5, v1")
    a.I("v_lshl_add_u32 v5, v6, 3, v5")
    a.I("s_add_u32 s3, s3, %d" % (2 * 1792 + 8))
    a.I("v_sub_u32 v5, s3, v5")
    a.I("v_cmp_eq_u32 vcc, 0, v1")
    a.I("v_mov_b32 v6, s%d" % sT3)
    a.I("v_cndmask_b32 v6, 0, v6, vcc")
    a.I("s_waitcnt lgkmcnt(0)")
    a.I("s_barrier")
    stamp(a, 3)
    P = vOP
    for k in range(3):
        a.I("ds_read_b128 %s, v2 offset:%d" % (v4(P + 4 * k), 1024 * k))
    A_ = vACC
    a.I("v_add_f32 v%d, v%d, v6" % (A_, A_))
    for k in range(3):
        a.I("s_waitcnt lgkmcnt(%d)" % (2 - k))
        for h in range(2):
            r = 4 * k + 2 * h
            a.I("v_pk_add_f32 %s, %s, %s" % (vp(A_ + r), vp(A_ + r), vp(P + r)))
    N4, N8, N10, N11 = vOP + 12, vOP + 13, vOP + 14, vOP + 15
    X = vOP + 16
    O = vOP + 24
    dpp = "row_mask:0xf bank_mask:0xf"
    a.I("v_cvt_pk_bf16_f32 v%d, v%d, v%d" % (O, A_ + 3, A_ + 2))
    a.I("v_cvt_pk_bf16_f32 v%d, v%d, v%d" % (O + 1, A_ + 1, A_ + 0))
    a.I("ds_write_b64 v5, %s" % vp(O))
    a.I("v_mov_b32_dpp v%d, v%d wave_rol:1 %s" % (N4, A_ + 8, dpp))
    a.I("v_mov_b32_dpp v%d, v%d wave_rol:1 %s" % (N8, A_ + 10, dpp))
    a.I("v_mov_b32_dpp v%d, v%d wave_rol:1 %s" % (N10, A_ + 11, dpp))
    a.I("v_mov_b32_dpp v%d, v%d wave_rol:1 %s" % (N11, A_ + 11, dpp))
    a.I("v_mov_b32_dpp v%d, v%d wave_shl:1 %s" % (N4, A_ + 4, dpp))
    a.I("v_mov_b32_dpp v%d, v%d wave_shl:1 %s" % (N8, A_ + 8, dpp))
    a.I("v_mov_b32_dpp v%d, v%d wave_shl:1 %s" % (N10, A_ + 10, dpp))
    hm, od = sp(sHM), sp(sODD)
    a.I("v_cndmask_b32 v%d, v%d, v%d, %s" % (X + 0, A_ + 7, N4, hm))
    a.I("v_cndmask_b32 v%d, v%d, v%d, %s" % (X + 1, A_ + 6, A_ + 5, hm))
    a.I("v_cndmask_b32 v%d, v%d, v%d, %s" % (X + 2, A_ + 5, A_ + 4, hm))
    a.I("v_cvt_pk_bf16_f32 v%d, v%d, v%d" % (O + 4, N4, X + 0))
    a.I("v_cvt_pk_bf16_f32 v%d, v%d, v%d" % (O + 5, X + 1, X + 1))
    a.I("v_cvt_pk_bf16_f32 v%d, v%d, v%d" % (O + 6, X + 1, X + 2))
    a.I("v_cvt_pk_bf16_f32 v%d, v%d, v%d" % (O + 7, A_ + 4, A_ + 4))
    a.I("ds_write_b128 v4, %s offset:%d" % (v4(O + 4), 2 * (1792 - 256)))
    a.I("v_cndmask_b32 v%d, v%d, v%d, %s" % (X + 3, A_ + 9, N8, hm))
    a.I("v_cndmask_b32 v%d, v%d, v%d, %s" % (X + 4, A_ + 8, N8, od))
    a.I("v_cndmask_b32 v%d, v%d, v%d, %s" % (X + 4, A_ + 9, X + 4, hm))
    a.I("v_cndmask_b32 v%d, v%d, v%d, %s" % (X + 5, A_ + 9, A_ + 8, hm))
    a.I("v_cvt_pk_bf16_f32 v%d, v%d, v%d" % (O + 8, N8, N8))
    a.I("v_cvt_pk_bf16_f32 v%d, v%d, v%d" % (O + 9, X + 3, X + 4))
    a.I("v_cvt_pk_bf16_f32 v%d, v%d, v%d" % (O + 10, X + 5, A_ + 8))
    a.I("v_cvt_pk_bf16_f32 v%d, v%d, v%d" % (O + 11, A_ + 8, A_ + 8))
    a.I("ds_write_b128 v4, %s offset:%d" % (v4(O + 8), 2 * (1792 - 768)))
    for (src, nx, o, base) in ((A_ + 10, N10, O + 12, 1280), (A_ + 11, N11, O + 16, 1792)):
        a.I("v_cndmask_b32 v%d, v%d, v%d, %s" % (X + 6, src, nx, od))
        a.I("v_cvt_pk_bf16_f32 v%d, v%d, v%d" % (o, nx, nx))
        a.I("v_cvt_pk_bf16_f32 v%d, v%d, v%d" % (o + 1, nx, X + 6))
        a.I("v_cvt_pk_bf16_f32 v%d, v%d, v%d" % (o + 2, src, src))
        a.I("v_cvt_pk_bf16_f32 v%d, v%d, v%d" % (o + 3, src, src))
        if base == 1792:
            a.I("s_mov_b32 exec_hi, 0")
        a.I("ds_write_b128 v4, %s offset:%d" % (v4(o), 2 * (1792 - base)))
    a.I("s_mov_b32 exec_hi, -1")
    conv_addr(a)
    a.I("s_waitcnt lgkmcnt(0)")
    a.I("s_barrier")
    stamp(a, 4)
    if cfg["dump"]:
        dump_lds(a)
    a.I("s_branch L_CONV")


vCA, vCB, vCY = 25, 26, 27
ACC1, ACC2 = 64, 32
SET = (96, 160)
vCV = 4


def conv_addr(a):
    a.I("v_and_b32 v2, 15, v1")
    a.I("v_lshrrev_b32 v3, 4, v1")
    a.I("v_sub_u32 v4, 15, v2")
    a.I("v_and_b32 v5, 3, v4")
    a.I("v_mul_u32_u24 v5, %d, v5" % CS)
    a.I("v_lshrrev_b32 v4, 2, v4")
    a.I("v_lshlrev_b32 v4, 3, v4")
    a.I("v_sub_u32 v5, v5, v4")
    a.I("v_lshl_add_u32 v5, v3, 4, v5")
    a.I("s_mul_i32 s3, s%d, %d" % (sCH, TS))
    a.I("s_add_u32 s3, s3, %d" % (T_OFF + 32))
    a.I("v_add_u32 v%d, s3, v5" % vCA)
    a.I("v_lshlrev_b32 v4, 5, v2")
    a.I("v_lshlrev_b32 v5, 4, v3")
    a.I("v_sub_u32 v5, v5, v4")
    a.I("s_mul_i32 s3, s%d, %d" % (sCH, RS))
    a.I("s_add_u32 s3, s3, %d" % (R_OFF + 480))
    a.I("v_add_u32 v%d, s3, v5" % vCB)
    a.I("v_mul_u32_u24 v5, 144, v3")
    a.I("v_lshl_add_u32 v5, v2, 3, v5")
    a.I("s_mul_i32 s3, s%d, %d" % (sCH, YS))
    a.I("s_add_u32 s3, s3, %d" % Y_OFF)
    a.I("v_add_u32 v%d, s3, v5" % vCY)


def gen_conv(a):
    a.label("L_CONV")
    q = LdsQueue(a)
    lag = cfg["lag"]
    p1 = cfg["p1"]
    phases = [list(range(0, p1)), list(range(p1, 8))]
    accof = {}
    for t in phases[0]:
        accof[t] = ACC1 + 4 * t
    for t in phases[1]:
        accof[t] = ACC2 + 4 * (t - p1)

    iters = [(ph, rho) for ph in range(2) for rho in range(8)]

    def units(ph):
        ts = phases[ph]
        hi = max(ts)
        return [(i, d) for i in range(hi + 1) for d in range(hi - i, -1, -1) if (i + d) in ts]

    def load_order(ph):
        seen = []
        for (i, d) in units(ph):
            for o in (("A", i), ("B", d)):
                if o not in seen:
                    seen.append(o)
        return seen

    def reg(k, o):
        return SET[k & 1] + (4 * o[1] if o[0] == "A" else 32 + 4 * o[1])

    def load_instrs(k, o):
        ph, rho = iters[k]
        r = reg(k, o)
        if o[0] == "A":
            off = 64 * rho + 512 * o[1]
            return ["ds_read_b64 %s, v%d offset:%d" % (vp(r), vCA, off),
                    "ds_read_b64 %s, v%d offset:%d" % (vp(r + 2), vCA, off + 8)]
        off = 64 * rho + 512 * (7 - o[1])
        return ["ds_read_b128 %s, v%d offset:%d" % (v4(r), vCB, off)]

    loaded = {}

    def pend(k, ops):
        out = []
        for o in ops:
            ins = load_instrs(k, o)
            for n_, t in enumerate(ins):
                out.append((k, o, t, n_ == len(ins) - 1))
        return out

    def issue(item):
        k, o, t, last = item
        idx = q.op(t)
        if last:
            loaded[(k, o)] = idx

    early = [o for o in load_order(1) if o not in load_order(0)]
    early_items = pend(8, early)
    per = -(-len(early_items) // 6)
    for it in pend(0, load_order(0)):
        issue(it)
    started = set()
    extra = []
    for k, (ph, rho) in enumerate(iters):
        todo = []
        if k + 1 < len(iters):
            nph = iters[k + 1][0]
            ops = load_order(nph)
            if k + 1 == 8:
                ops = [o for o in ops if o not in early]
            todo = pend(k + 1, ops)
        if ph == 0 and 1 <= k <= 6:
            todo += early_items[(k - 1) * per: k * per]
        us = units(ph)
        nm = len(us)
        span = max(1, nm - cfg.get("tailfree%d" % ph, (1 if ph == 0 else 5)))
        done = 0
        for m, (i, d) in enumerate(us):
            j = max(loaded[(k, ("A", i))], loaded[(k, ("B", d))])
            q.wait_for(j, lag)
            t = i + d
            acc = accof[t]
            c = v4(acc) if t in started else "0"
            started.add(t)
            a.I("v_mfma_f32_16x16x32_bf16 %s, %s, %s, %s" % (v4(acc), v4(reg(k, ("A", i))), v4(reg(k, ("B", d))), c))
            want = min(len(todo), -(-len(todo) * (m + 1) // span))
            while done < want:
                issue(todo[done])
                done += 1
            if k == 8 and m >= 2 and extra:
                extra.pop(0)()
        assert done == len(todo)
        if k == 7:
            state = {}
            for n_, t in enumerate(phases[0]):
                def f(t=t, n_=n_):
                    r = vCV + 2 * (n_ % 4)
                    a.I("v_cvt_pk_bf16_f32 v%d, v%d, v%d" % (r, accof[t], accof[t] + 1))
                    a.I("v_cvt_pk_bf16_f32 v%d, v%d, v%d" % (r + 1, accof[t] + 2, accof[t] + 3))
                    state["w"] = q.op("ds_write_b64 v%d, %s offset:%d" % (vCY, vp(r), 576 * t))
                extra.append(f)
            for _ in range(6):
                extra.append(lambda: None)

            def g():
                q.wait_for(state["w"])
                a.I("s_barrier")
                stamp(a, 5)
            extra.append(g)
        if k == 8:
            assert not extra
    for n_, t in enumerate(phases[1]):
        r = vCV + 2 * (n_ % 4)
        a.I("v_cvt_pk_bf16_f32 v%d, v%d, v%d" % (r, accof[t], accof[t] + 1))
        a.I("v_cvt_pk_bf16_f32 v%d, v%d, v%d" % (r + 1, accof[t] + 2, accof[t] + 3))
        q.op("ds_write_b64 v%d, %s offset:%d" % (vCY, vp(r), 576 * t))
    q.drain()
    a.I("s_barrier")
    stamp(a, 6)
    stamp_flush(a)
    a.I("s_endpgm")


vHQ = 16
vHY = 32
vHT = 48
vHR, vHO, vHI = 4, 5, 6


def gen_help(a):
    a.label("L_HELP")
    p1 = cfg["p1"]
    a.I("s_lshl_b32 s3, s%d, 6" % sCH)
    a.I("v_add_u32 v2, s3, v1")
    a.I("s_lshl_b32 s3, s%d, 3" % sGRP)
    a.I("v_mul_u32_u24 v%d, 896, v2" % vHI)
    a.I("v_add_u32 v%d, s3, v%d" % (vHI, vHI))
    a.I("s_mul_i32 s%d, s%d, 896" % (sT0, sISB))
    a.I("s_add_u32 s3, s3, s%d" % sT0)
    a.I("v_mul_u32_u24 v%d, 1792, v2" % vHO)
    a.I("v_add_u32 v%d, s3, v%d" % (vHO, vHO))
    for t in range(8):
        a.I("s_mov_b32 s%d, %d" % (64 + t, t * 256 * 896))
        a.I("s_mov_b32 s%d, %d" % (72 + t, t * 256 * 1792))
    a.I("s_cmp_eq_u32 s%d, 0" % sISB)
    a.I("s_cbranch_scc1 L_H_noq")
    for t in range(8):
        a.I("buffer_load_dwordx2 %s, v%d, %s, s%d offen" % (vp(vHQ + 2 * t), vHI, s4(SRD_IN), 64 + t))
    a.label("L_H_noq")
    a.I("v_bfe_u32 v2, v1, 2, 2")
    a.I("v_mul_u32_u24 v2, %d, v2" % YS)
    a.I("v_and_b32 v3, 3, v1")
    a.I("v_mul_u32_u24 v3, 144, v3")
    a.I("v_add_u32 v2, v2, v3")
    a.I("v_lshrrev_b32 v3, 4, v1")
    a.I("v_lshl_add_u32 v2, v3, 3, v2")
    a.I("s_lshl_b32 s3, s%d, 5" % sCH)
    a.I("s_add_u32 s3, s3, %d" % Y_OFF)
    a.I("v_add_u32 v%d, s3, v2" % vHR)
    for ph, ts in enumerate((list(range(0, p1)), list(range(p1, 8)))):
        a.I("s_barrier")
        stamp(a, 5 + ph)
        for t in ts:
            a.I("ds_read_b64_tr_b16 %s, v%d offset:%d" % (vp(vHY + 2 * t), vHR, 576 * t))
        a.I("s_cmp_eq_u32 s%d, 0" % sISB)
        a.I("s_cbranch_scc1 L_H_a%d" % ph)
        if ph == 0:
            a.I("s_waitcnt vmcnt(%d)" % (8 - p1))
        else:
            a.I("s_waitcnt vmcnt(%d)" % p1)
        for n_, t in enumerate(ts):
            a.I("s_waitcnt lgkmcnt(%d)" % (len(ts) - 1 - n_))
            for h in range(2):
                y, qq = vHY + 2 * t + h, vHQ + 2 * t + h
                T = vHT + 4 * h
                a.I("v_lshlrev_b32 v%d, 16, v%d" % (T, y))
                a.I("v_and_b32 v%d, 0xffff0000, v%d" % (T + 1, y))
                a.I("v_lshlrev_b32 v%d, 16, v%d" % (T + 2, qq))
                a.I("v_and_b32 v%d, 0xffff0000, v%d" % (T + 3, qq))
                a.I("v_pk_mul_f32 %s, %s, %s" % (vp(T), vp(T), vp(T + 2)))
                a.I("v_cvt_pk_bf16_f32 v%d, v%d, v%d" % (y, T, T + 1))
            a.I("buffer_store_dwordx2 %s, v%d, %s, s%d offen %s" % (vp(vHY + 2 * t), vHO, s4(SRD_OUT), 72 + t, cfg["nt_out"]))
        a.I("s_branch L_H_e%d" % ph)
        a.label("L_H_a%d" % ph)
        for n_, t in enumerate(ts):
            a.I("s_waitcnt lgkmcnt(%d)" % (len(ts) - 1 - n_))
            a.I("buffer_store_dwordx2 %s, v%d, %s, s%d offen %s" % (vp(vHY + 2 * t), vHO, s4(SRD_OUT), 72 + t, cfg["nt_out"]))
        a.label("L_H_e%d" % ph)
    if cfg["stamps"]:
        stamp(a, 7)
        a.I("s_waitcnt vmcnt(0)")
        stamp(a, 8)
        stamp_flush(a)
    a.I("s_endpgm")


sWR = 64
sWU = 72


def build_T_from_global(a, vS):
    a.I("s_cmp_eq_u32 s%d, 0" % sHB)
    a.I("s_cselect_b32 s%d, s%d, 0" % (sT3, sT3))
    a.I("v_cmp_eq_u32 vcc, 0, v1")
    a.I("v_mov_b32 v2, s%d" % sT3)
    a.I("v_cndmask_b32 v2, 0, v2, vcc")
    a.I("v_lshlrev_b32 v3, 16, v%d" % (vS + 2))
    a.I("v_add_f32 v3, v3, v2")
    a.I("v_cvt_pk_bf16_f32 v3, v3, v3")
    a.I("s_mov_b32 s3, 0xffff")
    a.I("v_bfi_b32 v%d, s3, v3, v%d" % (vS + 2, vS + 2))
    a.I("s_mul_i32 s3, s%d, %d" % (sCH, TS))
    a.I("s_lshl_b32 s%d, s%d, 11" % (sT0, sHB))
    a.I("s_add_u32 s3, s3, s%d" % sT0)
    a.I("s_add_u32 s3, s3, %d" % (T_OFF + 32))
    a.I("v_lshl_add_u32 v2, v1, 4, s3")
    W = vS + 12
    for u in range(2):
        d = lambda k: vS + 6 * u + 2 + k
        a.I("ds_write_b128 v2, %s offset:%d" % (v4(d(0)), 1024 * u))
        o = W + 12 * u
        for k in range(4):
            a.I("v_alignbit_b32 v%d, v%d, v%d, 16" % (o + k, d(k), d(k - 1)))
        a.I("ds_write_b128 v2, %s offset:%d" % (v4(o), CS + 1024 * u))
        for k in range(4):
            a.I("v_mov_b32 v%d, v%d" % (o + 4 + k, d(k - 1)))
        a.I("ds_write_b128 v2, %s offset:%d" % (v4(o + 4), 2 * CS + 1024 * u))
        for k in range(4):
            a.I("v_alignbit_b32 v%d, v%d, v%d, 16" % (o + 8 + k, d(k - 1), d(k - 2)))
        a.I("ds_write_b128 v2, %s offset:%d" % (v4(o + 8), 3 * CS + 1024 * u))


def load_T_global(a, vS):
    a.I("s_lshl_b32 s3, s%d, 12" % sC)
    a.I("s_add_u32 s%d, s%d, s3" % (SRD_SK, SSK))
    a.I("s_addc_u32 s%d, s%d, 0" % (SRD_SK + 1, SSK + 1))
    a.I("s_mov_b32 s%d, 4096" % (SRD_SK + 2))
    a.I("s_mov_b32 s%d, 0x20000" % (SRD_SK + 3))
    a.I("s_lshl_b32 s3, s%d, 11" % sHB)
    a.I("v_lshl_add_u32 v2, v1, 4, s3")
    a.I("v_add_u32 v3, -8, v2")
    a.I("v_add_u32 v4, 0x3f8, v2")
    a.I("buffer_load_dwordx4 %s, v2, %s, 0 offen %s" % (v4(vS + 2), s4(SRD_SK), cfg["nt_in"]))
    a.I("buffer_load_dwordx4 %s, v2, %s, 0 offen offset:1024 %s" % (v4(vS + 8), s4(SRD_SK), cfg["nt_in"]))
    a.I("buffer_load_dwordx2 %s, v3, %s, 0 offen %s" % (vp(vS), s4(SRD_SK), cfg["nt_in"]))
    a.I("buffer_load_dwordx2 %s, v4, %s, 0 offen %s" % (vp(vS + 6), s4(SRD_SK), cfg["nt_in"]))


def unpack_weights_uniform(a):
    for c in range(4):
        p, e = c >> 1, c & 1
        for t in range(4):
            src = sWR + 2 * c + (t >> 1)
            dst = sWU + 8 * p + 2 * t + e
            if t & 1:
                a.I("s_and_b32 s%d, s%d, 0xffff0000" % (dst, src))
            else:
                a.I("s_lshl_b32 s%d, s%d, 16" % (dst, src))


def gen_B(a):
    a.label("L_B")
    vS = 64
    vK = 16
    vVv = 32
    a.I("s_lshl_b32 s3, s%d, 5" % sGRP)
    a.I("s_lshr_b32 s%d, s%d, 1" % (sT0, sC))
    a.I("s_lshl_b32 s%d, s%d, 2" % (sT0, sT0))
    a.I("s_waitcnt lgkmcnt(0)")
    a.I("s_load_dwordx8 s[%d:%d], %s, s3" % (sWR, sWR + 7, sp(SHK)))
    a.I("s_load_dword s%d, %s, s%d" % (sT3, sp(SSD), sT0))
    a.I("s_lshl_b32 s%d, s%d, 7" % (sT0, sSUB))
    a.I("s_lshl_b32 s%d, s%d, 4" % (sT1, sW))
    a.I("s_add_u32 s%d, s%d, s%d" % (sT0, sT0, sT1))
    a.I("s_mul_i32 s%d, s%d, 896" % (sT0, sT0))
    a.I("s_lshl_b32 s%d, s%d, 7" % (sT1, sX))
    a.I("s_add_u32 s%d, s%d, s%d" % (sT0, sT0, sT1))
    a.I("v_and_b32 v5, 15, v1")
    a.I("v_mul_u32_u24 v5, 896, v5")
    a.I("v_add_u32 v5, s%d, v5" % sT0)
    a.I("global_load_dword v%d, v5, %s %s" % (vDUMMY, sp(K), cfg["nt_pf"]))
    a.I("global_load_dword v%d, v5, %s %s" % (vDUMMY, sp(V), cfg["nt_pf"]))
    load_T_global(a, vS)
    a.I("global_load_dword v%d, v5, %s %s" % (vDUMMY, sp(Q), cfg["nt_pf"]))
    stamp(a, 0)
    srd(a, SRD_IN, Q, IN_BYTES)
    srd(a, SRD_OUT, OUT, OUT_BYTES)
    srd(a, SRD_K, K, IN_BYTES)
    srd(a, SRD_V, V, IN_BYTES)
    zero_quad(a, 56)
    zero_R_pad(a, 56, 2)
    zero_RAW_front(a, 56, 4)
    zero_T_pads(a, 56, 9, 10)
    a.I("s_lshl_b32 s3, s%d, 3" % sGRP)
    a.I("v_mul_u32_u24 v24, 3584, v0")
    a.I("v_add_u32 v40, s3, v24")
    a.I("s_and_b32 s3, s%d, 1" % sC)
    a.I("s_lshl_b32 s3, s3, 4")
    a.I("s_waitcnt lgkmcnt(0)")
    a.I("s_lshr_b32 s%d, s%d, s3" % (sT3, sT3))
    a.I("s_lshl_b32 s%d, s%d, 16" % (sT3, sT3))
    unpack_weights_uniform(a)
    a.I("s_waitcnt vmcnt(5)")
    stamp(a, 1)
    for j in range(4):
        a.I("buffer_load_dwordx2 %s, v40, %s, 0 offen offset:%d" % (vp(vK + 6 + 2 * j), s4(SRD_K), 896 * j))
    for j in range(4):
        a.I("buffer_load_dwordx2 %s, v40, %s, 0 offen offset:%d" % (vp(vVv + 2 * j), s4(SRD_V), 896 * j))
    a.I("s_waitcnt vmcnt(9)")
    build_T_from_global(a, vS)
    a.I("v_lshlrev_b32 v2, 5, v0")
    a.I("v_add_u32 v2, %d, v2" % (RAW_OFF + 8))
    a.I("s_waitcnt vmcnt(4)")
    a.I("ds_write_b128 v2, %s offset:24" % v4(vK + 6))
    a.I("ds_write_b128 v2, %s offset:40" % v4(vK + 10))
    a.I("s_waitcnt lgkmcnt(0)")
    a.I("s_barrier")
    for j in range(3):
        a.I("ds_read_b64 %s, v2 offset:%d" % (vp(vK + 2 * j), 8 * j))
    a.I("v_lshlrev_b32 v3, 3, v0")
    a.I("v_sub_u32 v3, %d, v3" % (R_OFF + 4088))
    a.I("s_waitcnt vmcnt(0) lgkmcnt(0)")
    stamp(a, 2)
    KU = 100
    VU = 116
    RES = 124
    O = 132
    for p in range(2):
        for r in range(7):
            a.I("v_lshlrev_b32 v%d, 16, v%d" % (KU + 2 * r, vK + 2 * r + p))
            a.I("v_and_b32 v%d, 0xffff0000, v%d" % (KU + 2 * r + 1, vK + 2 * r + p))
        for r in range(4):
            a.I("v_lshlrev_b32 v%d, 16, v%d" % (VU + 2 * r, vVv + 2 * r + p))
            a.I("v_and_b32 v%d, 0xffff0000, v%d" % (VU + 2 * r + 1, vVv + 2 * r + p))
        for r in range(4):
            R_ = RES + 2 * r
            a.I("v_pk_mul_f32 %s, %s, %s" % (vp(R_), vp(KU + 2 * r), sp(sWU + 8 * p + 6)))
            for t in (2, 1, 0):
                a.I("v_pk_fma_f32 %s, %s, %s, %s" % (vp(R_), vp(KU + 2 * (r + 3 - t)), sp(sWU + 8 * p + 2 * t), vp(R_)))
            a.I("v_pk_mul_f32 %s, %s, %s" % (vp(R_), vp(R_), vp(VU + 2 * r)))
        for e in range(2):
            o = O + 4 * p + 2 * e
            a.I("v_cvt_pk_bf16_f32 v%d, v%d, v%d" % (o, RES + 6 + e, RES + 4 + e))
            a.I("v_cvt_pk_bf16_f32 v%d, v%d, v%d" % (o + 1, RES + 2 + e, RES + e))
            a.I("ds_write_b64 v3, %s offset:%d" % (vp(o), (2 * p + e) * RS))
    a.I("s_cmp_eq_u32 s%d, 0" % sHB)
    a.I("s_cbranch_scc0 L_B_h")
    conv_addr(a)
    a.I("s_waitcnt lgkmcnt(0)")
    a.I("s_barrier")
    stamp(a, 4)
    if cfg["dump"]:
        dump_lds(a)
    a.I("s_branch L_CONV")
    a.label("L_B_h")
    a.I("s_waitcnt lgkmcnt(0)")
    a.I("s_barrier")
    stamp(a, 4)
    if cfg["dump"]:
        dump_lds(a)
    a.I("s_branch L_HELP")


HEADER = open("cdna_kernels/%s.s.ref" % NAME).read().split("; Override launch geometry")[0]


def build():
    a = Asm()
    gen_entry(a)
    gen_A(a)
    gen_B(a)
    gen_conv(a)
    gen_help(a)
    a.label("L_end")
    a.I("s_endpgm")
    a.label("L_codeend")
    body = a.finalize()
    txt = HEADER
    txt += "; @launch grid=(256,1,1) block=(512,1,1) lds=%d\n" % LDS_SIZE
    txt += '.amdgcn_target "amdgcn-amd-amdhsa--gfx950"\n.text\n.globl %s_kernel\n.p2align 8\n.type %s_kernel,@function\n%s_kernel:\n' % (NAME, NAME, NAME)
    txt += body
    txt += """.section .rodata,"a"
.p2align 6
.amdhsa_kernel %s_kernel
  .amdhsa_next_free_vgpr %d
  .amdhsa_next_free_sgpr 102
  .amdhsa_accum_offset %d
  .amdhsa_group_segment_fixed_size 0
  .amdhsa_kernarg_size 128
  .amdhsa_user_sgpr_count 2
  .amdhsa_user_sgpr_kernarg_segment_ptr 1
  .amdhsa_system_sgpr_workgroup_id_x 1
  .amdhsa_float_denorm_mode_32 3
.end_amdhsa_kernel
""" % (NAME, NVGPR if not cfg["stamps"] else 232, NVGPR if not cfg["stamps"] else 232)
    return txt, a


if __name__ == "__main__":
    out = sys.argv[1]
    for kv in sys.argv[2:]:
        k, v = kv.split("=", 1)
        try:
            v = json.loads(v)
        except Exception:
            pass
        cfg[k] = v
    txt, a = build()
    open(out, "w").write(txt)
    print("instructions:", a.count(), "auto nops:", a.nops)
```

```python
import sys
import json
from asmgen import Asm, LdsQueue

NAME = "concat_heads__ssm_conv_s4d__ssm_conv_h3__prompt"

cfg = dict(
    stamps=0,
    dump=None,
    nt_in="nt",
    nt_pf="nt",
    nt_out="",
    codepf=1,
    lag=8,
    p1=4,
)

CS = 4160
TS = 4 * CS + 32
T_OFF = 0
YS = 4672
Y_OFF = 4 * TS
ROWB = 2064
MSW = 28
RAW_OFF = 56 * ROWB
RS = 4576
R_OFF = RAW_OFF + 16416
RED_OFF = R_OFF + 4 * RS
LDS_SIZE = RED_OFF + 4 * 3072
IN_BYTES = 2048 * 896
OUT_BYTES = 2048 * 1792

sX, sSUB, sGRP, sW = 4, 5, 6, 7
U, LAR, AIM, CR, CI, LDT, DSK, Q = 8, 10, 12, 14, 16, 18, 20, 22
K, V, SHK, SSK, SSD, OUT, DBG, WS = 24, 26, 28, 30, 32, 34, 36, 38
sPC = 40
sT0, sT1 = 42, 43
SRD_OUT, SRD_IN, SRD_K, SRD_V, SRD_SK = 44, 48, 52, 56, 60
sCH, sHB, sC, sT2, sT3, sT4, sISB = 88, 89, 90, 91, 92, 93, 94
sST = 96
vSTAMP = 224
vDUMMY = 225
NVGPR = 232


def sp(n):
    return "s[%d:%d]" % (n, n + 1)


def s4(n):
    return "s[%d:%d]" % (n, n + 3)


def vp(n):
    assert n % 2 == 0
    return "v[%d:%d]" % (n, n + 1)


def v4(n):
    assert n % 2 == 0
    return "v[%d:%d]" % (n, n + 3)


def stamp(a, idx):
    if cfg["stamps"]:
        a.I("s_memrealtime %s" % sp(sST))
        a.I("s_waitcnt lgkmcnt(0)")
        a.I("v_writelane_b32 v%d, s%d, %d" % (vSTAMP, sST, idx))


def stamp_flush(a):
    if cfg["stamps"]:
        a.I("s_lshl_b32 s%d, s2, 11" % sT0)
        a.I("s_lshl_b32 s%d, s%d, 8" % (sT1, sW))
        a.I("s_add_u32 s%d, s%d, s%d" % (sT0, sT0, sT1))
        a.I("s_add_u32 s%d, s%d, 0x1000000" % (sT0, sT0))
        a.I("v_lshl_add_u32 v2, v1, 2, s%d" % sT0)
        if cfg["stamps"] == 2:
            lab = "L_nodbg%d" % len(a.items)
            a.I("s_and_b32 s%d, s2, 0xfffffff7" % sT0)
            a.I("s_lshl_b32 s%d, s%d, 8" % (sT1, sW))
            a.I("s_or_b32 s%d, s%d, s%d" % (sT0, sT0, sT1))
            a.I("s_cmp_eq_u32 s%d, 0x400" % sT0)
            a.I("s_cbranch_scc0 %s" % lab)
            a.I("s_lshl_b32 s%d, s2, 2" % sT0)
            a.I("v_lshl_add_u32 v2, v1, 2, s%d" % sT0)
            a.I("s_mov_b32 exec_lo, 0xff")
            a.I("s_mov_b32 exec_hi, 0")
            a.I("global_store_dword v2, v%d, %s" % (vSTAMP, sp(DBG)))
            a.label(lab)
        else:
            a.I("global_store_dword v2, v%d, %s" % (vSTAMP, sp(WS)))


def srd(a, dst, ptr, nbytes):
    a.I("s_mov_b32 s%d, s%d" % (dst, ptr))
    a.I("s_mov_b32 s%d, s%d" % (dst + 1, ptr + 1))
    a.I("s_mov_b32 s%d, %d" % (dst + 2, nbytes))
    a.I("s_mov_b32 s%d, 0x20000" % (dst + 3))


def dump_lds(a):
    a.I("s_mul_i32 s%d, s2, 163840" % sT0)
    a.I("v_lshlrev_b32 v2, 4, v0")
    a.I("v_add_u32 v3, s%d, v2" % sT0)
    for j in range(LDS_SIZE // 8192 + 1):
        a.I("ds_read_b128 v[4:7], v2")
        a.I("s_waitcnt lgkmcnt(0)")
        a.I("global_store_dwordx4 v3, v[4:7], %s" % sp(WS))
        a.I("s_waitcnt vmcnt(0)")
        a.I("v_add_u32 v2, 8192, v2")
        a.I("v_add_u32 v3, 8192, v3")
    a.I("s_barrier")


def gen_entry(a):
    a.I("s_load_dwordx16 s[8:23], s[0:1], 0")
    a.I("s_load_dwordx16 s[24:39], s[0:1], 64")
    a.I("s_cmp_ge_u32 s2, 256")
    a.I("s_cbranch_scc1 L_end")
    a.I("s_and_b32 s%d, s2, 7" % sX)
    a.I("s_cmp_eq_u32 s%d, 7" % sX)
    a.I("s_cbranch_scc1 L_end")
    if cfg["codepf"]:
        a.I("s_getpc_b64 %s" % sp(sPC))
        a.label("L_pc")
        a.I("v_lshlrev_b32 v2, 7, v0")
        a.I("v_min_u32 v2, L_codeend-L_pc-4, v2")
        a.I("global_load_dword v%d, v2, %s" % (vDUMMY, sp(sPC)))
    if cfg["stamps"]:
        a.I("v_mov_b32 v%d, 0" % vSTAMP)
    a.I("v_lshrrev_b32 v2, 6, v0")
    a.I("v_and_b32 v1, 63, v0")
    a.I("v_readfirstlane_b32 s%d, v2" % sW)
    a.I("s_lshr_b32 s3, s2, 3")
    a.I("s_lshr_b32 s%d, s3, 1" % sSUB)
    a.I("s_lshl_b32 s%d, s%d, 4" % (sGRP, sX))
    a.I("s_add_u32 s%d, s%d, s%d" % (sGRP, sGRP, sSUB))
    a.I("s_and_b32 s%d, s3, 1" % sISB)
    a.I("s_and_b32 s%d, s%d, 3" % (sCH, sW))
    a.I("s_lshr_b32 s%d, s%d, 2" % (sHB, sW))
    a.I("s_lshl_b32 s%d, s%d, 2" % (sC, sGRP))
    a.I("s_add_u32 s%d, s%d, s%d" % (sC, sC, sCH))
    a.I("s_cmp_eq_u32 s%d, 1" % sISB)
    a.I("s_cbranch_scc1 L_B")


def zero_quad(a, q):
    for i in range(4):
        a.I("v_mov_b32 v%d, 0" % (q + i))


def zero_R_pad(a, zq, tmp):
    a.I("s_mul_i32 s%d, s%d, %d" % (sT0, sCH, RS))
    a.I("s_add_u32 s%d, s%d, %d" % (sT0, sT0, R_OFF + 4096))
    a.I("v_min_u32 v%d, 29, v1" % tmp)
    a.I("v_lshl_add_u32 v%d, v%d, 4, s%d" % (tmp, tmp, sT0))
    a.I("ds_write_b128 v%d, %s" % (tmp, v4(zq)))


def zero_RAW_front(a, zq, tmp):
    a.I("v_and_b32 v%d, 1, v1" % tmp)
    a.I("v_lshlrev_b32 v%d, 4, v%d" % (tmp, tmp))
    a.I("v_add_u32 v%d, %d, v%d" % (tmp, RAW_OFF, tmp))
    a.I("ds_write_b128 v%d, %s" % (tmp, v4(zq)))


def zero_T_pads(a, zq, t0, t1):
    a.I("v_bfe_u32 v%d, v1, 3, 2" % t0)
    a.I("v_mul_u32_u24 v%d, %d, v%d" % (t0, TS, t0))
    a.I("v_bfe_u32 v%d, v1, 1, 2" % t1)
    a.I("v_mul_u32_u24 v%d, %d, v%d" % (t1, CS, t1))
    a.I("v_add_u32 v%d, v%d, v%d" % (t0, t0, t1))
    a.I("v_and_b32 v%d, 1, v1" % t1)
    a.I("v_lshl_add_u32 v%d, v%d, 4, v%d" % (t0, t1, t0))
    a.I("ds_write_b128 v%d, %s offset:%d" % (t0, v4(zq), T_OFF))


vU = 8
vP = 16
vAB = 20
v2DT = 22
vOFFU = 24
vAA = 25
vZ, vC, vV, vW, vG, vXc, vQ, vT, vT2 = 28, 30, 32, 34, 36, 38, 40, 42, 44
vTMP = 46
vO = 52
vZQ = 56
vACC = 64
vOP = 80
sLHI, sLLO, sLN2 = 64, 65, 66
s8, s256 = 68, 70
sHM, sODD = 72, 74
sSO = 76
sM0 = 80


class KG:
    def __init__(self, a):
        self.a = a
        self.k = 0

    def cmul(self, D, X, Y, T=vT):
        a = self.a
        a.I("v_pk_mul_f32 %s, %s, %s op_sel:[1,1] op_sel_hi:[1,0] neg_lo:[1,0]" % (vp(T), vp(X), vp(Y)))
        a.I("v_pk_fma_f32 %s, %s, %s, %s op_sel_hi:[0,1,1]" % (vp(D), vp(X), vp(Y), vp(T)))

    def out(self, row, X, neg):
        a = self.a
        r = vO + (self.k & 3)
        self.k += 1
        a.I("v_cvt_pk_bf16_f32 v%d, v%d, %sv%d" % (r, X, "-" if neg else "", X + 1))
        if row == 0:
            a.I("s_mov_b32 m0, s%d" % sM0)
        if row == MSW:
            a.I("s_mov_b32 m0, s%d" % (sM0 + 1))
        a.I("ds_write_addtid_b32 v%d offset:%d" % (r, (row - (MSW if row >= MSW else 0)) * ROWB))

    def anchor(self, P, Zs):
        a = self.a
        a.I("v_fract_f32 v%d, v%d" % (vTMP + 1, Zs + 1))
        a.I("v_exp_f32 v%d, v%d" % (vTMP, Zs))
        a.I("v_cos_f32 v%d, v%d" % (P, vTMP + 1))
        a.I("v_sin_f32 v%d, v%d" % (P + 1, vTMP + 1))
        a.I("v_pk_mul_f32 %s, %s, %s op_sel_hi:[1,0]" % (vp(P), vp(P), vp(vTMP)))


def exp_bf16(a, dst, x, t0, t1):
    a.I("v_mul_f32 v%d, s%d, v%d" % (t0, sLHI, x))
    a.I("v_fma_f32 v%d, v%d, s%d, -v%d" % (t1, x, sLHI, t0))
    a.I("v_exp_f32 v%d, v%d" % (t0, t0))
    a.I("v_fmac_f32 v%d, s%d, v%d" % (t1, sLLO, x))
    a.I("v_mul_f32 v%d, s%d, v%d" % (t1, sLN2, t1))
    a.I("v_fmac_f32 v%d, v%d, v%d" % (t0, t0, t1))
    a.I("v_cvt_pk_bf16_f32 v%d, v%d, v%d" % (t0, t0, t0))
    a.I("v_lshlrev_b32 v%d, 16, v%d" % (dst, t0))


def kgen_batch(beta):
    b = Asm()
    kg = KG(b)

    def unpack(dst, src):
        if beta == 0:
            b.I("v_lshlrev_b32 v%d, 16, v%d" % (dst, src))
        else:
            b.I("v_and_b32 v%d, 0xffff0000, v%d" % (dst, src))

    unpack(vTMP + 2, vP + 0)
    unpack(vZ + 1, vP + 1)
    unpack(vC, vP + 2)
    unpack(vC + 1, vP + 3)
    exp_bf16(b, vZ, vTMP + 2, vTMP + 3, vTMP + 4)
    b.I("v_pk_mul_f32 %s, %s, %s op_sel_hi:[1,0]" % (vp(vC), vp(vC), vp(v2DT)))
    b.I("v_pk_mul_f32 %s, %s, %s" % (vp(vZ), vp(vZ), vp(vAB)))
    kg.out(0, vC, True)
    b.I("v_pk_mul_f32 %s, %s, %s op_sel_hi:[1,0]" % (vp(vT2), vp(vZ), sp(s256)))
    kg.anchor(vG, vT2)
    b.I("v_pk_mul_f32 %s, %s, %s op_sel_hi:[1,0]" % (vp(vT2), vp(vZ), sp(s8)))
    kg.anchor(vW, vT2)
    kg.anchor(vV, vZ)
    src = vC
    for row in (8, 12, 16, 20, 18, 22, 19, 23):
        kg.cmul(vQ, src, vG)
        kg.out(row, vQ, True)
        src = vQ
    src = vC
    for r in range(1, 8):
        kg.cmul(vXc, src, vV)
        kg.out(r, vXc, True)
        src = vXc
        if r == 2:
            kg.cmul(vQ, vXc, vG)
            kg.out(9, vQ, True)
        if r == 4:
            kg.cmul(vQ, vXc, vG)
            kg.out(10, vQ, True)
            kg.cmul(vQ, vQ, vG)
            kg.out(13, vQ, True)
            kg.cmul(vQ, vQ, vG)
            kg.out(17, vQ, True)
        if r == 6:
            kg.cmul(vQ, vXc, vG)
            kg.out(11, vQ, True)
    kg.out(25, vW, False)
    src = vW
    for j in range(2, 32):
        kg.cmul(vXc, src, vW)
        kg.out(24 + j, vXc, False)
        src = vXc
    return [it.text for it in b.items]


def kgen_mfma(a, first):
    q = LdsQueue(a)
    idx = []
    for s in range(8):
        ia = q.op("ds_read_b128 %s, v%d offset:%d" % (v4(vOP + 8 * s), vAA, 32 * s))
        ib = q.op("ds_read_b128 %s, v%d offset:%d" % (v4(vOP + 8 * s + 4), vAA, 24 * ROWB + 32 * s))
        idx.append(ib)
        if s == 3:
            pass
    for s in range(8):
        q.wait_for(idx[s])
        c = "0" if (first and s == 0) else "v[%d:%d]" % (vACC, vACC + 15)
        a.I("v_mfma_f32_32x32x16_bf16 v[%d:%d], %s, %s, %s" % (vACC, vACC + 15, v4(vOP + 8 * s), v4(vOP + 8 * s + 4), c))


def gen_A(a):
    a.label("L_A")
    a.I("s_lshl_b32 s3, s%d, 9" % sC)
    a.I("s_lshl_b32 s%d, s%d, 8" % (sT0, sHB))
    a.I("s_add_u32 s3, s3, s%d" % sT0)
    a.I("v_lshl_add_u32 v4, v1, 2, s3")
    a.I("s_lshl_b32 s%d, s%d, 7" % (sT0, sSUB))
    a.I("s_lshl_b32 s%d, s%d, 4" % (sT1, sW))
    a.I("s_add_u32 s%d, s%d, s%d" % (sT0, sT0, sT1))
    a.I("s_mul_i32 s%d, s%d, 896" % (sT0, sT0))
    a.I("s_lshl_b32 s%d, s%d, 7" % (sT1, sX))
    a.I("s_add_u32 s%d, s%d, s%d" % (sT0, sT0, sT1))
    a.I("v_and_b32 v5, 15, v1")
    a.I("v_mul_u32_u24 v5, 896, v5")
    a.I("v_add_u32 v5, s%d, v5" % sT0)
    a.I("s_lshr_b32 s3, s%d, 1" % sC)
    a.I("s_lshl_b32 s3, s3, 2")
    a.I("s_waitcnt lgkmcnt(0)")
    for i, p in enumerate((LAR, AIM, CR, CI)):
        a.I("global_load_dword v%d, v4, %s %s" % (vP + i, sp(p), cfg["nt_in"]))
    a.I("s_load_dword s%d, %s, s3" % (sT2, sp(LDT)))
    a.I("s_load_dword s%d, %s, s3" % (sT3, sp(DSK)))
    a.I("global_load_dword v%d, v5, %s %s" % (vDUMMY, sp(U), cfg["nt_pf"]))
    stamp(a, 0)
    srd(a, SRD_IN, U, IN_BYTES)
    srd(a, SRD_OUT, OUT, OUT_BYTES)
    for j in range(4):
        a.I("s_mov_b32 s%d, %d" % (sSO + j, j * 512 * 896))
    a.I("s_lshl_b32 s3, s%d, 3" % sGRP)
    a.I("v_mul_u32_u24 v%d, 896, v0" % vOFFU)
    a.I("v_add_u32 v%d, s3, v%d" % (vOFFU, vOFFU))
    a.I("s_mov_b32 s%d, 0x3fb8aa3b" % sLHI)
    a.I("s_mov_b32 s%d, 0x32a57060" % sLLO)
    a.I("s_mov_b32 s%d, 0x3f317218" % sLN2)
    a.I("s_mov_b32 s%d, 0x41000000" % s8)
    a.I("s_mov_b32 s%d, 0x43800000" % s256)
    a.I("s_mov_b32 s%d, 0" % sHM)
    a.I("s_mov_b32 s%d, -1" % (sHM + 1))
    a.I("s_mov_b32 s%d, 0xaaaaaaaa" % sODD)
    a.I("s_mov_b32 s%d, 0xaaaaaaaa" % (sODD + 1))
    a.I("s_lshl_b32 s3, s%d, 8" % sW)
    a.I("s_mov_b32 s%d, s3" % sM0)
    a.I("s_add_u32 s%d, s3, %d" % (sM0 + 1, MSW * ROWB))
    a.I("s_mov_b32 m0, s3")
    a.I("v_and_b32 v2, 31, v1")
    a.I("v_mul_u32_u24 v2, %d, v2" % ROWB)
    a.I("v_lshrrev_b32 v4, 5, v1")
    a.I("v_lshl_add_u32 v2, v4, 4, v2")
    a.I("v_add_u32 v%d, s3, v2" % vAA)
    zero_quad(a, vZQ)
    zero_R_pad(a, vZQ, 2)
    zero_RAW_front(a, vZQ, 4)
    a.I("v_mov_b32 v%d, 0x3f80" % vO)
    a.I("ds_write_addtid_b32 v%d offset:%d" % (vO, 24 * ROWB))
    a.I("s_and_b32 s3, s%d, 1" % sC)
    a.I("s_lshl_b32 s3, s3, 4")
    a.I("s_waitcnt lgkmcnt(0)")
    a.I("s_lshr_b32 s%d, s%d, s3" % (sT2, sT2))
    a.I("s_lshl_b32 s%d, s%d, 16" % (sT2, sT2))
    a.I("s_lshr_b32 s%d, s%d, s3" % (sT3, sT3))
    a.I("s_lshl_b32 s%d, s%d, 16" % (sT3, sT3))
    a.I("v_mov_b32 v%d, s%d" % (vTMP + 2, sT2))
    exp_bf16(a, vTMP + 5, vTMP + 2, vTMP + 3, vTMP + 4)
    a.I("v_mul_f32 v%d, 0xbfb8aa3b, v%d" % (vAB, vTMP + 5))
    a.I("v_mul_f32 v%d, 0.15915494, v%d" % (vAB + 1, vTMP + 5))
    a.I("v_add_f32 v%d, v%d, v%d" % (v2DT, vTMP + 5, vTMP + 5))
    a.I("s_waitcnt vmcnt(1)")
    stamp(a, 1)
    uload = ["buffer_load_dwordx2 %s, v%d, %s, s%d offen" % (vp(vU + 2 * j), vOFFU, s4(SRD_IN), sSO + j) for j in range(4)]
    b0 = kgen_batch(0)
    b1 = kgen_batch(1)
    n = len(b0)
    pos0 = {int(n * cfg.get("u0", 0.7)): 0}
    pos1 = {int(n * 0.05): 1, int(n * 0.35): 2, int(n * 0.65): 3}
    for i, t in enumerate(b0):
        if i in pos0:
            a.I(uload[pos0[i]])
        a.I(t)
    kgen_mfma(a, True)
    for i, t in enumerate(b1):
        if i in pos1:
            a.I(uload[pos1[i]])
        a.I(t)
    kgen_mfma(a, False)
    for _ in range(cfg.get("rep_kgen", 0)):
        for t in b0:
            a.I(t)
        kgen_mfma(a, True)
        for t in b1:
            a.I(t)
        kgen_mfma(a, False)
    stamp(a, 2)
    a.I("v_lshlrev_b32 v2, 3, v0")
    a.I("v_add_u32 v2, %d, v2" % (RAW_OFF + 32))
    a.I("s_waitcnt vmcnt(0)")
    for j in range(4):
        a.I("ds_write_b64 v2, %s offset:%d" % (vp(vU + 2 * j), 4096 * j))
    a.I("s_cmp_eq_u32 s%d, 0" % sHB)
    a.I("s_cbranch_scc1 L_A_lo")
    a.I("s_mul_i32 s3, s%d, 3072" % sCH)
    a.I("s_add_u32 s3, s3, %d" % RED_OFF)
    a.I("v_lshl_add_u32 v2, v1, 4, s3")
    for k in range(3):
        a.I("ds_write_b128 v2, %s offset:%d" % (v4(vACC + 4 * k), 1024 * k))
    a.I("v_and_b32 v4, 3, v1")
    a.I("v_bfe_u32 v5, v1, 2, 2")
    a.I("v_lshrrev_b32 v6, 4, v1")
    a.I("v_lshlrev_b32 v7, 2, v4")
    a.I("v_add_u32 v7, v7, v5")
    a.I("v_lshl_add_u32 v7, v6, 4, v7")
    a.I("v_subrev_u32 v7, s%d, v7" % sCH)
    a.I("v_lshlrev_b32 v7, 3, v7")
    a.I("v_add_u32 v7, %d, v7" % (RAW_OFF + 32))
    a.I("v_lshl_add_u32 v5, v6, 2, v5")
    a.I("v_lshlrev_b32 v5, 3, v5")
    a.I("v_mul_u32_u24 v4, %d, v4" % TS)
    a.I("v_add_u32 v5, v5, v4")
    a.I("s_mul_i32 s3, s%d, %d" % (sCH, CS))
    a.I("s_add_u32 s3, s3, %d" % (T_OFF + 32))
    a.I("v_add_u32 v5, s3, v5")
    a.I("s_waitcnt lgkmcnt(0)")
    a.I("s_barrier")
    stamp(a, 3)
    q = LdsQueue(a)
    D = 7
    rd = {}
    for blk in range(32 + D):
        if blk < 32:
            rd[blk] = q.op("ds_read_b64_tr_b16 %s, v7 offset:%d" % (vp(vOP + 2 * (blk % 8)), 512 * blk))
        w = blk - D
        if w >= 0:
            q.wait_for(rd[w])
            q.op("ds_write_b64 v5, %s offset:%d" % (vp(vOP + 2 * (w % 8)), 128 * w))
    a.I("s_cmp_lg_u32 s%d, 4" % sW)
    a.I("s_cbranch_scc1 L_A_t0")
    zero_T_pads(a, vZQ, 4, 5)
    a.label("L_A_t0")
    a.I("s_waitcnt lgkmcnt(0)")
    a.I("s_barrier")
    stamp(a, 4)
    if cfg["dump"]:
        dump_lds(a)
    a.I("s_branch L_HELP")
    a.label("L_A_lo")
    a.I("s_mul_i32 s3, s%d, 3072" % sCH)
    a.I("s_add_u32 s3, s3, %d" % RED_OFF)
    a.I("v_lshl_add_u32 v2, v1, 4, s3")
    a.I("s_mul_i32 s3, s%d, %d" % (sCH, RS))
    a.I("s_add_u32 s3, s3, %d" % (R_OFF + 4080 - 2 * 1792))
    a.I("v_lshlrev_b32 v4, 4, v1")
    a.I("v_sub_u32 v4, s3, v4")
    a.I("v_and_b32 v5, 31, v1")
    a.I("v_lshlrev_b32 v5, 4, v5")
    a.I("v_lshrrev_b32 v6, 5, v1")
    a.I("v_lshl_add_u32 v5, v6, 3, v5")
    a.I("s_add_u32 s3, s3, %d" % (2 * 1792 + 8))
    a.I("v_sub_u32 v5, s3, v5")
    a.I("v_cmp_eq_u32 vcc, 0, v1")
    a.I("v_mov_b32 v6, s%d" % sT3)
    a.I("v_cndmask_b32 v6, 0, v6, vcc")
    a.I("s_waitcnt lgkmcnt(0)")
    a.I("s_barrier")
    stamp(a, 3)
    P = vOP
    for k in range(3):
        a.I("ds_read_b128 %s, v2 offset:%d" % (v4(P + 4 * k), 1024 * k))
    A_ = vACC
    a.I("v_add_f32 v%d, v%d, v6" % (A_, A_))
    for k in range(3):
        a.I("s_waitcnt lgkmcnt(%d)" % (2 - k))
        for h in range(2):
            r = 4 * k + 2 * h
            a.I("v_pk_add_f32 %s, %s, %s" % (vp(A_ + r), vp(A_ + r), vp(P + r)))
    N4, N8, N10, N11 = vOP + 12, vOP + 13, vOP + 14, vOP + 15
    X = vOP + 16
    O = vOP + 24
    dpp = "row_mask:0xf bank_mask:0xf"
    a.I("v_cvt_pk_bf16_f32 v%d, v%d, v%d" % (O, A_ + 3, A_ + 2))
    a.I("v_cvt_pk_bf16_f32 v%d, v%d, v%d" % (O + 1, A_ + 1, A_ + 0))
    a.I("ds_write_b64 v5, %s" % vp(O))
    a.I("v_mov_b32_dpp v%d, v%d wave_rol:1 %s" % (N4, A_ + 8, dpp))
    a.I("v_mov_b32_dpp v%d, v%d wave_rol:1 %s" % (N8, A_ + 10, dpp))
    a.I("v_mov_b32_dpp v%d, v%d wave_rol:1 %s" % (N10, A_ + 11, dpp))
    a.I("v_mov_b32_dpp v%d, v%d wave_rol:1 %s" % (N11, A_ + 11, dpp))
    a.I("v_mov_b32_dpp v%d, v%d wave_shl:1 %s" % (N4, A_ + 4, dpp))
    a.I("v_mov_b32_dpp v%d, v%d wave_shl:1 %s" % (N8, A_ + 8, dpp))
    a.I("v_mov_b32_dpp v%d, v%d wave_shl:1 %s" % (N10, A_ + 10, dpp))
    hm, od = sp(sHM), sp(sODD)
    a.I("v_cndmask_b32 v%d, v%d, v%d, %s" % (X + 0, A_ + 7, N4, hm))
    a.I("v_cndmask_b32 v%d, v%d, v%d, %s" % (X + 1, A_ + 6, A_ + 5, hm))
    a.I("v_cndmask_b32 v%d, v%d, v%d, %s" % (X + 2, A_ + 5, A_ + 4, hm))
    a.I("v_cvt_pk_bf16_f32 v%d, v%d, v%d" % (O + 4, N4, X + 0))
    a.I("v_cvt_pk_bf16_f32 v%d, v%d, v%d" % (O + 5, X + 1, X + 1))
    a.I("v_cvt_pk_bf16_f32 v%d, v%d, v%d" % (O + 6, X + 1, X + 2))
    a.I("v_cvt_pk_bf16_f32 v%d, v%d, v%d" % (O + 7, A_ + 4, A_ + 4))
    a.I("ds_write_b128 v4, %s offset:%d" % (v4(O + 4), 2 * (1792 - 256)))
    a.I("v_cndmask_b32 v%d, v%d, v%d, %s" % (X + 3, A_ + 9, N8, hm))
    a.I("v_cndmask_b32 v%d, v%d, v%d, %s" % (X + 4, A_ + 8, N8, od))
    a.I("v_cndmask_b32 v%d, v%d, v%d, %s" % (X + 4, A_ + 9, X + 4, hm))
    a.I("v_cndmask_b32 v%d, v%d, v%d, %s" % (X + 5, A_ + 9, A_ + 8, hm))
    a.I("v_cvt_pk_bf16_f32 v%d, v%d, v%d" % (O + 8, N8, N8))
    a.I("v_cvt_pk_bf16_f32 v%d, v%d, v%d" % (O + 9, X + 3, X + 4))
    a.I("v_cvt_pk_bf16_f32 v%d, v%d, v%d" % (O + 10, X + 5, A_ + 8))
    a.I("v_cvt_pk_bf16_f32 v%d, v%d, v%d" % (O + 11, A_ + 8, A_ + 8))
    a.I("ds_write_b128 v4, %s offset:%d" % (v4(O + 8), 2 * (1792 - 768)))
    for (src, nx, o, base) in ((A_ + 10, N10, O + 12, 1280), (A_ + 11, N11, O + 16, 1792)):
        a.I("v_cndmask_b32 v%d, v%d, v%d, %s" % (X + 6, src, nx, od))
        a.I("v_cvt_pk_bf16_f32 v%d, v%d, v%d" % (o, nx, nx))
        a.I("v_cvt_pk_bf16_f32 v%d, v%d, v%d" % (o + 1, nx, X + 6))
        a.I("v_cvt_pk_bf16_f32 v%d, v%d, v%d" % (o + 2, src, src))
        a.I("v_cvt_pk_bf16_f32 v%d, v%d, v%d" % (o + 3, src, src))
        if base == 1792:
            a.I("s_mov_b32 exec_hi, 0")
        a.I("ds_write_b128 v4, %s offset:%d" % (v4(o), 2 * (1792 - base)))
    a.I("s_mov_b32 exec_hi, -1")
    conv_addr(a)
    a.I("s_waitcnt lgkmcnt(0)")
    a.I("s_barrier")
    stamp(a, 4)
    if cfg["dump"]:
        dump_lds(a)
    a.I("s_branch L_CONV")


vCA, vCB, vCY = 25, 26, 27
ACC1, ACC2 = 64, 32
SET = (96, 160)
vCV = 4


def conv_addr(a):
    a.I("v_and_b32 v2, 15, v1")
    a.I("v_lshrrev_b32 v3, 4, v1")
    a.I("v_sub_u32 v4, 15, v2")
    a.I("v_and_b32 v5, 3, v4")
    a.I("v_mul_u32_u24 v5, %d, v5" % CS)
    a.I("v_lshrrev_b32 v4, 2, v4")
    a.I("v_lshlrev_b32 v4, 3, v4")
    a.I("v_sub_u32 v5, v5, v4")
    a.I("v_lshl_add_u32 v5, v3, 4, v5")
    a.I("s_mul_i32 s3, s%d, %d" % (sCH, TS))
    a.I("s_add_u32 s3, s3, %d" % (T_OFF + 32))
    a.I("v_add_u32 v%d, s3, v5" % vCA)
    a.I("v_lshlrev_b32 v4, 5, v2")
    a.I("v_lshlrev_b32 v5, 4, v3")
    a.I("v_sub_u32 v5, v5, v4")
    a.I("s_mul_i32 s3, s%d, %d" % (sCH, RS))
    a.I("s_add_u32 s3, s3, %d" % (R_OFF + 480))
    a.I("v_add_u32 v%d, s3, v5" % vCB)
    a.I("v_mul_u32_u24 v5, 144, v3")
    a.I("v_lshl_add_u32 v5, v2, 3, v5")
    a.I("s_mul_i32 s3, s%d, %d" % (sCH, YS))
    a.I("s_add_u32 s3, s3, %d" % Y_OFF)
    a.I("v_add_u32 v%d, s3, v5" % vCY)


def gen_conv(a):
    a.label("L_CONV")
    q = LdsQueue(a)
    lag = cfg["lag"]
    p1 = cfg["p1"]
    phases = [list(range(0, p1)), list(range(p1, 8))]
    accof = {}
    for t in phases[0]:
        accof[t] = ACC1 + 4 * t
    for t in phases[1]:
        accof[t] = ACC2 + 4 * (t - p1)

    iters = [(ph, rho) for ph in range(2) for rho in range(8)]

    def units(ph):
        ts = phases[ph]
        hi = max(ts)
        return [(i, d) for i in range(hi + 1) for d in range(hi - i, -1, -1) if (i + d) in ts]

    def load_order(ph):
        seen = []
        for (i, d) in units(ph):
            for o in (("A", i), ("B", d)):
                if o not in seen:
                    seen.append(o)
        return seen

    def reg(k, o):
        return SET[k & 1] + (4 * o[1] if o[0] == "A" else 32 + 4 * o[1])

    def load_instrs(k, o):
        ph, rho = iters[k]
        r = reg(k, o)
        if o[0] == "A":
            off = 64 * rho + 512 * o[1]
            return ["ds_read_b64 %s, v%d offset:%d" % (vp(r), vCA, off),
                    "ds_read_b64 %s, v%d offset:%d" % (vp(r + 2), vCA, off + 8)]
        off = 64 * rho + 512 * (7 - o[1])
        return ["ds_read_b128 %s, v%d offset:%d" % (v4(r), vCB, off)]

    loaded = {}

    def pend(k, ops):
        out = []
        for o in ops:
            ins = load_instrs(k, o)
            for n_, t in enumerate(ins):
                out.append((k, o, t, n_ == len(ins) - 1))
        return out

    def issue(item):
        k, o, t, last = item
        idx = q.op(t)
        if last:
            loaded[(k, o)] = idx

    early = [o for o in load_order(1) if o not in load_order(0)]
    early_items = pend(8, early)
    per = -(-len(early_items) // 6)
    for it in pend(0, load_order(0)):
        issue(it)
    started = set()
    extra = []
    for k, (ph, rho) in enumerate(iters):
        todo = []
        if k + 1 < len(iters):
            nph = iters[k + 1][0]
            ops = load_order(nph)
            if k + 1 == 8:
                ops = [o for o in ops if o not in early]
            todo = pend(k + 1, ops)
        if ph == 0 and 1 <= k <= 6:
            todo += early_items[(k - 1) * per: k * per]
        us = units(ph)
        nm = len(us)
        span = max(1, nm - cfg.get("tailfree%d" % ph, (1 if ph == 0 else 5)))
        done = 0
        for m, (i, d) in enumerate(us):
            j = max(loaded[(k, ("A", i))], loaded[(k, ("B", d))])
            q.wait_for(j, lag)
            t = i + d
            acc = accof[t]
            c = v4(acc) if t in started else "0"
            started.add(t)
            a.I("v_mfma_f32_16x16x32_bf16 %s, %s, %s, %s" % (v4(acc), v4(reg(k, ("A", i))), v4(reg(k, ("B", d))), c))
            want = min(len(todo), -(-len(todo) * (m + 1) // span))
            while done < want:
                issue(todo[done])
                done += 1
            if k == 8 and m >= 2 and extra:
                extra.pop(0)()
        assert done == len(todo)
        if k == 7:
            state = {}
            for n_, t in enumerate(phases[0]):
                def f(t=t, n_=n_):
                    r = vCV + 2 * (n_ % 4)
                    a.I("v_cvt_pk_bf16_f32 v%d, v%d, v%d" % (r, accof[t], accof[t] + 1))
                    a.I("v_cvt_pk_bf16_f32 v%d, v%d, v%d" % (r + 1, accof[t] + 2, accof[t] + 3))
                    state["w"] = q.op("ds_write_b64 v%d, %s offset:%d" % (vCY, vp(r), 576 * t))
                extra.append(f)
            for _ in range(6):
                extra.append(lambda: None)

            def g():
                q.wait_for(state["w"])
                a.I("s_barrier")
                stamp(a, 5)
            extra.append(g)
        if k == 8:
            assert not extra
    for n_, t in enumerate(phases[1]):
        r = vCV + 2 * (n_ % 4)
        a.I("v_cvt_pk_bf16_f32 v%d, v%d, v%d" % (r, accof[t], accof[t] + 1))
        a.I("v_cvt_pk_bf16_f32 v%d, v%d, v%d" % (r + 1, accof[t] + 2, accof[t] + 3))
        q.op("ds_write_b64 v%d, %s offset:%d" % (vCY, vp(r), 576 * t))
    q.drain()
    a.I("s_barrier")
    stamp(a, 6)
    stamp_flush(a)
    a.I("s_endpgm")


vHQ = 16
vHY = 32
vHT = 48
vHR, vHO, vHI = 4, 5, 6


def gen_help(a):
    a.label("L_HELP")
    p1 = cfg["p1"]
    a.I("s_lshl_b32 s3, s%d, 6" % sCH)
    a.I("v_add_u32 v2, s3, v1")
    a.I("s_lshl_b32 s3, s%d, 3" % sGRP)
    a.I("v_mul_u32_u24 v%d, 896, v2" % vHI)
    a.I("v_add_u32 v%d, s3, v%d" % (vHI, vHI))
    a.I("s_mul_i32 s%d, s%d, 896" % (sT0, sISB))
    a.I("s_add_u32 s3, s3, s%d" % sT0)
    a.I("v_mul_u32_u24 v%d, 1792, v2" % vHO)
    a.I("v_add_u32 v%d, s3, v%d" % (vHO, vHO))
    for t in range(8):
        a.I("s_mov_b32 s%d, %d" % (64 + t, t * 256 * 896))
        a.I("s_mov_b32 s%d, %d" % (72 + t, t * 256 * 1792))
    a.I("s_cmp_eq_u32 s%d, 0" % sISB)
    a.I("s_cbranch_scc1 L_H_noq")
    for t in range(8):
        a.I("buffer_load_dwordx2 %s, v%d, %s, s%d offen" % (vp(vHQ + 2 * t), vHI, s4(SRD_IN), 64 + t))
    a.label("L_H_noq")
    a.I("v_bfe_u32 v2, v1, 2, 2")
    a.I("v_mul_u32_u24 v2, %d, v2" % YS)
    a.I("v_and_b32 v3, 3, v1")
    a.I("v_mul_u32_u24 v3, 144, v3")
    a.I("v_add_u32 v2, v2, v3")
    a.I("v_lshrrev_b32 v3, 4, v1")
    a.I("v_lshl_add_u32 v2, v3, 3, v2")
    a.I("s_lshl_b32 s3, s%d, 5" % sCH)
    a.I("s_add_u32 s3, s3, %d" % Y_OFF)
    a.I("v_add_u32 v%d, s3, v2" % vHR)
    for ph, ts in enumerate((list(range(0, p1)), list(range(p1, 8)))):
        a.I("s_barrier")
        stamp(a, 5 + ph)
        for t in ts:
            a.I("ds_read_b64_tr_b16 %s, v%d offset:%d" % (vp(vHY + 2 * t), vHR, 576 * t))
        a.I("s_cmp_eq_u32 s%d, 0" % sISB)
        a.I("s_cbranch_scc1 L_H_a%d" % ph)
        if ph == 0:
            a.I("s_waitcnt vmcnt(%d)" % (8 - p1))
        else:
            a.I("s_waitcnt vmcnt(%d)" % p1)
        for n_, t in enumerate(ts):
            a.I("s_waitcnt lgkmcnt(%d)" % (len(ts) - 1 - n_))
            for h in range(2):
                y, qq = vHY + 2 * t + h, vHQ + 2 * t + h
                T = vHT + 4 * h
                a.I("v_lshlrev_b32 v%d, 16, v%d" % (T, y))
                a.I("v_and_b32 v%d, 0xffff0000, v%d" % (T + 1, y))
                a.I("v_lshlrev_b32 v%d, 16, v%d" % (T + 2, qq))
                a.I("v_and_b32 v%d, 0xffff0000, v%d" % (T + 3, qq))
                a.I("v_pk_mul_f32 %s, %s, %s" % (vp(T), vp(T), vp(T + 2)))
                a.I("v_cvt_pk_bf16_f32 v%d, v%d, v%d" % (y, T, T + 1))
            a.I("buffer_store_dwordx2 %s, v%d, %s, s%d offen %s" % (vp(vHY + 2 * t), vHO, s4(SRD_OUT), 72 + t, cfg["nt_out"]))
        a.I("s_branch L_H_e%d" % ph)
        a.label("L_H_a%d" % ph)
        for n_, t in enumerate(ts):
            a.I("s_waitcnt lgkmcnt(%d)" % (len(ts) - 1 - n_))
            a.I("buffer_store_dwordx2 %s, v%d, %s, s%d offen %s" % (vp(vHY + 2 * t), vHO, s4(SRD_OUT), 72 + t, cfg["nt_out"]))
        a.label("L_H_e%d" % ph)
    if cfg["stamps"]:
        a.I("s_waitcnt vmcnt(0)")
        stamp(a, 7)
        stamp_flush(a)
    a.I("s_endpgm")


sWR = 64
sWU = 72


def build_T_from_global(a, vS):
    a.I("s_cmp_eq_u32 s%d, 0" % sHB)
    a.I("s_cselect_b32 s%d, s%d, 0" % (sT3, sT3))
    a.I("v_cmp_eq_u32 vcc, 0, v1")
    a.I("v_mov_b32 v2, s%d" % sT3)
    a.I("v_cndmask_b32 v2, 0, v2, vcc")
    a.I("v_lshlrev_b32 v3, 16, v%d" % (vS + 2))
    a.I("v_add_f32 v3, v3, v2")
    a.I("v_cvt_pk_bf16_f32 v3, v3, v3")
    a.I("s_mov_b32 s3, 0xffff")
    a.I("v_bfi_b32 v%d, s3, v3, v%d" % (vS + 2, vS + 2))
    a.I("s_mul_i32 s3, s%d, %d" % (sCH, TS))
    a.I("s_lshl_b32 s%d, s%d, 11" % (sT0, sHB))
    a.I("s_add_u32 s3, s3, s%d" % sT0)
    a.I("s_add_u32 s3, s3, %d" % (T_OFF + 32))
    a.I("v_lshl_add_u32 v2, v1, 4, s3")
    W = vS + 12
    for u in range(2):
        d = lambda k: vS + 6 * u + 2 + k
        a.I("ds_write_b128 v2, %s offset:%d" % (v4(d(0)), 1024 * u))
        o = W + 12 * u
        for k in range(4):
            a.I("v_alignbit_b32 v%d, v%d, v%d, 16" % (o + k, d(k), d(k - 1)))
        a.I("ds_write_b128 v2, %s offset:%d" % (v4(o), CS + 1024 * u))
        for k in range(4):
            a.I("v_mov_b32 v%d, v%d" % (o + 4 + k, d(k - 1)))
        a.I("ds_write_b128 v2, %s offset:%d" % (v4(o + 4), 2 * CS + 1024 * u))
        for k in range(4):
            a.I("v_alignbit_b32 v%d, v%d, v%d, 16" % (o + 8 + k, d(k - 1), d(k - 2)))
        a.I("ds_write_b128 v2, %s offset:%d" % (v4(o + 8), 3 * CS + 1024 * u))


def load_T_global(a, vS):
    a.I("s_lshl_b32 s3, s%d, 12" % sC)
    a.I("s_add_u32 s%d, s%d, s3" % (SRD_SK, SSK))
    a.I("s_addc_u32 s%d, s%d, 0" % (SRD_SK + 1, SSK + 1))
    a.I("s_mov_b32 s%d, 4096" % (SRD_SK + 2))
    a.I("s_mov_b32 s%d, 0x20000" % (SRD_SK + 3))
    a.I("s_lshl_b32 s3, s%d, 11" % sHB)
    a.I("v_lshl_add_u32 v2, v1, 4, s3")
    a.I("v_add_u32 v3, -8, v2")
    a.I("v_add_u32 v4, 0x3f8, v2")
    a.I("buffer_load_dwordx4 %s, v2, %s, 0 offen %s" % (v4(vS + 2), s4(SRD_SK), cfg["nt_in"]))
    a.I("buffer_load_dwordx4 %s, v2, %s, 0 offen offset:1024 %s" % (v4(vS + 8), s4(SRD_SK), cfg["nt_in"]))
    a.I("buffer_load_dwordx2 %s, v3, %s, 0 offen %s" % (vp(vS), s4(SRD_SK), cfg["nt_in"]))
    a.I("buffer_load_dwordx2 %s, v4, %s, 0 offen %s" % (vp(vS + 6), s4(SRD_SK), cfg["nt_in"]))


def unpack_weights_uniform(a):
    for c in range(4):
        p, e = c >> 1, c & 1
        for t in range(4):
            src = sWR + 2 * c + (t >> 1)
            dst = sWU + 8 * p + 2 * t + e
            if t & 1:
                a.I("s_and_b32 s%d, s%d, 0xffff0000" % (dst, src))
            else:
                a.I("s_lshl_b32 s%d, s%d, 16" % (dst, src))


def gen_B(a):
    a.label("L_B")
    vS = 64
    vK = 16
    vVv = 32
    a.I("s_lshl_b32 s3, s%d, 5" % sGRP)
    a.I("s_lshr_b32 s%d, s%d, 1" % (sT0, sC))
    a.I("s_lshl_b32 s%d, s%d, 2" % (sT0, sT0))
    a.I("s_waitcnt lgkmcnt(0)")
    a.I("s_load_dwordx8 s[%d:%d], %s, s3" % (sWR, sWR + 7, sp(SHK)))
    a.I("s_load_dword s%d, %s, s%d" % (sT3, sp(SSD), sT0))
    a.I("s_lshl_b32 s%d, s%d, 7" % (sT0, sSUB))
    a.I("s_lshl_b32 s%d, s%d, 4" % (sT1, sW))
    a.I("s_add_u32 s%d, s%d, s%d" % (sT0, sT0, sT1))
    a.I("s_mul_i32 s%d, s%d, 896" % (sT0, sT0))
    a.I("s_lshl_b32 s%d, s%d, 7" % (sT1, sX))
    a.I("s_add_u32 s%d, s%d, s%d" % (sT0, sT0, sT1))
    a.I("v_and_b32 v5, 15, v1")
    a.I("v_mul_u32_u24 v5, 896, v5")
    a.I("v_add_u32 v5, s%d, v5" % sT0)
    a.I("global_load_dword v%d, v5, %s %s" % (vDUMMY, sp(K), cfg["nt_pf"]))
    a.I("global_load_dword v%d, v5, %s %s" % (vDUMMY, sp(V), cfg["nt_pf"]))
    load_T_global(a, vS)
    a.I("global_load_dword v%d, v5, %s %s" % (vDUMMY, sp(Q), cfg["nt_pf"]))
    stamp(a, 0)
    srd(a, SRD_IN, Q, IN_BYTES)
    srd(a, SRD_OUT, OUT, OUT_BYTES)
    srd(a, SRD_K, K, IN_BYTES)
    srd(a, SRD_V, V, IN_BYTES)
    zero_quad(a, 56)
    zero_R_pad(a, 56, 2)
    zero_RAW_front(a, 56, 4)
    zero_T_pads(a, 56, 9, 10)
    a.I("s_lshl_b32 s3, s%d, 3" % sGRP)
    a.I("v_mul_u32_u24 v24, 3584, v0")
    a.I("v_add_u32 v40, s3, v24")
    a.I("s_and_b32 s3, s%d, 1" % sC)
    a.I("s_lshl_b32 s3, s3, 4")
    a.I("s_waitcnt lgkmcnt(0)")
    a.I("s_lshr_b32 s%d, s%d, s3" % (sT3, sT3))
    a.I("s_lshl_b32 s%d, s%d, 16" % (sT3, sT3))
    unpack_weights_uniform(a)
    a.I("s_waitcnt vmcnt(5)")
    stamp(a, 1)
    for j in range(4):
        a.I("buffer_load_dwordx2 %s, v40, %s, 0 offen offset:%d" % (vp(vK + 6 + 2 * j), s4(SRD_K), 896 * j))
    for j in range(4):
        a.I("buffer_load_dwordx2 %s, v40, %s, 0 offen offset:%d" % (vp(vVv + 2 * j), s4(SRD_V), 896 * j))
    a.I("s_waitcnt vmcnt(9)")
    build_T_from_global(a, vS)
    a.I("v_lshlrev_b32 v2, 5, v0")
    a.I("v_add_u32 v2, %d, v2" % (RAW_OFF + 8))
    a.I("s_waitcnt vmcnt(4)")
    a.I("ds_write_b128 v2, %s offset:24" % v4(vK + 6))
    a.I("ds_write_b128 v2, %s offset:40" % v4(vK + 10))
    a.I("s_waitcnt lgkmcnt(0)")
    a.I("s_barrier")
    for j in range(3):
        a.I("ds_read_b64 %s, v2 offset:%d" % (vp(vK + 2 * j), 8 * j))
    a.I("v_lshlrev_b32 v3, 3, v0")
    a.I("v_sub_u32 v3, %d, v3" % (R_OFF + 4088))
    a.I("s_waitcnt vmcnt(0) lgkmcnt(0)")
    stamp(a, 2)
    KU = 100
    VU = 116
    RES = 124
    O = 132
    for p in range(2):
        for r in range(7):
            a.I("v_lshlrev_b32 v%d, 16, v%d" % (KU + 2 * r, vK + 2 * r + p))
            a.I("v_and_b32 v%d, 0xffff0000, v%d" % (KU + 2 * r + 1, vK + 2 * r + p))
        for r in range(4):
            a.I("v_lshlrev_b32 v%d, 16, v%d" % (VU + 2 * r, vVv + 2 * r + p))
            a.I("v_and_b32 v%d, 0xffff0000, v%d" % (VU + 2 * r + 1, vVv + 2 * r + p))
        for r in range(4):
            R_ = RES + 2 * r
            a.I("v_pk_mul_f32 %s, %s, %s" % (vp(R_), vp(KU + 2 * r), sp(sWU + 8 * p + 6)))
            for t in (2, 1, 0):
                a.I("v_pk_fma_f32 %s, %s, %s, %s" % (vp(R_), vp(KU + 2 * (r + 3 - t)), sp(sWU + 8 * p + 2 * t), vp(R_)))
            a.I("v_pk_mul_f32 %s, %s, %s" % (vp(R_), vp(R_), vp(VU + 2 * r)))
        for e in range(2):
            o = O + 4 * p + 2 * e
            a.I("v_cvt_pk_bf16_f32 v%d, v%d, v%d" % (o, RES + 6 + e, RES + 4 + e))
            a.I("v_cvt_pk_bf16_f32 v%d, v%d, v%d" % (o + 1, RES + 2 + e, RES + e))
            a.I("ds_write_b64 v3, %s offset:%d" % (vp(o), (2 * p + e) * RS))
    a.I("s_cmp_eq_u32 s%d, 0" % sHB)
    a.I("s_cbranch_scc0 L_B_h")
    conv_addr(a)
    a.I("s_waitcnt lgkmcnt(0)")
    a.I("s_barrier")
    stamp(a, 4)
    if cfg["dump"]:
        dump_lds(a)
    a.I("s_branch L_CONV")
    a.label("L_B_h")
    a.I("s_waitcnt lgkmcnt(0)")
    a.I("s_barrier")
    stamp(a, 4)
    if cfg["dump"]:
        dump_lds(a)
    a.I("s_branch L_HELP")


HEADER = open("cdna_kernels/%s.s.ref" % NAME).read().split("; Override launch geometry")[0]


def build():
    a = Asm()
    gen_entry(a)
    gen_A(a)
    gen_B(a)
    gen_conv(a)
    gen_help(a)
    a.label("L_end")
    a.I("s_endpgm")
    a.label("L_codeend")
    body = a.finalize()
    txt = HEADER
    txt += "; @launch grid=(256,1,1) block=(512,1,1) lds=%d\n" % LDS_SIZE
    txt += '.amdgcn_target "amdgcn-amd-amdhsa--gfx950"\n.text\n.globl %s_kernel\n.p2align 8\n.type %s_kernel,@function\n%s_kernel:\n' % (NAME, NAME, NAME)
    txt += body
    txt += """.section .rodata,"a"
.p2align 6
.amdhsa_kernel %s_kernel
  .amdhsa_next_free_vgpr %d
  .amdhsa_next_free_sgpr 102
  .amdhsa_accum_offset %d
  .amdhsa_group_segment_fixed_size 0
  .amdhsa_kernarg_size 128
  .amdhsa_user_sgpr_count 2
  .amdhsa_user_sgpr_kernarg_segment_ptr 1
  .amdhsa_system_sgpr_workgroup_id_x 1
  .amdhsa_float_denorm_mode_32 3
.end_amdhsa_kernel
""" % (NAME, NVGPR if not cfg["stamps"] else 232, NVGPR if not cfg["stamps"] else 232)
    return txt, a


if __name__ == "__main__":
    out = sys.argv[1]
    for kv in sys.argv[2:]:
        k, v = kv.split("=", 1)
        try:
            v = json.loads(v)
        except Exception:
            pass
        cfg[k] = v
    txt, a = build()
    open(out, "w").write(txt)
    print("instructions:", a.count(), "auto nops:", a.nops)
```

```python
import sys
import json
from asmgen import Asm, LdsQueue

NAME = "concat_heads__ssm_conv_s4d__ssm_conv_h3__prompt"

cfg = dict(
    stamps=0,
    dump=None,
    nt_in="nt",
    nt_pf="nt",
    nt_out="",
    codepf=1,
    lag=8,
    p1=4,
)

CS = 4160
TS = 4 * CS + 32
T_OFF = 0
YS = 4672
Y_OFF = 4 * TS
ROWB = 2064
MSW = 28
RAW_OFF = 56 * ROWB
RS = 4576
R_OFF = RAW_OFF + 16416
RED_OFF = R_OFF + 4 * RS
LDS_SIZE = RED_OFF + 4 * 3072
IN_BYTES = 2048 * 896
OUT_BYTES = 2048 * 1792

sX, sSUB, sGRP, sW = 4, 5, 6, 7
U, LAR, AIM, CR, CI, LDT, DSK, Q = 8, 10, 12, 14, 16, 18, 20, 22
K, V, SHK, SSK, SSD, OUT, DBG, WS = 24, 26, 28, 30, 32, 34, 36, 38
sPC = 40
sT0, sT1 = 42, 43
SRD_OUT, SRD_IN, SRD_K, SRD_V, SRD_SK = 44, 48, 52, 56, 60
sCH, sHB, sC, sT2, sT3, sT4, sISB = 88, 89, 90, 91, 92, 93, 94
sST = 96
vSTAMP = 224
vDUMMY = 225
NVGPR = 232


def sp(n):
    return "s[%d:%d]" % (n, n + 1)


def s4(n):
    return "s[%d:%d]" % (n, n + 3)


def vp(n):
    assert n % 2 == 0
    return "v[%d:%d]" % (n, n + 1)


def v4(n):
    assert n % 2 == 0
    return "v[%d:%d]" % (n, n + 3)


def stamp(a, idx):
    if cfg["stamps"]:
        a.I("s_memrealtime %s" % sp(sST))
        a.I("s_waitcnt lgkmcnt(0)")
        a.I("v_writelane_b32 v%d, s%d, %d" % (vSTAMP, sST, idx))


def stamp_flush(a):
    if cfg["stamps"]:
        a.I("s_lshl_b32 s%d, s2, 11" % sT0)
        a.I("s_lshl_b32 s%d, s%d, 8" % (sT1, sW))
        a.I("s_add_u32 s%d, s%d, s%d" % (sT0, sT0, sT1))
        a.I("s_add_u32 s%d, s%d, 0x1000000" % (sT0, sT0))
        a.I("v_lshl_add_u32 v2, v1, 2, s%d" % sT0)
        if cfg["stamps"] == 3:
            lab = "L_amp%d" % len(a.items)
            a.I("s_lshl_b32 s%d, s%d, 8" % (sT1, sW))
            a.I("s_or_b32 s%d, s2, s%d" % (sT0, sT1))
            a.I("s_cmp_eq_u32 s%d, %d" % (sT0, 0x400 + cfg["amp_wg"]))
            a.I("s_cbranch_scc0 %s" % lab)
            a.I("v_readlane_b32 s%d, v%d, %d" % (sT0, vSTAMP, cfg["amp_from"]))
            a.I("v_readlane_b32 s%d, v%d, %d" % (sT1, vSTAMP, cfg["amp_to"]))
            a.I("s_nop 4")
            a.I("s_sub_u32 s%d, s%d, s%d" % (sT0, sT1, sT0))
            a.I("s_mul_i32 s%d, s%d, 10" % (sT0, sT0))
            a.I("s_memrealtime %s" % sp(sST))
            a.I("s_waitcnt lgkmcnt(0)")
            a.I("s_mov_b32 s%d, s%d" % (sT1, sST))
            a.label(lab + "l")
            a.I("s_sleep 2")
            a.I("s_memrealtime %s" % sp(sST))
            a.I("s_waitcnt lgkmcnt(0)")
            a.I("s_sub_u32 s3, s%d, s%d" % (sST, sT1))
            a.I("s_cmp_lt_u32 s3, s%d" % sT0)
            a.I("s_cbranch_scc1 %sl" % lab)
            a.label(lab)
        elif cfg["stamps"] == 2:
            lab = "L_nodbg%d" % len(a.items)
            a.I("s_and_b32 s%d, s2, 0xfffffff7" % sT0)
            a.I("s_lshl_b32 s%d, s%d, 8" % (sT1, sW))
            a.I("s_or_b32 s%d, s%d, s%d" % (sT0, sT0, sT1))
            a.I("s_cmp_eq_u32 s%d, 0x400" % sT0)
            a.I("s_cbranch_scc0 %s" % lab)
            a.I("s_lshl_b32 s%d, s2, 2" % sT0)
            a.I("v_lshl_add_u32 v2, v1, 2, s%d" % sT0)
            a.I("s_mov_b32 exec_lo, 0xff")
            a.I("s_mov_b32 exec_hi, 0")
            a.I("global_store_dword v2, v%d, %s" % (vSTAMP, sp(DBG)))
            a.label(lab)
        else:
            a.I("global_store_dword v2, v%d, %s" % (vSTAMP, sp(WS)))


def srd(a, dst, ptr, nbytes):
    a.I("s_mov_b32 s%d, s%d" % (dst, ptr))
    a.I("s_mov_b32 s%d, s%d" % (dst + 1, ptr + 1))
    a.I("s_mov_b32 s%d, %d" % (dst + 2, nbytes))
    a.I("s_mov_b32 s%d, 0x20000" % (dst + 3))


def dump_lds(a):
    a.I("s_mul_i32 s%d, s2, 163840" % sT0)
    a.I("v_lshlrev_b32 v2, 4, v0")
    a.I("v_add_u32 v3, s%d, v2" % sT0)
    for j in range(LDS_SIZE // 8192 + 1):
        a.I("ds_read_b128 v[4:7], v2")
        a.I("s_waitcnt lgkmcnt(0)")
        a.I("global_store_dwordx4 v3, v[4:7], %s" % sp(WS))
        a.I("s_waitcnt vmcnt(0)")
        a.I("v_add_u32 v2, 8192, v2")
        a.I("v_add_u32 v3, 8192, v3")
    a.I("s_barrier")


def gen_entry(a):
    a.I("s_load_dwordx16 s[8:23], s[0:1], 0")
    a.I("s_load_dwordx16 s[24:39], s[0:1], 64")
    a.I("s_cmp_ge_u32 s2, 256")
    a.I("s_cbranch_scc1 L_end")
    a.I("s_and_b32 s%d, s2, 7" % sX)
    a.I("s_cmp_eq_u32 s%d, 7" % sX)
    a.I("s_cbranch_scc1 L_end")
    if cfg["codepf"]:
        a.I("s_getpc_b64 %s" % sp(sPC))
        a.label("L_pc")
        a.I("v_lshlrev_b32 v2, 7, v0")
        a.I("v_min_u32 v2, L_codeend-L_pc-4, v2")
        a.I("global_load_dword v%d, v2, %s" % (vDUMMY, sp(sPC)))
    if cfg["stamps"]:
        a.I("v_mov_b32 v%d, 0" % vSTAMP)
    a.I("v_lshrrev_b32 v2, 6, v0")
    a.I("v_and_b32 v1, 63, v0")
    a.I("v_readfirstlane_b32 s%d, v2" % sW)
    a.I("s_lshr_b32 s3, s2, 3")
    a.I("s_lshr_b32 s%d, s3, 1" % sSUB)
    a.I("s_lshl_b32 s%d, s%d, 4" % (sGRP, sX))
    a.I("s_add_u32 s%d, s%d, s%d" % (sGRP, sGRP, sSUB))
    a.I("s_and_b32 s%d, s3, 1" % sISB)
    a.I("s_and_b32 s%d, s%d, 3" % (sCH, sW))
    a.I("s_lshr_b32 s%d, s%d, 2" % (sHB, sW))
    a.I("s_lshl_b32 s%d, s%d, 2" % (sC, sGRP))
    a.I("s_add_u32 s%d, s%d, s%d" % (sC, sC, sCH))
    a.I("s_cmp_eq_u32 s%d, 1" % sISB)
    a.I("s_cbranch_scc1 L_B")


def zero_quad(a, q):
    for i in range(4):
        a.I("v_mov_b32 v%d, 0" % (q + i))


def zero_R_pad(a, zq, tmp):
    a.I("s_mul_i32 s%d, s%d, %d" % (sT0, sCH, RS))
    a.I("s_add_u32 s%d, s%d, %d" % (sT0, sT0, R_OFF + 4096))
    a.I("v_min_u32 v%d, 29, v1" % tmp)
    a.I("v_lshl_add_u32 v%d, v%d, 4, s%d" % (tmp, tmp, sT0))
    a.I("ds_write_b128 v%d, %s" % (tmp, v4(zq)))


def zero_RAW_front(a, zq, tmp):
    a.I("v_and_b32 v%d, 1, v1" % tmp)
    a.I("v_lshlrev_b32 v%d, 4, v%d" % (tmp, tmp))
    a.I("v_add_u32 v%d, %d, v%d" % (tmp, RAW_OFF, tmp))
    a.I("ds_write_b128 v%d, %s" % (tmp, v4(zq)))


def zero_T_pads(a, zq, t0, t1):
    a.I("v_bfe_u32 v%d, v1, 3, 2" % t0)
    a.I("v_mul_u32_u24 v%d, %d, v%d" % (t0, TS, t0))
    a.I("v_bfe_u32 v%d, v1, 1, 2" % t1)
    a.I("v_mul_u32_u24 v%d, %d, v%d" % (t1, CS, t1))
    a.I("v_add_u32 v%d, v%d, v%d" % (t0, t0, t1))
    a.I("v_and_b32 v%d, 1, v1" % t1)
    a.I("v_lshl_add_u32 v%d, v%d, 4, v%d" % (t0, t1, t0))
    a.I("ds_write_b128 v%d, %s offset:%d" % (t0, v4(zq), T_OFF))


vU = 8
vP = 16
vAB = 20
v2DT = 22
vOFFU = 24
vAA = 25
vZ, vC, vV, vW, vG, vXc, vQ, vT, vT2 = 28, 30, 32, 34, 36, 38, 40, 42, 44
vTMP = 46
vO = 52
vZQ = 56
vACC = 64
vOP = 80
sLHI, sLLO, sLN2 = 64, 65, 66
s8, s256 = 68, 70
sHM, sODD = 72, 74
sSO = 76
sM0 = 80


class KG:
    def __init__(self, a):
        self.a = a
        self.k = 0

    def cmul(self, D, X, Y, T=vT):
        a = self.a
        a.I("v_pk_mul_f32 %s, %s, %s op_sel:[1,1] op_sel_hi:[1,0] neg_lo:[1,0]" % (vp(T), vp(X), vp(Y)))
        a.I("v_pk_fma_f32 %s, %s, %s, %s op_sel_hi:[0,1,1]" % (vp(D), vp(X), vp(Y), vp(T)))

    def out(self, row, X, neg):
        a = self.a
        r = vO + (self.k & 3)
        self.k += 1
        a.I("v_cvt_pk_bf16_f32 v%d, v%d, %sv%d" % (r, X, "-" if neg else "", X + 1))
        if row == 0:
            a.I("s_mov_b32 m0, s%d" % sM0)
        if row == MSW:
            a.I("s_mov_b32 m0, s%d" % (sM0 + 1))
        a.I("ds_write_addtid_b32 v%d offset:%d" % (r, (row - (MSW if row >= MSW else 0)) * ROWB))

    def anchor(self, P, Zs):
        a = self.a
        a.I("v_fract_f32 v%d, v%d" % (vTMP + 1, Zs + 1))
        a.I("v_exp_f32 v%d, v%d" % (vTMP, Zs))
        a.I("v_cos_f32 v%d, v%d" % (P, vTMP + 1))
        a.I("v_sin_f32 v%d, v%d" % (P + 1, vTMP + 1))
        a.I("v_pk_mul_f32 %s, %s, %s op_sel_hi:[1,0]" % (vp(P), vp(P), vp(vTMP)))


def exp_bf16(a, dst, x, t0, t1):
    a.I("v_mul_f32 v%d, s%d, v%d" % (t0, sLHI, x))
    a.I("v_fma_f32 v%d, v%d, s%d, -v%d" % (t1, x, sLHI, t0))
    a.I("v_exp_f32 v%d, v%d" % (t0, t0))
    a.I("v_fmac_f32 v%d, s%d, v%d" % (t1, sLLO, x))
    a.I("v_mul_f32 v%d, s%d, v%d" % (t1, sLN2, t1))
    a.I("v_fmac_f32 v%d, v%d, v%d" % (t0, t0, t1))
    a.I("v_cvt_pk_bf16_f32 v%d, v%d, v%d" % (t0, t0, t0))
    a.I("v_lshlrev_b32 v%d, 16, v%d" % (dst, t0))


def kgen_batch(beta):
    b = Asm()
    kg = KG(b)

    def unpack(dst, src):
        if beta == 0:
            b.I("v_lshlrev_b32 v%d, 16, v%d" % (dst, src))
        else:
            b.I("v_and_b32 v%d, 0xffff0000, v%d" % (dst, src))

    unpack(vTMP + 2, vP + 0)
    unpack(vZ + 1, vP + 1)
    unpack(vC, vP + 2)
    unpack(vC + 1, vP + 3)
    exp_bf16(b, vZ, vTMP + 2, vTMP + 3, vTMP + 4)
    b.I("v_pk_mul_f32 %s, %s, %s op_sel_hi:[1,0]" % (vp(vC), vp(vC), vp(v2DT)))
    b.I("v_pk_mul_f32 %s, %s, %s" % (vp(vZ), vp(vZ), vp(vAB)))
    kg.out(0, vC, True)
    b.I("v_pk_mul_f32 %s, %s, %s op_sel_hi:[1,0]" % (vp(vT2), vp(vZ), sp(s256)))
    kg.anchor(vG, vT2)
    b.I("v_pk_mul_f32 %s, %s, %s op_sel_hi:[1,0]" % (vp(vT2), vp(vZ), sp(s8)))
    kg.anchor(vW, vT2)
    kg.anchor(vV, vZ)
    src = vC
    for row in (8, 12, 16, 20, 18, 22, 19, 23):
        kg.cmul(vQ, src, vG)
        kg.out(row, vQ, True)
        src = vQ
    src = vC
    for r in range(1, 8):
        kg.cmul(vXc, src, vV)
        kg.out(r, vXc, True)
        src = vXc
        if r == 2:
            kg.cmul(vQ, vXc, vG)
            kg.out(9, vQ, True)
        if r == 4:
            kg.cmul(vQ, vXc, vG)
            kg.out(10, vQ, True)
            kg.cmul(vQ, vQ, vG)
            kg.out(13, vQ, True)
            kg.cmul(vQ, vQ, vG)
            kg.out(17, vQ, True)
        if r == 6:
            kg.cmul(vQ, vXc, vG)
            kg.out(11, vQ, True)
    kg.out(25, vW, False)
    src = vW
    for j in range(2, 32):
        kg.cmul(vXc, src, vW)
        kg.out(24 + j, vXc, False)
        src = vXc
    return [it.text for it in b.items]


def kgen_mfma(a, first):
    q = LdsQueue(a)
    idx = []
    for s in range(8):
        ia = q.op("ds_read_b128 %s, v%d offset:%d" % (v4(vOP + 8 * s), vAA, 32 * s))
        ib = q.op("ds_read_b128 %s, v%d offset:%d" % (v4(vOP + 8 * s + 4), vAA, 24 * ROWB + 32 * s))
        idx.append(ib)
        if s == 3:
            pass
    for s in range(8):
        q.wait_for(idx[s])
        c = "0" if (first and s == 0) else "v[%d:%d]" % (vACC, vACC + 15)
        a.I("v_mfma_f32_32x32x16_bf16 v[%d:%d], %s, %s, %s" % (vACC, vACC + 15, v4(vOP + 8 * s), v4(vOP + 8 * s + 4), c))


def gen_A(a):
    a.label("L_A")
    a.I("s_lshl_b32 s3, s%d, 9" % sC)
    a.I("s_lshl_b32 s%d, s%d, 8" % (sT0, sHB))
    a.I("s_add_u32 s3, s3, s%d" % sT0)
    a.I("v_lshl_add_u32 v4, v1, 2, s3")
    a.I("s_lshl_b32 s%d, s%d, 7" % (sT0, sSUB))
    a.I("s_lshl_b32 s%d, s%d, 4" % (sT1, sW))
    a.I("s_add_u32 s%d, s%d, s%d" % (sT0, sT0, sT1))
    a.I("s_mul_i32 s%d, s%d, 896" % (sT0, sT0))
    a.I("s_lshl_b32 s%d, s%d, 7" % (sT1, sX))
    a.I("s_add_u32 s%d, s%d, s%d" % (sT0, sT0, sT1))
    a.I("v_and_b32 v5, 15, v1")
    a.I("v_mul_u32_u24 v5, 896, v5")
    a.I("v_add_u32 v5, s%d, v5" % sT0)
    a.I("s_lshr_b32 s3, s%d, 1" % sC)
    a.I("s_lshl_b32 s3, s3, 2")
    a.I("s_waitcnt lgkmcnt(0)")
    for i, p in enumerate((LAR, AIM, CR, CI)):
        a.I("global_load_dword v%d, v4, %s %s" % (vP + i, sp(p), cfg["nt_in"]))
    a.I("s_load_dword s%d, %s, s3" % (sT2, sp(LDT)))
    a.I("s_load_dword s%d, %s, s3" % (sT3, sp(DSK)))
    a.I("global_load_dword v%d, v5, %s %s" % (vDUMMY, sp(U), cfg["nt_pf"]))
    stamp(a, 0)
    srd(a, SRD_IN, U, IN_BYTES)
    srd(a, SRD_OUT, OUT, OUT_BYTES)
    for j in range(4):
        a.I("s_mov_b32 s%d, %d" % (sSO + j, j * 512 * 896))
    a.I("s_lshl_b32 s3, s%d, 3" % sGRP)
    a.I("v_mul_u32_u24 v%d, 896, v0" % vOFFU)
    a.I("v_add_u32 v%d, s3, v%d" % (vOFFU, vOFFU))
    a.I("s_mov_b32 s%d, 0x3fb8aa3b" % sLHI)
    a.I("s_mov_b32 s%d, 0x32a57060" % sLLO)
    a.I("s_mov_b32 s%d, 0x3f317218" % sLN2)
    a.I("s_mov_b32 s%d, 0x41000000" % s8)
    a.I("s_mov_b32 s%d, 0x43800000" % s256)
    a.I("s_mov_b32 s%d, 0" % sHM)
    a.I("s_mov_b32 s%d, -1" % (sHM + 1))
    a.I("s_mov_b32 s%d, 0xaaaaaaaa" % sODD)
    a.I("s_mov_b32 s%d, 0xaaaaaaaa" % (sODD + 1))
    a.I("s_lshl_b32 s3, s%d, 8" % sW)
    a.I("s_mov_b32 s%d, s3" % sM0)
    a.I("s_add_u32 s%d, s3, %d" % (sM0 + 1, MSW * ROWB))
    a.I("s_mov_b32 m0, s3")
    a.I("v_and_b32 v2, 31, v1")
    a.I("v_mul_u32_u24 v2, %d, v2" % ROWB)
    a.I("v_lshrrev_b32 v4, 5, v1")
    a.I("v_lshl_add_u32 v2, v4, 4, v2")
    a.I("v_add_u32 v%d, s3, v2" % vAA)
    zero_quad(a, vZQ)
    zero_R_pad(a, vZQ, 2)
    zero_RAW_front(a, vZQ, 4)
    a.I("v_mov_b32 v%d, 0x3f80" % vO)
    a.I("ds_write_addtid_b32 v%d offset:%d" % (vO, 24 * ROWB))
    a.I("s_and_b32 s3, s%d, 1" % sC)
    a.I("s_lshl_b32 s3, s3, 4")
    a.I("s_waitcnt lgkmcnt(0)")
    a.I("s_lshr_b32 s%d, s%d, s3" % (sT2, sT2))
    a.I("s_lshl_b32 s%d, s%d, 16" % (sT2, sT2))
    a.I("s_lshr_b32 s%d, s%d, s3" % (sT3, sT3))
    a.I("s_lshl_b32 s%d, s%d, 16" % (sT3, sT3))
    a.I("v_mov_b32 v%d, s%d" % (vTMP + 2, sT2))
    exp_bf16(a, vTMP + 5, vTMP + 2, vTMP + 3, vTMP + 4)
    a.I("v_mul_f32 v%d, 0xbfb8aa3b, v%d" % (vAB, vTMP + 5))
    a.I("v_mul_f32 v%d, 0.15915494, v%d" % (vAB + 1, vTMP + 5))
    a.I("v_add_f32 v%d, v%d, v%d" % (v2DT, vTMP + 5, vTMP + 5))
    a.I("s_waitcnt vmcnt(1)")
    stamp(a, 1)
    uload = ["buffer_load_dwordx2 %s, v%d, %s, s%d offen" % (vp(vU + 2 * j), vOFFU, s4(SRD_IN), sSO + j) for j in range(4)]
    b0 = kgen_batch(0)
    b1 = kgen_batch(1)
    n = len(b0)
    pos0 = {int(n * cfg.get("u0", 0.7)): 0}
    pos1 = {int(n * 0.05): 1, int(n * 0.35): 2, int(n * 0.65): 3}
    for i, t in enumerate(b0):
        if i in pos0:
            a.I(uload[pos0[i]])
        a.I(t)
    kgen_mfma(a, True)
    for i, t in enumerate(b1):
        if i in pos1:
            a.I(uload[pos1[i]])
        a.I(t)
    kgen_mfma(a, False)
    for _ in range(cfg.get("rep_kgen", 0)):
        for t in b0:
            a.I(t)
        kgen_mfma(a, True)
        for t in b1:
            a.I(t)
        kgen_mfma(a, False)
    stamp(a, 2)
    a.I("v_lshlrev_b32 v2, 3, v0")
    a.I("v_add_u32 v2, %d, v2" % (RAW_OFF + 32))
    a.I("s_waitcnt vmcnt(0)")
    for j in range(4):
        a.I("ds_write_b64 v2, %s offset:%d" % (vp(vU + 2 * j), 4096 * j))
    a.I("s_cmp_eq_u32 s%d, 0" % sHB)
    a.I("s_cbranch_scc1 L_A_lo")
    a.I("s_mul_i32 s3, s%d, 3072" % sCH)
    a.I("s_add_u32 s3, s3, %d" % RED_OFF)
    a.I("v_lshl_add_u32 v2, v1, 4, s3")
    for k in range(3):
        a.I("ds_write_b128 v2, %s offset:%d" % (v4(vACC + 4 * k), 1024 * k))
    a.I("v_and_b32 v4, 3, v1")
    a.I("v_bfe_u32 v5, v1, 2, 2")
    a.I("v_lshrrev_b32 v6, 4, v1")
    a.I("v_lshlrev_b32 v7, 2, v4")
    a.I("v_add_u32 v7, v7, v5")
    a.I("v_lshl_add_u32 v7, v6, 4, v7")
    a.I("v_subrev_u32 v7, s%d, v7" % sCH)
    a.I("v_lshlrev_b32 v7, 3, v7")
    a.I("v_add_u32 v7, %d, v7" % (RAW_OFF + 32))
    a.I("v_lshl_add_u32 v5, v6, 2, v5")
    a.I("v_lshlrev_b32 v5, 3, v5")
    a.I("v_mul_u32_u24 v4, %d, v4" % TS)
    a.I("v_add_u32 v5, v5, v4")
    a.I("s_mul_i32 s3, s%d, %d" % (sCH, CS))
    a.I("s_add_u32 s3, s3, %d" % (T_OFF + 32))
    a.I("v_add_u32 v5, s3, v5")
    a.I("s_waitcnt lgkmcnt(0)")
    a.I("s_barrier")
    stamp(a, 3)
    q = LdsQueue(a)
    D = 7
    rd = {}
    for blk in range(32 + D):
        if blk < 32:
            rd[blk] = q.op("ds_read_b64_tr_b16 %s, v7 offset:%d" % (vp(vOP + 2 * (blk % 8)), 512 * blk))
        w = blk - D
        if w >= 0:
            q.wait_for(rd[w])
            q.op("ds_write_b64 v5, %s offset:%d" % (vp(vOP + 2 * (w % 8)), 128 * w))
    a.I("s_cmp_lg_u32 s%d, 4" % sW)
    a.I("s_cbranch_scc1 L_A_t0")
    zero_T_pads(a, vZQ, 4, 5)
    a.label("L_A_t0")
    a.I("s_waitcnt lgkmcnt(0)")
    a.I("s_barrier")
    stamp(a, 4)
    if cfg["dump"]:
        dump_lds(a)
    a.I("s_branch L_HELP")
    a.label("L_A_lo")
    a.I("s_mul_i32 s3, s%d, 3072" % sCH)
    a.I("s_add_u32 s3, s3, %d" % RED_OFF)
    a.I("v_lshl_add_u32 v2, v1, 4, s3")
    a.I("s_mul_i32 s3, s%d, %d" % (sCH, RS))
    a.I("s_add_u32 s3, s3, %d" % (R_OFF + 4080 - 2 * 1792))
    a.I("v_lshlrev_b32 v4, 4, v1")
    a.I("v_sub_u32 v4, s3, v4")
    a.I("v_and_b32 v5, 31, v1")
    a.I("v_lshlrev_b32 v5, 4, v5")
    a.I("v_lshrrev_b32 v6, 5, v1")
    a.I("v_lshl_add_u32 v5, v6, 3, v5")
    a.I("s_add_u32 s3, s3, %d" % (2 * 1792 + 8))
    a.I("v_sub_u32 v5, s3, v5")
    a.I("v_cmp_eq_u32 vcc, 0, v1")
    a.I("v_mov_b32 v6, s%d" % sT3)
    a.I("v_cndmask_b32 v6, 0, v6, vcc")
    a.I("s_waitcnt lgkmcnt(0)")
    a.I("s_barrier")
    stamp(a, 3)
    P = vOP
    for k in range(3):
        a.I("ds_read_b128 %s, v2 offset:%d" % (v4(P + 4 * k), 1024 * k))
    A_ = vACC
    a.I("v_add_f32 v%d, v%d, v6" % (A_, A_))
    for k in range(3):
        a.I("s_waitcnt lgkmcnt(%d)" % (2 - k))
        for h in range(2):
            r = 4 * k + 2 * h
            a.I("v_pk_add_f32 %s, %s, %s" % (vp(A_ + r), vp(A_ + r), vp(P + r)))
    N4, N8, N10, N11 = vOP + 12, vOP + 13, vOP + 14, vOP + 15
    X = vOP + 16
    O = vOP + 24
    dpp = "row_mask:0xf bank_mask:0xf"
    a.I("v_cvt_pk_bf16_f32 v%d, v%d, v%d" % (O, A_ + 3, A_ + 2))
    a.I("v_cvt_pk_bf16_f32 v%d, v%d, v%d" % (O + 1, A_ + 1, A_ + 0))
    a.I("ds_write_b64 v5, %s" % vp(O))
    a.I("v_mov_b32_dpp v%d, v%d wave_rol:1 %s" % (N4, A_ + 8, dpp))
    a.I("v_mov_b32_dpp v%d, v%d wave_rol:1 %s" % (N8, A_ + 10, dpp))
    a.I("v_mov_b32_dpp v%d, v%d wave_rol:1 %s" % (N10, A_ + 11, dpp))
    a.I("v_mov_b32_dpp v%d, v%d wave_rol:1 %s" % (N11, A_ + 11, dpp))
    a.I("v_mov_b32_dpp v%d, v%d wave_shl:1 %s" % (N4, A_ + 4, dpp))
    a.I("v_mov_b32_dpp v%d, v%d wave_shl:1 %s" % (N8, A_ + 8, dpp))
    a.I("v_mov_b32_dpp v%d, v%d wave_shl:1 %s" % (N10, A_ + 10, dpp))
    hm, od = sp(sHM), sp(sODD)
    a.I("v_cndmask_b32 v%d, v%d, v%d, %s" % (X + 0, A_ + 7, N4, hm))
    a.I("v_cndmask_b32 v%d, v%d, v%d, %s" % (X + 1, A_ + 6, A_ + 5, hm))
    a.I("v_cndmask_b32 v%d, v%d, v%d, %s" % (X + 2, A_ + 5, A_ + 4, hm))
    a.I("v_cvt_pk_bf16_f32 v%d, v%d, v%d" % (O + 4, N4, X + 0))
    a.I("v_cvt_pk_bf16_f32 v%d, v%d, v%d" % (O + 5, X + 1, X + 1))
    a.I("v_cvt_pk_bf16_f32 v%d, v%d, v%d" % (O + 6, X + 1, X + 2))
    a.I("v_cvt_pk_bf16_f32 v%d, v%d, v%d" % (O + 7, A_ + 4, A_ + 4))
    a.I("ds_write_b128 v4, %s offset:%d" % (v4(O + 4), 2 * (1792 - 256)))
    a.I("v_cndmask_b32 v%d, v%d, v%d, %s" % (X + 3, A_ + 9, N8, hm))
    a.I("v_cndmask_b32 v%d, v%d, v%d, %s" % (X + 4, A_ + 8, N8, od))
    a.I("v_cndmask_b32 v%d, v%d, v%d, %s" % (X + 4, A_ + 9, X + 4, hm))
    a.I("v_cndmask_b32 v%d, v%d, v%d, %s" % (X + 5, A_ + 9, A_ + 8, hm))
    a.I("v_cvt_pk_bf16_f32 v%d, v%d, v%d" % (O + 8, N8, N8))
    a.I("v_cvt_pk_bf16_f32 v%d, v%d, v%d" % (O + 9, X + 3, X + 4))
    a.I("v_cvt_pk_bf16_f32 v%d, v%d, v%d" % (O + 10, X + 5, A_ + 8))
    a.I("v_cvt_pk_bf16_f32 v%d, v%d, v%d" % (O + 11, A_ + 8, A_ + 8))
    a.I("ds_write_b128 v4, %s offset:%d" % (v4(O + 8), 2 * (1792 - 768)))
    for (src, nx, o, base) in ((A_ + 10, N10, O + 12, 1280), (A_ + 11, N11, O + 16, 1792)):
        a.I("v_cndmask_b32 v%d, v%d, v%d, %s" % (X + 6, src, nx, od))
        a.I("v_cvt_pk_bf16_f32 v%d, v%d, v%d" % (o, nx, nx))
        a.I("v_cvt_pk_bf16_f32 v%d, v%d, v%d" % (o + 1, nx, X + 6))
        a.I("v_cvt_pk_bf16_f32 v%d, v%d, v%d" % (o + 2, src, src))
        a.I("v_cvt_pk_bf16_f32 v%d, v%d, v%d" % (o + 3, src, src))
        if base == 1792:
            a.I("s_mov_b32 exec_hi, 0")
        a.I("ds_write_b128 v4, %s offset:%d" % (v4(o), 2 * (1792 - base)))
    a.I("s_mov_b32 exec_hi, -1")
    conv_addr(a)
    a.I("s_waitcnt lgkmcnt(0)")
    a.I("s_barrier")
    stamp(a, 4)
    if cfg["dump"]:
        dump_lds(a)
    a.I("s_branch L_CONV")


vCA, vCB, vCY = 25, 26, 27
ACC1, ACC2 = 64, 32
SET = (96, 160)
vCV = 4


def conv_addr(a):
    a.I("v_and_b32 v2, 15, v1")
    a.I("v_lshrrev_b32 v3, 4, v1")
    a.I("v_sub_u32 v4, 15, v2")
    a.I("v_and_b32 v5, 3, v4")
    a.I("v_mul_u32_u24 v5, %d, v5" % CS)
    a.I("v_lshrrev_b32 v4, 2, v4")
    a.I("v_lshlrev_b32 v4, 3, v4")
    a.I("v_sub_u32 v5, v5, v4")
    a.I("v_lshl_add_u32 v5, v3, 4, v5")
    a.I("s_mul_i32 s3, s%d, %d" % (sCH, TS))
    a.I("s_add_u32 s3, s3, %d" % (T_OFF + 32))
    a.I("v_add_u32 v%d, s3, v5" % vCA)
    a.I("v_lshlrev_b32 v4, 5, v2")
    a.I("v_lshlrev_b32 v5, 4, v3")
    a.I("v_sub_u32 v5, v5, v4")
    a.I("s_mul_i32 s3, s%d, %d" % (sCH, RS))
    a.I("s_add_u32 s3, s3, %d" % (R_OFF + 480))
    a.I("v_add_u32 v%d, s3, v5" % vCB)
    a.I("v_mul_u32_u24 v5, 144, v3")
    a.I("v_lshl_add_u32 v5, v2, 3, v5")
    a.I("s_mul_i32 s3, s%d, %d" % (sCH, YS))
    a.I("s_add_u32 s3, s3, %d" % Y_OFF)
    a.I("v_add_u32 v%d, s3, v5" % vCY)


def gen_conv(a):
    a.label("L_CONV")
    q = LdsQueue(a)
    lag = cfg["lag"]
    p1 = cfg["p1"]
    phases = [list(range(0, p1)), list(range(p1, 8))]
    accof = {}
    for t in phases[0]:
        accof[t] = ACC1 + 4 * t
    for t in phases[1]:
        accof[t] = ACC2 + 4 * (t - p1)

    iters = [(ph, rho) for ph in range(2) for rho in range(8)]

    def units(ph):
        ts = phases[ph]
        hi = max(ts)
        return [(i, d) for i in range(hi + 1) for d in range(hi - i, -1, -1) if (i + d) in ts]

    def load_order(ph):
        seen = []
        for (i, d) in units(ph):
            for o in (("A", i), ("B", d)):
                if o not in seen:
                    seen.append(o)
        return seen

    def reg(k, o):
        return SET[k & 1] + (4 * o[1] if o[0] == "A" else 32 + 4 * o[1])

    def load_instrs(k, o):
        ph, rho = iters[k]
        r = reg(k, o)
        if o[0] == "A":
            off = 64 * rho + 512 * o[1]
            return ["ds_read_b64 %s, v%d offset:%d" % (vp(r), vCA, off),
                    "ds_read_b64 %s, v%d offset:%d" % (vp(r + 2), vCA, off + 8)]
        off = 64 * rho + 512 * (7 - o[1])
        return ["ds_read_b128 %s, v%d offset:%d" % (v4(r), vCB, off)]

    loaded = {}

    def pend(k, ops):
        out = []
        for o in ops:
            ins = load_instrs(k, o)
            for n_, t in enumerate(ins):
                out.append((k, o, t, n_ == len(ins) - 1))
        return out

    def issue(item):
        k, o, t, last = item
        idx = q.op(t)
        if last:
            loaded[(k, o)] = idx

    early = [o for o in load_order(1) if o not in load_order(0)]
    early_items = pend(8, early)
    per = -(-len(early_items) // 6)
    for it in pend(0, load_order(0)):
        issue(it)
    started = set()
    extra = []
    for k, (ph, rho) in enumerate(iters):
        todo = []
        if k + 1 < len(iters):
            nph = iters[k + 1][0]
            ops = load_order(nph)
            if k + 1 == 8:
                ops = [o for o in ops if o not in early]
            todo = pend(k + 1, ops)
        if ph == 0 and 1 <= k <= 6:
            todo += early_items[(k - 1) * per: k * per]
        us = units(ph)
        nm = len(us)
        span = max(1, nm - cfg.get("tailfree%d" % ph, (1 if ph == 0 else 5)))
        done = 0
        for m, (i, d) in enumerate(us):
            j = max(loaded[(k, ("A", i))], loaded[(k, ("B", d))])
            q.wait_for(j, lag)
            t = i + d
            acc = accof[t]
            c = v4(acc) if t in started else "0"
            started.add(t)
            a.I("v_mfma_f32_16x16x32_bf16 %s, %s, %s, %s" % (v4(acc), v4(reg(k, ("A", i))), v4(reg(k, ("B", d))), c))
            want = min(len(todo), -(-len(todo) * (m + 1) // span))
            while done < want:
                issue(todo[done])
                done += 1
            if k == 8 and m >= 2 and extra:
                extra.pop(0)()
        assert done == len(todo)
        if k == 7:
            state = {}
            for n_, t in enumerate(phases[0]):
                def f(t=t, n_=n_):
                    r = vCV + 2 * (n_ % 4)
                    a.I("v_cvt_pk_bf16_f32 v%d, v%d, v%d" % (r, accof[t], accof[t] + 1))
                    a.I("v_cvt_pk_bf16_f32 v%d, v%d, v%d" % (r + 1, accof[t] + 2, accof[t] + 3))
                    state["w"] = q.op("ds_write_b64 v%d, %s offset:%d" % (vCY, vp(r), 576 * t))
                extra.append(f)
            for _ in range(6):
                extra.append(lambda: None)

            def g():
                q.wait_for(state["w"])
                a.I("s_barrier")
                stamp(a, 5)
            extra.append(g)
        if k == 8:
            assert not extra
    for n_, t in enumerate(phases[1]):
        r = vCV + 2 * (n_ % 4)
        a.I("v_cvt_pk_bf16_f32 v%d, v%d, v%d" % (r, accof[t], accof[t] + 1))
        a.I("v_cvt_pk_bf16_f32 v%d, v%d, v%d" % (r + 1, accof[t] + 2, accof[t] + 3))
        q.op("ds_write_b64 v%d, %s offset:%d" % (vCY, vp(r), 576 * t))
    q.drain()
    a.I("s_barrier")
    stamp(a, 6)
    stamp_flush(a)
    a.I("s_endpgm")


vHQ = 16
vHY = 32
vHT = 48
vHR, vHO, vHI = 4, 5, 6


def gen_help(a):
    a.label("L_HELP")
    p1 = cfg["p1"]
    a.I("s_lshl_b32 s3, s%d, 6" % sCH)
    a.I("v_add_u32 v2, s3, v1")
    a.I("s_lshl_b32 s3, s%d, 3" % sGRP)
    a.I("v_mul_u32_u24 v%d, 896, v2" % vHI)
    a.I("v_add_u32 v%d, s3, v%d" % (vHI, vHI))
    a.I("s_mul_i32 s%d, s%d, 896" % (sT0, sISB))
    a.I("s_add_u32 s3, s3, s%d" % sT0)
    a.I("v_mul_u32_u24 v%d, 1792, v2" % vHO)
    a.I("v_add_u32 v%d, s3, v%d" % (vHO, vHO))
    for t in range(8):
        a.I("s_mov_b32 s%d, %d" % (64 + t, t * 256 * 896))
        a.I("s_mov_b32 s%d, %d" % (72 + t, t * 256 * 1792))
    a.I("s_cmp_eq_u32 s%d, 0" % sISB)
    a.I("s_cbranch_scc1 L_H_noq")
    for t in range(8):
        a.I("buffer_load_dwordx2 %s, v%d, %s, s%d offen" % (vp(vHQ + 2 * t), vHI, s4(SRD_IN), 64 + t))
    a.label("L_H_noq")
    a.I("v_bfe_u32 v2, v1, 2, 2")
    a.I("v_mul_u32_u24 v2, %d, v2" % YS)
    a.I("v_and_b32 v3, 3, v1")
    a.I("v_mul_u32_u24 v3, 144, v3")
    a.I("v_add_u32 v2, v2, v3")
    a.I("v_lshrrev_b32 v3, 4, v1")
    a.I("v_lshl_add_u32 v2, v3, 3, v2")
    a.I("s_lshl_b32 s3, s%d, 5" % sCH)
    a.I("s_add_u32 s3, s3, %d" % Y_OFF)
    a.I("v_add_u32 v%d, s3, v2" % vHR)
    for ph, ts in enumerate((list(range(0, p1)), list(range(p1, 8)))):
        a.I("s_barrier")
        stamp(a, 5 + ph)
        for t in ts:
            a.I("ds_read_b64_tr_b16 %s, v%d offset:%d" % (vp(vHY + 2 * t), vHR, 576 * t))
        a.I("s_cmp_eq_u32 s%d, 0" % sISB)
        a.I("s_cbranch_scc1 L_H_a%d" % ph)
        if ph == 0:
            a.I("s_waitcnt vmcnt(%d)" % (8 - p1))
        else:
            a.I("s_waitcnt vmcnt(%d)" % p1)
        for n_, t in enumerate(ts):
            a.I("s_waitcnt lgkmcnt(%d)" % (len(ts) - 1 - n_))
            for h in range(2):
                y, qq = vHY + 2 * t + h, vHQ + 2 * t + h
                T = vHT + 4 * h
                a.I("v_lshlrev_b32 v%d, 16, v%d" % (T, y))
                a.I("v_and_b32 v%d, 0xffff0000, v%d" % (T + 1, y))
                a.I("v_lshlrev_b32 v%d, 16, v%d" % (T + 2, qq))
                a.I("v_and_b32 v%d, 0xffff0000, v%d" % (T + 3, qq))
                a.I("v_pk_mul_f32 %s, %s, %s" % (vp(T), vp(T), vp(T + 2)))
                a.I("v_cvt_pk_bf16_f32 v%d, v%d, v%d" % (y, T, T + 1))
            a.I("buffer_store_dwordx2 %s, v%d, %s, s%d offen %s" % (vp(vHY + 2 * t), vHO, s4(SRD_OUT), 72 + t, cfg["nt_out"]))
        a.I("s_branch L_H_e%d" % ph)
        a.label("L_H_a%d" % ph)
        for n_, t in enumerate(ts):
            a.I("s_waitcnt lgkmcnt(%d)" % (len(ts) - 1 - n_))
            a.I("buffer_store_dwordx2 %s, v%d, %s, s%d offen %s" % (vp(vHY + 2 * t), vHO, s4(SRD_OUT), 72 + t, cfg["nt_out"]))
        a.label("L_H_e%d" % ph)
    if cfg["stamps"]:
        a.I("s_waitcnt vmcnt(0)")
        stamp(a, 7)
        stamp_flush(a)
    a.I("s_endpgm")


sWR = 64
sWU = 72


def build_T_from_global(a, vS):
    a.I("s_cmp_eq_u32 s%d, 0" % sHB)
    a.I("s_cselect_b32 s%d, s%d, 0" % (sT3, sT3))
    a.I("v_cmp_eq_u32 vcc, 0, v1")
    a.I("v_mov_b32 v2, s%d" % sT3)
    a.I("v_cndmask_b32 v2, 0, v2, vcc")
    a.I("v_lshlrev_b32 v3, 16, v%d" % (vS + 2))
    a.I("v_add_f32 v3, v3, v2")
    a.I("v_cvt_pk_bf16_f32 v3, v3, v3")
    a.I("s_mov_b32 s3, 0xffff")
    a.I("v_bfi_b32 v%d, s3, v3, v%d" % (vS + 2, vS + 2))
    a.I("s_mul_i32 s3, s%d, %d" % (sCH, TS))
    a.I("s_lshl_b32 s%d, s%d, 11" % (sT0, sHB))
    a.I("s_add_u32 s3, s3, s%d" % sT0)
    a.I("s_add_u32 s3, s3, %d" % (T_OFF + 32))
    a.I("v_lshl_add_u32 v2, v1, 4, s3")
    W = vS + 12
    for u in range(2):
        d = lambda k: vS + 6 * u + 2 + k
        a.I("ds_write_b128 v2, %s offset:%d" % (v4(d(0)), 1024 * u))
        o = W + 12 * u
        for k in range(4):
            a.I("v_alignbit_b32 v%d, v%d, v%d, 16" % (o + k, d(k), d(k - 1)))
        a.I("ds_write_b128 v2, %s offset:%d" % (v4(o), CS + 1024 * u))
        for k in range(4):
            a.I("v_mov_b32 v%d, v%d" % (o + 4 + k, d(k - 1)))
        a.I("ds_write_b128 v2, %s offset:%d" % (v4(o + 4), 2 * CS + 1024 * u))
        for k in range(4):
            a.I("v_alignbit_b32 v%d, v%d, v%d, 16" % (o + 8 + k, d(k - 1), d(k - 2)))
        a.I("ds_write_b128 v2, %s offset:%d" % (v4(o + 8), 3 * CS + 1024 * u))


def load_T_global(a, vS):
    a.I("s_lshl_b32 s3, s%d, 12" % sC)
    a.I("s_add_u32 s%d, s%d, s3" % (SRD_SK, SSK))
    a.I("s_addc_u32 s%d, s%d, 0" % (SRD_SK + 1, SSK + 1))
    a.I("s_mov_b32 s%d, 4096" % (SRD_SK + 2))
    a.I("s_mov_b32 s%d, 0x20000" % (SRD_SK + 3))
    a.I("s_lshl_b32 s3, s%d, 11" % sHB)
    a.I("v_lshl_add_u32 v2, v1, 4, s3")
    a.I("v_add_u32 v3, -8, v2")
    a.I("v_add_u32 v4, 0x3f8, v2")
    a.I("buffer_load_dwordx4 %s, v2, %s, 0 offen %s" % (v4(vS + 2), s4(SRD_SK), cfg["nt_in"]))
    a.I("buffer_load_dwordx4 %s, v2, %s, 0 offen offset:1024 %s" % (v4(vS + 8), s4(SRD_SK), cfg["nt_in"]))
    a.I("buffer_load_dwordx2 %s, v3, %s, 0 offen %s" % (vp(vS), s4(SRD_SK), cfg["nt_in"]))
    a.I("buffer_load_dwordx2 %s, v4, %s, 0 offen %s" % (vp(vS + 6), s4(SRD_SK), cfg["nt_in"]))


def unpack_weights_uniform(a):
    for c in range(4):
        p, e = c >> 1, c & 1
        for t in range(4):
            src = sWR + 2 * c + (t >> 1)
            dst = sWU + 8 * p + 2 * t + e
            if t & 1:
                a.I("s_and_b32 s%d, s%d, 0xffff0000" % (dst, src))
            else:
                a.I("s_lshl_b32 s%d, s%d, 16" % (dst, src))


def gen_B(a):
    a.label("L_B")
    vS = 64
    vK = 16
    vVv = 32
    a.I("s_lshl_b32 s3, s%d, 5" % sGRP)
    a.I("s_lshr_b32 s%d, s%d, 1" % (sT0, sC))
    a.I("s_lshl_b32 s%d, s%d, 2" % (sT0, sT0))
    a.I("s_waitcnt lgkmcnt(0)")
    a.I("s_load_dwordx8 s[%d:%d], %s, s3" % (sWR, sWR + 7, sp(SHK)))
    a.I("s_load_dword s%d, %s, s%d" % (sT3, sp(SSD), sT0))
    a.I("s_lshl_b32 s%d, s%d, 7" % (sT0, sSUB))
    a.I("s_lshl_b32 s%d, s%d, 4" % (sT1, sW))
    a.I("s_add_u32 s%d, s%d, s%d" % (sT0, sT0, sT1))
    a.I("s_mul_i32 s%d, s%d, 896" % (sT0, sT0))
    a.I("s_lshl_b32 s%d, s%d, 7" % (sT1, sX))
    a.I("s_add_u32 s%d, s%d, s%d" % (sT0, sT0, sT1))
    a.I("v_and_b32 v5, 15, v1")
    a.I("v_mul_u32_u24 v5, 896, v5")
    a.I("v_add_u32 v5, s%d, v5" % sT0)
    a.I("global_load_dword v%d, v5, %s %s" % (vDUMMY, sp(K), cfg["nt_pf"]))
    a.I("global_load_dword v%d, v5, %s %s" % (vDUMMY, sp(V), cfg["nt_pf"]))
    load_T_global(a, vS)
    a.I("global_load_dword v%d, v5, %s %s" % (vDUMMY, sp(Q), cfg["nt_pf"]))
    stamp(a, 0)
    srd(a, SRD_IN, Q, IN_BYTES)
    srd(a, SRD_OUT, OUT, OUT_BYTES)
    srd(a, SRD_K, K, IN_BYTES)
    srd(a, SRD_V, V, IN_BYTES)
    zero_quad(a, 56)
    zero_R_pad(a, 56, 2)
    zero_RAW_front(a, 56, 4)
    zero_T_pads(a, 56, 9, 10)
    a.I("s_lshl_b32 s3, s%d, 3" % sGRP)
    a.I("v_mul_u32_u24 v24, 3584, v0")
    a.I("v_add_u32 v40, s3, v24")
    a.I("s_and_b32 s3, s%d, 1" % sC)
    a.I("s_lshl_b32 s3, s3, 4")
    a.I("s_waitcnt lgkmcnt(0)")
    a.I("s_lshr_b32 s%d, s%d, s3" % (sT3, sT3))
    a.I("s_lshl_b32 s%d, s%d, 16" % (sT3, sT3))
    unpack_weights_uniform(a)
    a.I("s_waitcnt vmcnt(5)")
    stamp(a, 1)
    for j in range(4):
        a.I("buffer_load_dwordx2 %s, v40, %s, 0 offen offset:%d" % (vp(vK + 6 + 2 * j), s4(SRD_K), 896 * j))
    for j in range(4):
        a.I("buffer_load_dwordx2 %s, v40, %s, 0 offen offset:%d" % (vp(vVv + 2 * j), s4(SRD_V), 896 * j))
    a.I("s_waitcnt vmcnt(9)")
    build_T_from_global(a, vS)
    a.I("v_lshlrev_b32 v2, 5, v0")
    a.I("v_add_u32 v2, %d, v2" % (RAW_OFF + 8))
    a.I("s_waitcnt vmcnt(4)")
    a.I("ds_write_b128 v2, %s offset:24" % v4(vK + 6))
    a.I("ds_write_b128 v2, %s offset:40" % v4(vK + 10))
    a.I("s_waitcnt lgkmcnt(0)")
    a.I("s_barrier")
    for j in range(3):
        a.I("ds_read_b64 %s, v2 offset:%d" % (vp(vK + 2 * j), 8 * j))
    a.I("v_lshlrev_b32 v3, 3, v0")
    a.I("v_sub_u32 v3, %d, v3" % (R_OFF + 4088))
    a.I("s_waitcnt vmcnt(0) lgkmcnt(0)")
    stamp(a, 2)
    KU = 100
    VU = 116
    RES = 124
    O = 132
    for p in range(2):
        for r in range(7):
            a.I("v_lshlrev_b32 v%d, 16, v%d" % (KU + 2 * r, vK + 2 * r + p))
            a.I("v_and_b32 v%d, 0xffff0000, v%d" % (KU + 2 * r + 1, vK + 2 * r + p))
        for r in range(4):
            a.I("v_lshlrev_b32 v%d, 16, v%d" % (VU + 2 * r, vVv + 2 * r + p))
            a.I("v_and_b32 v%d, 0xffff0000, v%d" % (VU + 2 * r + 1, vVv + 2 * r + p))
        for r in range(4):
            R_ = RES + 2 * r
            a.I("v_pk_mul_f32 %s, %s, %s" % (vp(R_), vp(KU + 2 * r), sp(sWU + 8 * p + 6)))
            for t in (2, 1, 0):
                a.I("v_pk_fma_f32 %s, %s, %s, %s" % (vp(R_), vp(KU + 2 * (r + 3 - t)), sp(sWU + 8 * p + 2 * t), vp(R_)))
            a.I("v_pk_mul_f32 %s, %s, %s" % (vp(R_), vp(R_), vp(VU + 2 * r)))
        for e in range(2):
            o = O + 4 * p + 2 * e
            a.I("v_cvt_pk_bf16_f32 v%d, v%d, v%d" % (o, RES + 6 + e, RES + 4 + e))
            a.I("v_cvt_pk_bf16_f32 v%d, v%d, v%d" % (o + 1, RES + 2 + e, RES + e))
            a.I("ds_write_b64 v3, %s offset:%d" % (vp(o), (2 * p + e) * RS))
    a.I("s_cmp_eq_u32 s%d, 0" % sHB)
    a.I("s_cbranch_scc0 L_B_h")
    conv_addr(a)
    a.I("s_waitcnt lgkmcnt(0)")
    a.I("s_barrier")
    stamp(a, 4)
    if cfg["dump"]:
        dump_lds(a)
    a.I("s_branch L_CONV")
    a.label("L_B_h")
    a.I("s_waitcnt lgkmcnt(0)")
    a.I("s_barrier")
    stamp(a, 4)
    if cfg["dump"]:
        dump_lds(a)
    a.I("s_branch L_HELP")


HEADER = open("cdna_kernels/%s.s.ref" % NAME).read().split("; Override launch geometry")[0]


def build():
    a = Asm()
    gen_entry(a)
    gen_A(a)
    gen_B(a)
    gen_conv(a)
    gen_help(a)
    a.label("L_end")
    a.I("s_endpgm")
    a.label("L_codeend")
    body = a.finalize()
    txt = HEADER
    txt += "; @launch grid=(256,1,1) block=(512,1,1) lds=%d\n" % LDS_SIZE
    txt += '.amdgcn_target "amdgcn-amd-amdhsa--gfx950"\n.text\n.globl %s_kernel\n.p2align 8\n.type %s_kernel,@function\n%s_kernel:\n' % (NAME, NAME, NAME)
    txt += body
    txt += """.section .rodata,"a"
.p2align 6
.amdhsa_kernel %s_kernel
  .amdhsa_next_free_vgpr %d
  .amdhsa_next_free_sgpr 102
  .amdhsa_accum_offset %d
  .amdhsa_group_segment_fixed_size 0
  .amdhsa_kernarg_size 128
  .amdhsa_user_sgpr_count 2
  .amdhsa_user_sgpr_kernarg_segment_ptr 1
  .amdhsa_system_sgpr_workgroup_id_x 1
  .amdhsa_float_denorm_mode_32 3
.end_amdhsa_kernel
""" % (NAME, NVGPR if not cfg["stamps"] else 232, NVGPR if not cfg["stamps"] else 232)
    return txt, a


if __name__ == "__main__":
    out = sys.argv[1]
    for kv in sys.argv[2:]:
        k, v = kv.split("=", 1)
        try:
            v = json.loads(v)
        except Exception:
            pass
        cfg[k] = v
    txt, a = build()
    open(out, "w").write(txt)
    print("instructions:", a.count(), "auto nops:", a.nops)
```

```python
import sys
import json
from asmgen import Asm, LdsQueue

NAME = "concat_heads__ssm_conv_s4d__ssm_conv_h3__prompt"

cfg = dict(
    stamps=0,
    dump=None,
    nt_in="nt",
    nt_pf="nt",
    nt_out="",
    codepf=2,
    lag=10,
    margin=10,
    look=40,
    phases=[[0, 4, 0, 8], [4, 8, 0, 8]],
    merge=[1, 2],
    p1=4,
    ul=[0.2, 0.35, 0.5, 0.65],
    uc=[0.55, 0.7, 0.85, 1.0],
    pre=10,
    hard=9,
)

ROWB = 2064
CS = 4160
TS = 4 * CS + 32
RS = 4576
YS = 4672
R_OFF = 0
Y_OFF = 4 * RS
T_OFF = 33 * ROWB
RAW_OFF = T_OFF + 4 * TS
RAWS = 2080
RED_OFF = RAW_OFF + 8 * RAWS
CNT_OFF = RED_OFF + 4 * 3072
LDS_SIZE = CNT_OFF + 16
GATE_OFF = CNT_OFF
assert LDS_SIZE <= 163840 and Y_OFF + 4 * YS <= T_OFF
IN_BYTES = 2048 * 896
OUT_BYTES = 2048 * 1792

sX, sSUB, sGRP, sW = 4, 5, 6, 7
U, LAR, AIM, CR, CI, LDT, DSK, Q = 8, 10, 12, 14, 16, 18, 20, 22
K, V, SHK, SSK, SSD, OUT, DBG, WS = 24, 26, 28, 30, 32, 34, 36, 38
sPC = 40
sT0, sT1 = 42, 43
SRD_OUT, SRD_IN, SRD_K, SRD_V, SRD_SK = 44, 48, 52, 56, 60
sCH, sHB, sC, sT2, sT3, sT4, sISB = 88, 89, 90, 91, 92, 93, 94
sST = 96
vSTAMP = 224
vDUMMY = 225
NVGPR = 232


def sp(n):
    return "s[%d:%d]" % (n, n + 1)


def s4(n):
    return "s[%d:%d]" % (n, n + 3)


def vp(n):
    assert n % 2 == 0
    return "v[%d:%d]" % (n, n + 1)


def v4(n):
    assert n % 2 == 0
    return "v[%d:%d]" % (n, n + 3)


def stamp(a, idx):
    if cfg["stamps"]:
        a.I("s_memrealtime %s" % sp(sST))
        a.I("s_memtime %s" % sp(sST + 2))
        a.I("s_waitcnt lgkmcnt(0)")
        a.I("v_writelane_b32 v%d, s%d, %d" % (vSTAMP, sST, idx))
        a.I("v_writelane_b32 v%d, s%d, %d" % (vSTAMP, sST + 2, idx + 32))


def stamp_flush(a):
    if cfg["stamps"]:
        a.I("s_lshl_b32 s%d, s2, 11" % sT0)
        a.I("s_lshl_b32 s%d, s%d, 8" % (sT1, sW))
        a.I("s_add_u32 s%d, s%d, s%d" % (sT0, sT0, sT1))
        a.I("s_add_u32 s%d, s%d, 0x1000000" % (sT0, sT0))
        a.I("v_lshl_add_u32 v2, v1, 2, s%d" % sT0)
        if cfg["stamps"] == 3:
            lab = "L_amp%d" % len(a.items)
            a.I("s_lshl_b32 s%d, s%d, 8" % (sT1, sW))
            a.I("s_or_b32 s%d, s2, s%d" % (sT0, sT1))
            a.I("s_cmp_eq_u32 s%d, %d" % (sT0, 0x400 + cfg["amp_wg"]))
            a.I("s_cbranch_scc0 %s" % lab)
            a.I("v_readlane_b32 s%d, v%d, %d" % (sT0, vSTAMP, cfg["amp_from"]))
            a.I("v_readlane_b32 s%d, v%d, %d" % (sT1, vSTAMP, cfg["amp_to"]))
            a.I("s_nop 4")
            a.I("s_sub_u32 s%d, s%d, s%d" % (sT0, sT1, sT0))
            a.I("s_mul_i32 s%d, s%d, 10" % (sT0, sT0))
            a.I("s_memrealtime %s" % sp(sST))
            a.I("s_waitcnt lgkmcnt(0)")
            a.I("s_mov_b32 s%d, s%d" % (sT1, sST))
            a.label(lab + "l")
            a.I("s_sleep 2")
            a.I("s_memrealtime %s" % sp(sST))
            a.I("s_waitcnt lgkmcnt(0)")
            a.I("s_sub_u32 s3, s%d, s%d" % (sST, sT1))
            a.I("s_cmp_lt_u32 s3, s%d" % sT0)
            a.I("s_cbranch_scc1 %sl" % lab)
            a.label(lab)
        elif cfg["stamps"] == 2:
            lab = "L_nodbg%d" % len(a.items)
            a.I("s_and_b32 s%d, s2, 0xfffffff7" % sT0)
            a.I("s_lshl_b32 s%d, s%d, 8" % (sT1, sW))
            a.I("s_or_b32 s%d, s%d, s%d" % (sT0, sT0, sT1))
            a.I("s_cmp_eq_u32 s%d, 0x400" % sT0)
            a.I("s_cbranch_scc0 %s" % lab)
            a.I("s_lshl_b32 s%d, s2, 2" % sT0)
            a.I("v_lshl_add_u32 v2, v1, 2, s%d" % sT0)
            a.I("s_mov_b32 exec_lo, 0xff")
            a.I("s_mov_b32 exec_hi, 0")
            a.I("global_store_dword v2, v%d, %s" % (vSTAMP, sp(DBG)))
            a.label(lab)
        else:
            a.I("global_store_dword v2, v%d, %s" % (vSTAMP, sp(WS)))


def srd(a, dst, ptr, nbytes):
    a.I("s_mov_b32 s%d, s%d" % (dst, ptr))
    a.I("s_mov_b32 s%d, s%d" % (dst + 1, ptr + 1))
    a.I("s_mov_b32 s%d, %d" % (dst + 2, nbytes))
    a.I("s_mov_b32 s%d, 0x20000" % (dst + 3))


def dump_lds(a):
    a.I("s_mul_i32 s%d, s2, 163840" % sT0)
    a.I("v_lshlrev_b32 v2, 4, v0")
    a.I("v_add_u32 v3, s%d, v2" % sT0)
    for j in range(LDS_SIZE // 8192 + 1):
        a.I("ds_read_b128 v[4:7], v2")
        a.I("s_waitcnt lgkmcnt(0)")
        a.I("global_store_dwordx4 v3, v[4:7], %s" % sp(WS))
        a.I("s_waitcnt vmcnt(0)")
        a.I("v_add_u32 v2, 8192, v2")
        a.I("v_add_u32 v3, 8192, v3")
    a.I("s_barrier")


def gen_entry(a):
    a.I("s_load_dwordx16 s[8:23], s[0:1], 0")
    a.I("s_load_dwordx16 s[24:39], s[0:1], 64")
    a.I("s_cmp_ge_u32 s2, 256")
    a.I("s_cbranch_scc1 L_end")
    a.I("s_and_b32 s%d, s2, 7" % sX)
    a.I("s_cmp_eq_u32 s%d, 7" % sX)
    a.I("s_cbranch_scc1 L_end")
    if cfg["codepf"]:
        a.I("s_getpc_b64 %s" % sp(sPC))
        a.label("L_pc")
        if cfg["codepf"] == 1:
            a.I("v_lshlrev_b32 v2, 7, v0")
        else:
            a.I("s_and_b32 s3, s2, 0xf8")
            a.I("v_and_b32 v2, 7, v0")
            a.I("v_add_u32 v2, s3, v2")
            a.I("v_lshlrev_b32 v2, 7, v2")
        a.I("v_min_u32 v2, L_codeend-L_pc-4, v2")
        a.I("global_load_dword v%d, v2, %s" % (vDUMMY, sp(sPC)))
    if cfg["stamps"]:
        a.I("v_mov_b32 v%d, 0" % vSTAMP)
    a.I("v_lshrrev_b32 v2, 6, v0")
    a.I("v_and_b32 v1, 63, v0")
    a.I("v_readfirstlane_b32 s%d, v2" % sW)
    a.I("s_lshr_b32 s3, s2, 3")
    a.I("s_lshr_b32 s%d, s3, 1" % sSUB)
    a.I("s_lshl_b32 s%d, s%d, 4" % (sGRP, sX))
    a.I("s_add_u32 s%d, s%d, s%d" % (sGRP, sGRP, sSUB))
    a.I("s_and_b32 s%d, s3, 1" % sISB)
    a.I("s_and_b32 s%d, s%d, 3" % (sCH, sW))
    a.I("s_lshr_b32 s%d, s%d, 2" % (sHB, sW))
    a.I("s_lshl_b32 s%d, s%d, 2" % (sC, sGRP))
    a.I("s_add_u32 s%d, s%d, s%d" % (sC, sC, sCH))
    a.I("s_cmp_eq_u32 s%d, 1" % sISB)
    a.I("s_cbranch_scc1 L_B")


def zero_quad(a, q):
    for i in range(4):
        a.I("v_mov_b32 v%d, 0" % (q + i))


def zero_R_pad(a, zq, tmp):
    a.I("s_mul_i32 s%d, s%d, %d" % (sT0, sCH, RS))
    a.I("s_add_u32 s%d, s%d, %d" % (sT0, sT0, R_OFF + 4096))
    a.I("v_min_u32 v%d, 29, v1" % tmp)
    a.I("v_lshl_add_u32 v%d, v%d, 4, s%d" % (tmp, tmp, sT0))
    a.I("ds_write_b128 v%d, %s" % (tmp, v4(zq)))


def zero_RAW_front(a, zq, tmp):
    a.I("v_and_b32 v%d, 1, v1" % tmp)
    a.I("v_lshlrev_b32 v%d, 4, v%d" % (tmp, tmp))
    a.I("v_add_u32 v%d, %d, v%d" % (tmp, RAW_OFF, tmp))
    a.I("ds_write_b128 v%d, %s" % (tmp, v4(zq)))


def zero_counters(a, zq, tmp):
    a.I("v_mov_b32 v%d, %d" % (tmp, CNT_OFF))
    a.I("s_mov_b64 exec, 1")
    a.I("ds_write_b128 v%d, %s" % (tmp, v4(zq)))
    a.I("s_mov_b64 exec, -1")


def zero_T_pads(a, zq, t0, t1):
    a.I("v_bfe_u32 v%d, v1, 3, 2" % t0)
    a.I("v_mul_u32_u24 v%d, %d, v%d" % (t0, TS, t0))
    a.I("v_bfe_u32 v%d, v1, 1, 2" % t1)
    a.I("v_mul_u32_u24 v%d, %d, v%d" % (t1, CS, t1))
    a.I("v_add_u32 v%d, v%d, v%d" % (t0, t0, t1))
    a.I("v_and_b32 v%d, 1, v1" % t1)
    a.I("v_lshl_add_u32 v%d, v%d, 4, v%d" % (t0, t1, t0))
    a.I("v_add_u32 v%d, %d, v%d" % (t0, T_OFF, t0))
    a.I("ds_write_b128 v%d, %s" % (t0, v4(zq)))


vU = 8
vP = 16
vAB = 20
v2DT = 22
vOFFU = 24
vAA = 25
vZ, vC, vV, vW, vG, vXc, vQ, vT, vT2 = 28, 30, 32, 34, 36, 38, 40, 42, 44
vTMP = 46
vO = 52
vZQ = 56
vNEG = 152
vX2, vQ2 = 156, 158
vACC = 64
vOP = 80
sLHI, sLLO, sLN2 = 64, 65, 66
s8, s256 = 68, 70
sHM, sODD = 72, 74
sSO = 76
sM0 = 80


class KG:
    def __init__(self, a):
        self.a = a
        self.k = 0

    def cmul(self, D, X, Y, T=vT):
        a = self.a
        if cfg.get("scal"):
            assert D != X
            ny = {vV: vNEG, vW: vNEG + 1, vG: vNEG + 2}[Y]
            a.I("v_mul_f32 v%d, v%d, v%d" % (D, X + 1, ny))
            a.I("v_mul_f32 v%d, v%d, v%d" % (D + 1, X + 1, Y))
            a.I("v_fmac_f32 v%d, v%d, v%d" % (D, X, Y))
            a.I("v_fmac_f32 v%d, v%d, v%d" % (D + 1, X, Y + 1))
            return
        a.I("v_pk_mul_f32 %s, %s, %s op_sel:[1,1] op_sel_hi:[1,0] neg_lo:[1,0]" % (vp(T), vp(X), vp(Y)))
        a.I("v_pk_fma_f32 %s, %s, %s, %s op_sel_hi:[0,1,1]" % (vp(D), vp(X), vp(Y), vp(T)))

    def out(self, row, X, neg):
        a = self.a
        r = vO + (self.k & 3)
        self.k += 1
        a.I("v_cvt_pk_bf16_f32 v%d, v%d, %sv%d" % (r, X, "-" if neg else "", X + 1))
        a.I("ds_write_addtid_b32 v%d offset:%d" % (r, row * ROWB))

    def anchor(self, P, Zs):
        a = self.a
        a.I("v_fract_f32 v%d, v%d" % (vTMP + 1, Zs + 1))
        a.I("v_exp_f32 v%d, v%d" % (vTMP, Zs))
        a.I("v_cos_f32 v%d, v%d" % (P, vTMP + 1))
        a.I("v_sin_f32 v%d, v%d" % (P + 1, vTMP + 1))
        if cfg.get("scal"):
            a.I("v_mul_f32 v%d, v%d, v%d" % (P, P, vTMP))
            a.I("v_mul_f32 v%d, v%d, v%d" % (P + 1, P + 1, vTMP))
            a.I("v_sub_f32 v%d, 0, v%d" % ({vV: vNEG, vW: vNEG + 1, vG: vNEG + 2}[P], P + 1))
        else:
            a.I("v_pk_mul_f32 %s, %s, %s op_sel_hi:[1,0]" % (vp(P), vp(P), vp(vTMP)))


def exp_bf16(a, dst, x, t0, t1):
    a.I("v_mul_f32 v%d, s%d, v%d" % (t0, sLHI, x))
    a.I("v_fma_f32 v%d, v%d, s%d, -v%d" % (t1, x, sLHI, t0))
    a.I("v_exp_f32 v%d, v%d" % (t0, t0))
    a.I("v_fmac_f32 v%d, s%d, v%d" % (t1, sLLO, x))
    a.I("v_mul_f32 v%d, s%d, v%d" % (t1, sLN2, t1))
    a.I("v_fmac_f32 v%d, v%d, v%d" % (t0, t0, t1))
    a.I("v_cvt_pk_bf16_f32 v%d, v%d, v%d" % (t0, t0, t0))
    a.I("v_lshlrev_b32 v%d, 16, v%d" % (dst, t0))


def kgen_batch(beta):
    b = Asm()
    kg = KG(b)

    def unpack(dst, src):
        if beta == 0:
            b.I("v_lshlrev_b32 v%d, 16, v%d" % (dst, src))
        else:
            b.I("v_and_b32 v%d, 0xffff0000, v%d" % (dst, src))

    unpack(vTMP + 2, vP + 0)
    unpack(vZ + 1, vP + 1)
    unpack(vC, vP + 2)
    unpack(vC + 1, vP + 3)
    exp_bf16(b, vZ, vTMP + 2, vTMP + 3, vTMP + 4)
    sc = cfg.get("scal")

    def pkmul(D, X, Y, bc):
        if not sc:
            b.I("v_pk_mul_f32 %s, %s, %s%s" % (vp(D), vp(X), Y[0], " op_sel_hi:[1,0]" if bc else ""))
        else:
            b.I("v_mul_f32 v%d, %s, v%d" % (D, Y[1], X))
            b.I("v_mul_f32 v%d, %s, v%d" % (D + 1, Y[1] if bc else Y[2], X + 1))
    pkmul(vC, vC, (vp(v2DT), "v%d" % v2DT), True)
    pkmul(vZ, vZ, (vp(vAB), "v%d" % vAB, "v%d" % (vAB + 1)), False)
    kg.out(0, vC, True)
    pkmul(vT2, vZ, (sp(s256), "s%d" % s256), True)
    kg.anchor(vG, vT2)
    pkmul(vT2, vZ, (sp(s8), "s%d" % s8), True)
    kg.anchor(vW, vT2)
    kg.anchor(vV, vZ)

    def other(r, p, p2):
        return (p2 if r == p else p) if sc else p
    src = vC
    for row in (8, 12, 16, 20, 18, 22, 19, 23):
        d = other(src, vQ, vQ2)
        kg.cmul(d, src, vG)
        kg.out(row, d, True)
        src = d
    src = vC
    for r in range(1, 8):
        d = other(src, vXc, vX2)
        kg.cmul(d, src, vV)
        kg.out(r, d, True)
        src = d
        if r == 2:
            kg.cmul(vQ, src, vG)
            kg.out(9, vQ, True)
        if r == 4:
            qq = src
            for row in (10, 13, 17):
                d2 = other(qq, vQ, vQ2)
                kg.cmul(d2, qq, vG)
                kg.out(row, d2, True)
                qq = d2
        if r == 6:
            kg.cmul(vQ, src, vG)
            kg.out(11, vQ, True)
    partA = [it.text for it in b.items]
    b = Asm()
    kg.a = b
    kg.out(1, vW, False)
    src = vW
    for j in range(2, 32):
        d = other(src, vXc, vX2)
        kg.cmul(d, src, vW)
        kg.out(j, d, False)
        src = d
    return partA, [it.text for it in b.items]


vAB_ = 26
vUR, vUW, vUT = 4, 5, 6
vUH = 60
vTR = 144


def gen_kgen_stream(a):
    q = LdsQueue(a)
    A0, B0 = kgen_batch(0)
    A1, B1 = kgen_batch(1)
    OPA, OPB = vOP, vOP + 32
    st = {"vm": 0, "vmidx": {}}
    rb = {}

    def reads(kind):
        def f():
            for s_ in range(8):
                if cfg.get("kx_noreads"):
                    rb[s_] = -1
                    continue
                if kind == "A":
                    q.op("ds_read_b128 %s, v%d offset:%d" % (v4(OPA + 4 * s_), vAA, 32 * s_))
                else:
                    rb[s_] = q.op("ds_read_b128 %s, v%d offset:%d" % (v4(OPB + 4 * s_), vAB_, 32 * s_))
        return f

    def mfma(s_, first):
        def f():
            if cfg.get("kx_nomfma"):
                return
            q.wait_for(rb[s_])
            c = "0" if (first and s_ == 0) else "v[%d:%d]" % (vACC, vACC + 15)
            a.I("v_mfma_f32_32x32x16_bf16 v[%d:%d], %s, %s, %s" % (vACC, vACC + 15, v4(OPA + 4 * s_), v4(OPB + 4 * s_), c))
        return f

    def uload(j):
        def f():
            if j == 0:
                a.I("s_mov_b64 exec, 7")
                a.I("buffer_load_dwordx2 %s, v7, %s, 0 offen" % (vp(vUH), s4(SRD_IN)))
                a.I("s_mov_b64 exec, -1")
                st["vm"] += 1
            a.I("buffer_load_dwordx2 %s, v%d, %s, s%d offen" % (vp(vU + 2 * j), vOFFU, s4(SRD_IN), sSO + j))
            st["vm"] += 1
            st["vmidx"][j] = st["vm"]
        return f
    tr = {}

    def ucons1(j):
        def f():
            if cfg.get("ustamps"):
                stamp(a, 10 + 2 * j)
            a.I("s_waitcnt vmcnt(%d)" % (st["vm"] - st["vmidx"][j]))
            if cfg.get("ustamps"):
                stamp(a, 11 + 2 * j)
            if j == 0:
                a.I("s_mov_b64 exec, 7")
                q.op("ds_write_b64 v%d, %s" % (vUR, vp(vUH)))
                a.I("s_mov_b64 exec, -1")
            q.op("ds_write_b64 v%d, %s offset:%d" % (vUR, vp(vU + 2 * j), 24 + 512 * j))
            for c in range(4):
                tr[c] = q.op("ds_read_b64_tr_b16 %s, v%d offset:%d" % (vp(vTR + 2 * c), vUW, 512 * j + 8 * (3 - c)))
        return f

    def ucons2(j):
        def f():
            for c in range(4):
                q.wait_for(tr[c])
                q.op("ds_write_b64 v%d, %s offset:%d" % (vUT, vp(vTR + 2 * c), c * CS + 128 * j))
        return f

    nA, nB = len(A0), len(B0)
    tot = 2 * (nA + nB)
    ins = {}

    def at(pos, f):
        ins.setdefault(pos, []).append(f)
    at(nA, reads("A"))
    at(nA + nB, reads("B"))
    m0 = nA + nB + cfg.get("km0", 30)
    for s_ in range(8):
        at(m0 + s_ * cfg.get("kmd", 9), mfma(s_, True))
    assert m0 + 7 * cfg.get("kmd", 9) < 2 * nA + nB
    at(2 * nA + nB, reads("A"))
    if not cfg.get("nou"):
        for j in range(4):
            at(int(tot * cfg["ul"][j]), uload(j))
            p = int(tot * cfg["uc"][j])
            if p < tot - 14:
                at(p, ucons1(j))
                at(p + 14, ucons2(j))
    kp = cfg.get("kprio", 0)
    if kp:
        a.I("s_cmp_eq_u32 s%d, 0" % sHB)
        a.I("s_cbranch_scc1 L_kp0")
        a.I("s_setprio 1")
        a.label("L_kp0")
        at(int(tot * cfg.get("kpx", 0.5)), lambda: a.I("s_setprio 0"))
    for i, t in enumerate(A0 + B0 + A1 + B1):
        for f in ins.get(i, []):
            f()
        if t.startswith("ds_"):
            if not cfg.get("kx_nowrites"):
                q.op(t)
        else:
            a.I(t)
    reads("B")()
    late = [j for j in range(4) if int(tot * cfg["uc"][j]) >= tot - 14 and not cfg.get("nou")]
    for s_ in range(8):
        mfma(s_, False)()
        if late and s_ % 2 == 1:
            pass
    for j in late:
        ucons1(j)()
        ucons2(j)()
    return q


def gen_A(a):
    a.label("L_A")
    a.I("s_lshl_b32 s3, s%d, 9" % sC)
    a.I("s_lshl_b32 s%d, s%d, 8" % (sT0, sHB))
    a.I("s_add_u32 s3, s3, s%d" % sT0)
    a.I("v_lshl_add_u32 v4, v1, 2, s3")
    a.I("s_lshl_b32 s%d, s%d, 7" % (sT0, sSUB))
    a.I("s_lshl_b32 s%d, s%d, 4" % (sT1, sW))
    a.I("s_add_u32 s%d, s%d, s%d" % (sT0, sT0, sT1))
    a.I("s_mul_i32 s%d, s%d, 896" % (sT0, sT0))
    a.I("s_lshl_b32 s%d, s%d, 7" % (sT1, sX))
    a.I("s_add_u32 s%d, s%d, s%d" % (sT0, sT0, sT1))
    a.I("v_and_b32 v5, 15, v1")
    a.I("v_mul_u32_u24 v5, 896, v5")
    a.I("v_add_u32 v5, s%d, v5" % sT0)
    a.I("s_lshr_b32 s3, s%d, 1" % sC)
    a.I("s_lshl_b32 s3, s3, 2")
    a.I("s_waitcnt lgkmcnt(0)")
    for i, p in enumerate((LAR, AIM, CR, CI)):
        a.I("global_load_dword v%d, v4, %s %s" % (vP + i, sp(p), cfg["nt_in"]))
    a.I("s_load_dword s%d, %s, s3" % (sT2, sp(LDT)))
    a.I("s_load_dword s%d, %s, s3" % (sT3, sp(DSK)))
    a.I("global_load_dword v%d, v5, %s %s" % (vDUMMY, sp(U), cfg["nt_pf"]))
    stamp(a, 0)
    srd(a, SRD_IN, U, IN_BYTES)
    srd(a, SRD_OUT, OUT, OUT_BYTES)
    for j in range(4):
        a.I("s_mov_b32 s%d, %d" % (sSO + j, j * 64 * 896))
    a.I("s_lshl_b32 s3, s%d, 3" % sGRP)
    a.I("s_mul_i32 s%d, s%d, %d" % (sT0, sW, 256 * 896))
    a.I("s_add_u32 s3, s3, s%d" % sT0)
    a.I("v_mul_u32_u24 v%d, 896, v1" % vOFFU)
    a.I("v_add_u32 v%d, s3, v%d" % (vOFFU, vOFFU))
    a.I("v_add_u32 v7, %d, v%d" % (-2688, vOFFU))
    a.I("s_mov_b32 s%d, 0x3fb8aa3b" % sLHI)
    a.I("s_mov_b32 s%d, 0x32a57060" % sLLO)
    a.I("s_mov_b32 s%d, 0x3f317218" % sLN2)
    a.I("s_mov_b32 s%d, 0x41000000" % s8)
    a.I("s_mov_b32 s%d, 0x43800000" % s256)
    a.I("s_mov_b32 s%d, 0" % sHM)
    a.I("s_mov_b32 s%d, -1" % (sHM + 1))
    a.I("s_mov_b32 s%d, 0xaaaaaaaa" % sODD)
    a.I("s_mov_b32 s%d, 0xaaaaaaaa" % (sODD + 1))
    a.I("s_lshl_b32 s3, s%d, 8" % sW)
    a.I("s_mov_b32 m0, s3")
    a.I("v_and_b32 v2, 31, v1")
    a.I("v_mul_u32_u24 v3, %d, v2" % ROWB)
    a.I("v_lshrrev_b32 v4, 5, v1")
    a.I("v_lshl_add_u32 v4, v4, 4, s3")
    a.I("v_add_u32 v%d, v3, v4" % vAA)
    a.I("v_mov_b32 v5, %d" % (32 * ROWB))
    a.I("v_cmp_eq_u32 vcc, 0, v2")
    a.I("v_cndmask_b32 v3, v3, v5, vcc")
    a.I("v_add_u32 v%d, v3, v4" % vAB_)
    a.I("v_lshl_add_u32 v2, v1, 2, s3")
    a.I("v_add_u32 v2, v5, v2")
    a.I("v_mov_b32 v%d, 0x3f80" % vO)
    a.I("ds_write_b32 v2, v%d" % vO)
    zero_quad(a, vZQ)
    zero_counters(a, vZQ, 2)
    zero_T_pads(a, vZQ, 2, 3)
    a.I("s_mul_i32 s3, s%d, %d" % (sW, RAWS))
    a.I("s_add_u32 s3, s3, %d" % RAW_OFF)
    a.I("v_lshl_add_u32 v%d, v1, 3, s3" % vUR)
    a.I("v_and_b32 v2, 3, v1")
    a.I("v_bfe_u32 v3, v1, 2, 2")
    a.I("v_lshrrev_b32 v27, 4, v1")
    a.I("v_lshl_add_u32 v%d, v2, 2, v3" % vUW)
    a.I("v_lshl_add_u32 v%d, v27, 4, v%d" % (vUW, vUW))
    a.I("v_lshl_add_u32 v%d, v%d, 3, s3" % (vUW, vUW))
    a.I("v_lshl_add_u32 v3, v27, 2, v3")
    a.I("v_mul_u32_u24 v2, %d, v2" % TS)
    a.I("v_lshl_add_u32 v2, v3, 3, v2")
    a.I("s_lshl_b32 s3, s%d, 9" % sW)
    a.I("s_add_u32 s3, s3, %d" % (T_OFF + 32))
    a.I("v_add_u32 v%d, s3, v2" % vUT)
    a.I("s_and_b32 s3, s%d, 1" % sC)
    a.I("s_lshl_b32 s3, s3, 4")
    a.I("s_waitcnt lgkmcnt(0)")
    a.I("s_lshr_b32 s%d, s%d, s3" % (sT2, sT2))
    a.I("s_lshl_b32 s%d, s%d, 16" % (sT2, sT2))
    a.I("s_lshr_b32 s%d, s%d, s3" % (sT3, sT3))
    a.I("s_lshl_b32 s%d, s%d, 16" % (sT3, sT3))
    a.I("v_mov_b32 v%d, s%d" % (vTMP + 2, sT2))
    exp_bf16(a, vTMP + 5, vTMP + 2, vTMP + 3, vTMP + 4)
    a.I("v_mul_f32 v%d, 0xbfb8aa3b, v%d" % (vAB, vTMP + 5))
    a.I("v_mul_f32 v%d, 0.15915494, v%d" % (vAB + 1, vTMP + 5))
    a.I("v_add_f32 v%d, v%d, v%d" % (v2DT, vTMP + 5, vTMP + 5))
    a.I("s_waitcnt vmcnt(1)")
    stamp(a, 1)
    gen_kgen_stream(a)
    stamp(a, 2)
    a.I("s_mul_i32 s3, s%d, 3072" % sCH)
    a.I("s_add_u32 s3, s3, %d" % RED_OFF)
    a.I("v_lshl_add_u32 v2, v1, 4, s3")
    a.I("s_cmp_eq_u32 s%d, 0" % sHB)
    a.I("s_cbranch_scc1 L_A_lo")
    a.I("s_nop 7")
    for k in range(3):
        a.I("ds_write_b128 v2, %s offset:%d" % (v4(vACC + 4 * k), 1024 * k))
    a.I("s_waitcnt lgkmcnt(0)")
    a.I("s_barrier")
    stamp(a, 3)
    if cfg["dump"]:
        a.I("s_barrier")
        dump_lds(a)
    a.I("s_branch L_HELP")
    a.label("L_A_lo")
    a.I("s_mul_i32 s3, s%d, %d" % (sCH, RS))
    a.I("s_add_u32 s3, s3, %d" % (R_OFF + 4080 - 2 * 1792 + 1024))
    a.I("v_lshlrev_b32 v4, 4, v1")
    a.I("v_sub_u32 v4, s3, v4")
    a.I("v_and_b32 v5, 31, v1")
    a.I("v_lshlrev_b32 v5, 4, v5")
    a.I("v_lshrrev_b32 v6, 5, v1")
    a.I("v_lshl_add_u32 v5, v6, 3, v5")
    a.I("s_add_u32 s3, s3, %d" % (2 * 1792 + 8 - 1024))
    a.I("v_sub_u32 v5, s3, v5")
    a.I("v_cmp_eq_u32 vcc, 0, v1")
    a.I("v_mov_b32 v6, s%d" % sT3)
    a.I("v_cndmask_b32 v6, 0, v6, vcc")
    conv_addr(a, tmp=(8, 9, 10, 11))
    a.I("s_waitcnt lgkmcnt(0)")
    a.I("s_barrier")
    stamp(a, 3)
    zero_R_pad(a, vZQ, 3)
    P = vOP
    for k in range(3):
        a.I("ds_read_b128 %s, v2 offset:%d" % (v4(P + 4 * k), 1024 * k))
    A_ = vACC
    a.I("v_add_f32 v%d, v%d, v6" % (A_, A_))
    for k in range(3):
        a.I("s_waitcnt lgkmcnt(%d)" % (2 - k))
        for h in range(2):
            r = 4 * k + 2 * h
            a.I("v_pk_add_f32 %s, %s, %s" % (vp(A_ + r), vp(A_ + r), vp(P + r)))
    N4, N8, N10, N11 = vOP + 12, vOP + 13, vOP + 14, vOP + 15
    X = vOP + 16
    O = vOP + 24
    dpp = "row_mask:0xf bank_mask:0xf"
    a.I("v_cvt_pk_bf16_f32 v%d, v%d, v%d" % (O, A_ + 3, A_ + 2))
    a.I("v_cvt_pk_bf16_f32 v%d, v%d, v%d" % (O + 1, A_ + 1, A_ + 0))
    a.I("ds_write_b64 v5, %s" % vp(O))
    a.I("v_mov_b32_dpp v%d, v%d wave_rol:1 %s" % (N4, A_ + 8, dpp))
    a.I("v_mov_b32_dpp v%d, v%d wave_rol:1 %s" % (N8, A_ + 10, dpp))
    a.I("v_mov_b32_dpp v%d, v%d wave_rol:1 %s" % (N10, A_ + 11, dpp))
    a.I("v_mov_b32_dpp v%d, v%d wave_rol:1 %s" % (N11, A_ + 11, dpp))
    a.I("v_mov_b32_dpp v%d, v%d wave_shl:1 %s" % (N4, A_ + 4, dpp))
    a.I("v_mov_b32_dpp v%d, v%d wave_shl:1 %s" % (N8, A_ + 8, dpp))
    a.I("v_mov_b32_dpp v%d, v%d wave_shl:1 %s" % (N10, A_ + 10, dpp))
    hm, od = sp(sHM), sp(sODD)
    a.I("v_cndmask_b32 v%d, v%d, v%d, %s" % (X + 0, A_ + 7, N4, hm))
    a.I("v_cndmask_b32 v%d, v%d, v%d, %s" % (X + 1, A_ + 6, A_ + 5, hm))
    a.I("v_cndmask_b32 v%d, v%d, v%d, %s" % (X + 2, A_ + 5, A_ + 4, hm))
    a.I("v_cvt_pk_bf16_f32 v%d, v%d, v%d" % (O + 4, N4, X + 0))
    a.I("v_cvt_pk_bf16_f32 v%d, v%d, v%d" % (O + 5, X + 1, X + 1))
    a.I("v_cvt_pk_bf16_f32 v%d, v%d, v%d" % (O + 6, X + 1, X + 2))
    a.I("v_cvt_pk_bf16_f32 v%d, v%d, v%d" % (O + 7, A_ + 4, A_ + 4))
    a.I("ds_write_b128 v4, %s offset:%d" % (v4(O + 4), 2 * (1280 - 256)))
    a.I("v_cndmask_b32 v%d, v%d, v%d, %s" % (X + 3, A_ + 9, N8, hm))
    a.I("v_cndmask_b32 v%d, v%d, v%d, %s" % (X + 4, A_ + 8, N8, od))
    a.I("v_cndmask_b32 v%d, v%d, v%d, %s" % (X + 4, A_ + 9, X + 4, hm))
    a.I("v_cndmask_b32 v%d, v%d, v%d, %s" % (X + 5, A_ + 9, A_ + 8, hm))
    a.I("v_cvt_pk_bf16_f32 v%d, v%d, v%d" % (O + 8, N8, N8))
    a.I("v_cvt_pk_bf16_f32 v%d, v%d, v%d" % (O + 9, X + 3, X + 4))
    a.I("v_cvt_pk_bf16_f32 v%d, v%d, v%d" % (O + 10, X + 5, A_ + 8))
    a.I("v_cvt_pk_bf16_f32 v%d, v%d, v%d" % (O + 11, A_ + 8, A_ + 8))
    a.I("ds_write_b128 v4, %s offset:%d" % (v4(O + 8), 2 * (1280 - 768)))
    for (src, nx, o, base) in ((A_ + 10, N10, O + 12, 1280), (A_ + 11, N11, O + 16, 1792)):
        a.I("v_cndmask_b32 v%d, v%d, v%d, %s" % (X + 6, src, nx, od))
        a.I("v_cvt_pk_bf16_f32 v%d, v%d, v%d" % (o, nx, nx))
        a.I("v_cvt_pk_bf16_f32 v%d, v%d, v%d" % (o + 1, nx, X + 6))
        a.I("v_cvt_pk_bf16_f32 v%d, v%d, v%d" % (o + 2, src, src))
        a.I("v_cvt_pk_bf16_f32 v%d, v%d, v%d" % (o + 3, src, src))
        if base == 1792:
            a.I("v_add_u32 v7, -1024, v4")
            a.I("s_mov_b32 exec_hi, 0")
            a.I("ds_write_b128 v7, %s" % v4(o))
        else:
            a.I("ds_write_b128 v4, %s" % v4(o))
    a.I("s_mov_b32 exec_hi, -1")
    stamp(a, 4)
    if cfg["dump"]:
        a.I("s_waitcnt lgkmcnt(0)")
        a.I("s_barrier")
        dump_lds(a)
    a.I("s_branch L_CONV")


vCA, vCB, vCY, vCF, vONE, vGATE, vTHR = 25, 26, 27, 28, 29, 30, 31
ACC = 32
POOL0 = 64
NPOOL = 40
vCV = 4


def conv_addr(a, tmp=(2, 3, 4, 5)):
    a2, a3, a4, a5 = tmp
    a.I("v_and_b32 v{a2}, 15, v1".format(a2=a2, a3=a3, a4=a4, a5=a5))
    a.I("v_lshrrev_b32 v{a3}, 4, v1".format(a2=a2, a3=a3, a4=a4, a5=a5))
    a.I("v_sub_u32 v{a4}, 15, v{a2}".format(a2=a2, a3=a3, a4=a4, a5=a5))
    a.I("v_and_b32 v{a5}, 3, v{a4}".format(a2=a2, a3=a3, a4=a4, a5=a5))
    a.I("v_mul_u32_u24 v{a5}, %d, v{a5}".format(a2=a2, a3=a3, a4=a4, a5=a5) % CS)
    a.I("v_lshrrev_b32 v{a4}, 2, v{a4}".format(a2=a2, a3=a3, a4=a4, a5=a5))
    a.I("v_lshlrev_b32 v{a4}, 3, v{a4}".format(a2=a2, a3=a3, a4=a4, a5=a5))
    a.I("v_sub_u32 v{a5}, v{a5}, v{a4}".format(a2=a2, a3=a3, a4=a4, a5=a5))
    a.I("v_lshl_add_u32 v{a5}, v{a3}, 4, v{a5}".format(a2=a2, a3=a3, a4=a4, a5=a5))
    a.I("s_mul_i32 s3, s%d, %d".format(a2=a2, a3=a3, a4=a4, a5=a5) % (sCH, TS))
    a.I("s_add_u32 s3, s3, %d".format(a2=a2, a3=a3, a4=a4, a5=a5) % (T_OFF + 32))
    a.I("v_add_u32 v%d, s3, v{a5}".format(a2=a2, a3=a3, a4=a4, a5=a5) % vCA)
    a.I("v_lshlrev_b32 v{a4}, 5, v{a2}".format(a2=a2, a3=a3, a4=a4, a5=a5))
    a.I("v_lshlrev_b32 v{a5}, 4, v{a3}".format(a2=a2, a3=a3, a4=a4, a5=a5))
    a.I("v_sub_u32 v{a5}, v{a5}, v{a4}".format(a2=a2, a3=a3, a4=a4, a5=a5))
    a.I("s_mul_i32 s3, s%d, %d".format(a2=a2, a3=a3, a4=a4, a5=a5) % (sCH, RS))
    a.I("s_add_u32 s3, s3, %d".format(a2=a2, a3=a3, a4=a4, a5=a5) % (R_OFF + 480))
    a.I("v_add_u32 v%d, s3, v{a5}".format(a2=a2, a3=a3, a4=a4, a5=a5) % vCB)
    a.I("v_mul_u32_u24 v{a5}, 144, v{a3}".format(a2=a2, a3=a3, a4=a4, a5=a5))
    a.I("v_lshl_add_u32 v{a5}, v{a2}, 3, v{a5}".format(a2=a2, a3=a3, a4=a4, a5=a5))
    a.I("s_mul_i32 s3, s%d, %d".format(a2=a2, a3=a3, a4=a4, a5=a5) % (sCH, YS))
    a.I("s_add_u32 s3, s3, %d".format(a2=a2, a3=a3, a4=a4, a5=a5) % Y_OFF)
    a.I("v_add_u32 v%d, s3, v{a5}".format(a2=a2, a3=a3, a4=a4, a5=a5) % vCY)
    a.I("s_lshl_b32 s3, s%d, 2".format(a2=a2, a3=a3, a4=a4, a5=a5) % sCH)
    a.I("s_add_u32 s3, s3, %d".format(a2=a2, a3=a3, a4=a4, a5=a5) % CNT_OFF)
    a.I("v_mov_b32 v%d, s3".format(a2=a2, a3=a3, a4=a4, a5=a5) % vCF)
    a.I("v_mov_b32 v%d, 1".format(a2=a2, a3=a3, a4=a4, a5=a5) % vONE)
    a.I("v_and_b32 v{a2}, 3, v1".format(a2=a2, a3=a3, a4=a4, a5=a5))
    a.I("v_lshlrev_b32 v{a2}, 8, v{a2}".format(a2=a2, a3=a3, a4=a4, a5=a5))
    a.I("v_add_u32 v%d, %d, v{a2}".format(a2=a2, a3=a3, a4=a4, a5=a5) % (vGATE, GATE_OFF))
    a.I("v_mov_b32 v%d, s%d".format(a2=a2, a3=a3, a4=a4, a5=a5) % (vTHR, sISB))


def conv_order():
    merge = cfg["merge"]
    order = []
    for ph, (tlo, thi, dlo, dhi) in enumerate(cfg["phases"]):
        mg = merge[ph]
        top = thi - 1
        for rho in range(8 - mg):
            order += [(ph, rho, i, d) for i in range(top + 1) for d in range(dhi - 1, dlo - 1, -1) if tlo <= i + d < thi]
        for t in range(tlo, thi):
            for rho in range(8 - mg, 8):
                order += [(ph, rho, t - d, d) for d in range(min(dhi - 1, t), dlo - 1, -1)]
    assert len(order) == 288 and len(set((r, i, d) for _, r, i, d in order)) == 288
    return order


def gen_conv(a):
    a.label("L_CONV")
    if cfg.get("prio", 1):
        a.I("s_setprio 2")
    q = LdsQueue(a)
    lag, margin, look = cfg["lag"], cfg["margin"], cfg["look"]
    order = conv_order()
    N = len(order)
    first, last = {}, {}
    seq = []
    for g, (ph, rho, i, d) in enumerate(order):
        for o in ((ph, "A", rho, i), (ph, "B", rho, d)):
            if o not in first:
                first[o] = g
                seq.append(o)
            last[o] = g
    tile_last = {}
    for g, (ph, rho, i, d) in enumerate(order):
        tile_last[i + d] = g
    loads = []
    for o in seq:
        n = 2 if o[1] == "A" else 1
        for h in range(n):
            loads.append((o, h, h == n - 1))
    free = list(range(NPOOL))
    quad, loaded = {}, {}
    st = {"lp": 0, "dbl": 0, "maxlive": 0}

    def can_load():
        if st["lp"] >= len(loads):
            return False
        o, h, _ = loads[st["lp"]]
        return h > 0 or len(free) > 0

    def do_load():
        if gate_ops():
            return
        o, h, lastp = loads[st["lp"]]
        st["lp"] += 1
        if h == 0:
            quad[o] = POOL0 + 4 * free.pop(0)
            st["maxlive"] = max(st["maxlive"], NPOOL - len(free))
        r = quad[o]
        ph, kind, rho, idx = o
        if kind == "A":
            t = "ds_read_b64 %s, v%d offset:%d" % (vp(r + 2 * h), vCA, 64 * rho + 512 * idx + 8 * h)
        else:
            t = "ds_read_b128 %s, v%d offset:%d" % (v4(r), vCB, 64 * rho + 512 * (7 - idx))
        ix = q.op(t)
        if lastp:
            loaded[o] = ix

    gate_at = min(k for k, (o, h, _) in enumerate(loads) if o[1] == "B" and o[3] >= 4)
    gate_pre = max(0, gate_at - 8)
    gst = {}

    def gate_ops():
        if not cfg.get("gate"):
            return False
        if st["lp"] == gate_pre and "rd" not in gst:
            gst["rd"] = q.op("ds_read_b32 v12, v%d" % vGATE)
            return True
        if st["lp"] == gate_at and "ok" not in gst:
            gst["ok"] = 1
            q.wait_for(gst["rd"])
            a.I("v_cmp_lt_u32 vcc, v12, v%d" % vTHR)
            a.I("s_nop 1")
            a.I("s_cbranch_vccz L_gate_ok")
            a.label("L_gate_spin")
            a.I("s_sleep 1")
            a.I("ds_read_b32 v12, v%d" % vGATE)
            a.I("s_waitcnt lgkmcnt(0)")
            a.I("v_cmp_lt_u32 vcc, v12, v%d" % vTHR)
            a.I("s_nop 1")
            a.I("s_cbranch_vccnz L_gate_spin")
            a.label("L_gate_ok")
            stamp(a, 8)
        return False

    def next_first():
        return first[loads[st["lp"]][0]] if st["lp"] < len(loads) else 1 << 30

    extras = []
    for n_, t in enumerate(sorted(tile_last, key=lambda t: tile_last[t])):
        r = vCV + 2 * (n_ % 4)
        g0 = tile_last[t] + 4

        def f1(t=t, r=r):
            a.I("v_cvt_pk_bf16_f32 v%d, v%d, v%d" % (r, ACC + 4 * t, ACC + 4 * t + 1))
            a.I("v_cvt_pk_bf16_f32 v%d, v%d, v%d" % (r + 1, ACC + 4 * t + 2, ACC + 4 * t + 3))

        def f2(t=t, r=r):
            q.op("ds_write_b64 v%d, %s offset:%d" % (vCY, vp(r), 576 * t))

        def f3(t=t):
            a.I("s_mov_b64 exec, 1")
            q.op("ds_add_u32 v%d, v%d" % (vCF, vONE))
            a.I("s_mov_b64 exec, -1")
        extras += [(g0, f1), (g0 + 1, f2), (g0 + 2, f3)]
    while next_first() <= cfg.get("pre", 2):
        do_load()
    started = set()
    for g, (ph, rho, i, d) in enumerate(order):
        oa, ob = (ph, "A", rho, i), (ph, "B", rho, d)
        assert oa in loaded and ob in loaded, (g, oa, ob)
        q.wait_for(max(loaded[oa], loaded[ob]), lag)
        t = i + d
        acc = ACC + 4 * t
        c = v4(acc) if t in started else "0"
        started.add(t)
        a.I("v_mfma_f32_16x16x32_bf16 %s, %s, %s, %s" % (v4(acc), v4(quad[oa]), v4(quad[ob]), c))
        for o in (oa, ob):
            if last[o] == g:
                free.append((quad[o] - POOL0) // 4)
        n = 0
        urgent = can_load() and next_first() - g <= margin
        if not urgent and extras and extras[0][0] <= g:
            extras.pop(0)[1]()
            n = 1
        elif can_load() and next_first() - g <= look:
            do_load()
            n = 1
        while can_load() and next_first() - g <= min(margin, cfg.get("hard", 4)):
            do_load()
            n += 1
        if n > 1:
            st["dbl"] += n - 1
            st.setdefault("where", []).append(g)
        if g == tile_last[cfg["p1"] - 1] + 8:
            stamp(a, 5)
    for _, f in extras:
        f()
    print("conv: loads", len(loads), "doubled", st["dbl"], "max live quads", st["maxlive"], "left extras", len(extras), st.get("where"))
    stamp(a, 6)
    stamp_flush(a)
    a.I("s_endpgm")


vHQ = 168
sQO, sOO = 64, 8
vHY = 32
vHT = 48
vHQU = 184
vHR, vHO, vHI, vHC = 4, 5, 6, 7


def help_rows(a):
    a.I("s_lshl_b32 s3, s%d, 6" % sCH)
    a.I("v_add_u32 v2, s3, v1")
    a.I("s_lshl_b32 s3, s%d, 3" % sGRP)
    a.I("v_mul_u32_u24 v%d, 896, v2" % vHI)
    a.I("v_add_u32 v%d, s3, v%d" % (vHI, vHI))
    a.I("s_mul_i32 s%d, s%d, 896" % (sT0, sISB))
    a.I("s_add_u32 s3, s3, s%d" % sT0)
    a.I("v_mul_u32_u24 v%d, 1792, v2" % vHO)
    a.I("v_add_u32 v%d, s3, v%d" % (vHO, vHO))
    for t in range(8):
        a.I("s_mov_b32 s%d, %d" % (sQO + t, t * 256 * 896))
        a.I("s_mov_b32 s%d, %d" % (sOO + t, t * 256 * 1792))


def help_qloads(a, lo, hi):
    if cfg.get("noq"):
        return
    for t in range(lo, hi):
        a.I("buffer_load_dwordx2 %s, v%d, %s, s%d offen" % (vp(vHQ + 2 * t), vHI, s4(SRD_IN), sQO + t))


def gen_help(a):
    a.label("L_HELP")
    help_rows(a)
    a.label("L_HELP2")
    if cfg.get("hprio", 0):
        a.I("s_setprio %d" % cfg["hprio"])
    a.I("v_bfe_u32 v2, v1, 2, 2")
    a.I("v_mul_u32_u24 v2, %d, v2" % YS)
    a.I("v_and_b32 v3, 3, v1")
    a.I("v_mul_u32_u24 v3, 144, v3")
    a.I("v_add_u32 v2, v2, v3")
    a.I("v_lshrrev_b32 v3, 4, v1")
    a.I("v_lshl_add_u32 v2, v3, 3, v2")
    a.I("s_lshl_b32 s3, s%d, 5" % sCH)
    a.I("s_add_u32 s3, s3, %d" % Y_OFF)
    a.I("v_add_u32 v%d, s3, v2" % vHR)
    a.I("v_and_b32 v2, 3, v1")
    a.I("v_lshlrev_b32 v2, 2, v2")
    a.I("v_add_u32 v%d, %d, v2" % (vHC, CNT_OFF))
    a.I("s_cmp_eq_u32 s%d, 0" % sISB)
    a.I("s_cbranch_scc1 L_HA")
    for isb in (1, 0):
        if not isb:
            a.label("L_HA")
        nst = 0
        for t in range(8):
            lab = "L_hp%d_%d" % (isb, t)
            if isb:
                a.I("s_waitcnt vmcnt(%d)" % (7 - t + nst if not cfg.get("noq") else 63))
                for h in range(2):
                    qq, T = vHQ + 2 * t + h, vHQU + 4 * t + 2 * h
                    a.I("v_lshlrev_b32 v%d, 16, v%d" % (T, qq))
                    a.I("v_and_b32 v%d, 0xffff0000, v%d" % (T + 1, qq))
            a.label(lab)
            a.I("ds_read_b32 v8, v%d" % vHC)
            a.I("s_waitcnt lgkmcnt(0)")
            a.I("v_cmp_ge_u32 vcc, %d, v8" % t)
            a.I("s_nop 1")
            a.I("s_cbranch_vccz %s_go" % lab)
            a.I("s_sleep %d" % cfg.get("hsleep", 1))
            a.I("s_branch %s" % lab)
            a.label(lab + "_go")
            a.I("ds_read_b64_tr_b16 %s, v%d offset:%d" % (vp(vHY + 2 * t), vHR, 576 * t))
            if cfg.get("hstamps"):
                stamp(a, 10 + 2 * t)
            elif t == cfg["p1"] - 1:
                stamp(a, 5)
            elif t == 7:
                stamp(a, 6)
            a.I("s_waitcnt lgkmcnt(0)")
            if isb:
                for h in range(2):
                    y, T, QU = vHY + 2 * t + h, vHT + 4 * (t & 1) + 2 * h, vHQU + 4 * t + 2 * h
                    a.I("v_lshlrev_b32 v%d, 16, v%d" % (T, y))
                    a.I("v_and_b32 v%d, 0xffff0000, v%d" % (T + 1, y))
                    a.I("v_mul_f32 v%d, v%d, v%d" % (T, T, QU))
                    a.I("v_mul_f32 v%d, v%d, v%d" % (T + 1, T + 1, QU + 1))
                    a.I("v_cvt_pk_bf16_f32 v%d, v%d, v%d" % (y, T, T + 1))
            a.I("buffer_store_dwordx2 %s, v%d, %s, s%d offen %s" % (vp(vHY + 2 * t), vHO, s4(SRD_OUT), sOO + t, cfg["nt_out"]))
            nst += 1
            if cfg.get("hstamps"):
                stamp(a, 11 + 2 * t)
        if cfg["stamps"]:
            a.I("s_waitcnt vmcnt(0)")
            stamp(a, 7)
            stamp_flush(a)
        a.I("s_endpgm")


sWR = 16
sWU = 72


def build_T_from_global(a, vS):
    dpp = "row_mask:0xf bank_mask:0xf"
    for p in range(2):
        a.I("v_mov_b32_dpp v%d, v%d wave_shr:1 %s" % (vS + p, vS + 4 + p, dpp))
        a.I("v_mov_b32_dpp v%d, v%d wave_ror:1 %s" % (vS + 6 + p, vS + 4 + p, dpp))
    for p in range(2):
        a.I("v_mov_b32_dpp v%d, v%d wave_shr:1 %s" % (vS + 6 + p, vS + 10 + p, dpp))
    a.I("s_cmp_eq_u32 s%d, 0" % sHB)
    a.I("s_cselect_b32 s%d, s%d, 0" % (sT3, sT3))
    a.I("v_cmp_eq_u32 vcc, 0, v1")
    a.I("v_mov_b32 v2, s%d" % sT3)
    a.I("v_cndmask_b32 v2, 0, v2, vcc")
    a.I("v_lshlrev_b32 v3, 16, v%d" % (vS + 2))
    a.I("v_add_f32 v3, v3, v2")
    a.I("v_cvt_pk_bf16_f32 v3, v3, v3")
    a.I("s_mov_b32 s3, 0xffff")
    a.I("v_bfi_b32 v%d, s3, v3, v%d" % (vS + 2, vS + 2))
    a.I("s_mul_i32 s3, s%d, %d" % (sCH, TS))
    a.I("s_lshl_b32 s%d, s%d, 11" % (sT0, sHB))
    a.I("s_add_u32 s3, s3, s%d" % sT0)
    a.I("s_add_u32 s3, s3, %d" % (T_OFF + 32))
    a.I("v_lshl_add_u32 v2, v1, 4, s3")
    W = vS + 12
    for u in range(2):
        d = lambda k: vS + 6 * u + 2 + k
        a.I("ds_write_b128 v2, %s offset:%d" % (v4(d(0)), 1024 * u))
        o = W + 12 * u
        for k in range(4):
            a.I("v_alignbit_b32 v%d, v%d, v%d, 16" % (o + k, d(k), d(k - 1)))
        a.I("ds_write_b128 v2, %s offset:%d" % (v4(o), CS + 1024 * u))
        for k in range(4):
            a.I("v_mov_b32 v%d, v%d" % (o + 4 + k, d(k - 1)))
        a.I("ds_write_b128 v2, %s offset:%d" % (v4(o + 4), 2 * CS + 1024 * u))
        for k in range(4):
            a.I("v_alignbit_b32 v%d, v%d, v%d, 16" % (o + 8 + k, d(k - 1), d(k - 2)))
        a.I("ds_write_b128 v2, %s offset:%d" % (v4(o + 8), 3 * CS + 1024 * u))


def load_T_global(a, vS):
    a.I("s_lshl_b32 s3, s%d, 12" % sC)
    a.I("s_add_u32 s%d, s%d, s3" % (SRD_SK, SSK))
    a.I("s_addc_u32 s%d, s%d, 0" % (SRD_SK + 1, SSK + 1))
    a.I("s_mov_b32 s%d, 4096" % (SRD_SK + 2))
    a.I("s_mov_b32 s%d, 0x20000" % (SRD_SK + 3))
    a.I("s_lshl_b32 s3, s%d, 11" % sHB)
    a.I("v_lshl_add_u32 v2, v1, 4, s3")
    a.I("v_add_u32 v3, -8, v2")
    a.I("buffer_load_dwordx4 %s, v2, %s, 0 offen %s" % (v4(vS + 2), s4(SRD_SK), cfg["nt_in"]))
    a.I("buffer_load_dwordx4 %s, v2, %s, 0 offen offset:1024 %s" % (v4(vS + 8), s4(SRD_SK), cfg["nt_in"]))
    a.I("s_mov_b32 exec_lo, 1")
    a.I("s_mov_b32 exec_hi, 0")
    a.I("buffer_load_dwordx2 %s, v3, %s, 0 offen %s" % (vp(vS), s4(SRD_SK), cfg["nt_in"]))
    a.I("s_mov_b64 exec, -1")


def unpack_weights_uniform(a):
    for c in range(4):
        p, e = c >> 1, c & 1
        for t in range(4):
            src = sWR + 2 * c + (t >> 1)
            dst = sWU + 8 * p + 2 * t + e
            if t & 1:
                a.I("s_and_b32 s%d, s%d, 0xffff0000" % (dst, src))
            else:
                a.I("s_lshl_b32 s%d, s%d, 16" % (dst, src))


def kv_compute(a, vK, vVv, vR):
    KU = 100
    VU = 116
    RES = 124
    O = 132
    for p in range(2):
        for r in range(7):
            a.I("v_lshlrev_b32 v%d, 16, v%d" % (KU + 2 * r, vK + 2 * r + p))
            a.I("v_and_b32 v%d, 0xffff0000, v%d" % (KU + 2 * r + 1, vK + 2 * r + p))
        for r in range(4):
            R_ = RES + 2 * r
            a.I("v_pk_mul_f32 %s, %s, %s" % (vp(R_), vp(KU + 2 * r), sp(sWU + 8 * p + 6)))
            for t in (2, 1, 0):
                a.I("v_pk_fma_f32 %s, %s, %s, %s" % (vp(R_), vp(KU + 2 * (r + 3 - t)), sp(sWU + 8 * p + 2 * t), vp(R_)))
        if p == 0:
            a.I("s_waitcnt vmcnt(%d)" % cfg.get("_vwait", 0))
        for r in range(4):
            a.I("v_lshlrev_b32 v%d, 16, v%d" % (VU + 2 * r, vVv + 2 * r + p))
            a.I("v_and_b32 v%d, 0xffff0000, v%d" % (VU + 2 * r + 1, vVv + 2 * r + p))
            a.I("v_pk_mul_f32 %s, %s, %s" % (vp(RES + 2 * r), vp(RES + 2 * r), vp(VU + 2 * r)))
        for e in range(2):
            o = O + 4 * p + 2 * e
            a.I("v_cvt_pk_bf16_f32 v%d, v%d, v%d" % (o, RES + 6 + e, RES + 4 + e))
            a.I("v_cvt_pk_bf16_f32 v%d, v%d, v%d" % (o + 1, RES + 2 + e, RES + e))
            a.I("ds_write_b64 v%d, %s offset:%d" % (vR, vp(o), (2 * p + e) * RS))


def kv_loads(a, vK, vVv, vO, vOH):
    a.I("s_mov_b64 s[%d:%d], exec" % (sT0, sT1))
    a.I("s_mov_b32 exec_lo, 1")
    a.I("s_mov_b32 exec_hi, 0")
    for j in range(3):
        a.I("buffer_load_dwordx2 %s, v%d, %s, 0 offen offset:%d" % (vp(vK + 2 * j), vOH, s4(SRD_K), 896 * j))
    a.I("s_mov_b64 exec, s[%d:%d]" % (sT0, sT1))
    for j in range(4):
        a.I("buffer_load_dwordx2 %s, v%d, %s, 0 offen offset:%d" % (vp(vK + 6 + 2 * j), vO, s4(SRD_K), 896 * j))
    for j in range(4):
        a.I("buffer_load_dwordx2 %s, v%d, %s, 0 offen offset:%d" % (vp(vVv + 2 * j), vO, s4(SRD_V), 896 * j))


def kv_halo(a, vK):
    for j in range(3):
        for p in range(2):
            a.I("v_mov_b32_dpp v%d, v%d wave_shr:1 row_mask:0xf bank_mask:0xf" % (vK + 2 * j + p, vK + 8 + 2 * j + p))


SHUF_OFF = 0
OKS_OFF = RAW_OFF + 17 * 1088
sXCC, sPOLL = 95, 93


STG_K = RAW_OFF
STG_V = Y_OFF + 4 * YS
assert STG_V + 16 * 1088 <= T_OFF and 8 * 2560 <= STG_V and OKS_OFF + 2048 <= CNT_OFF


def gen_B(a):
    a.label("L_B")
    vS = 64
    KK, VV, WR_, WP = 16, 28, 36, 40
    KU, VU, RES, G, IN = 100, 122, 126, 144, 152
    vTo, vTo2, vTh, vSW, vSR, vST, vIL, vRW, vPA, vPV = 48, 49, 50, 51, 52, 53, 54, 55, 60, 61
    SRD_W = 72
    s64K, s8K = 76, 77
    pin = cfg["nt_in"]
    a.I("s_lshl_b32 s3, s%d, 7" % sSUB)
    a.I("s_lshl_b32 s%d, s%d, 4" % (sT0, sW))
    a.I("s_add_u32 s3, s3, s%d" % sT0)
    a.I("s_mul_i32 s3, s3, 896")
    a.I("s_lshl_b32 s%d, s%d, 7" % (sT0, sX))
    a.I("s_add_u32 s3, s3, s%d" % sT0)
    a.I("v_lshrrev_b32 v6, 3, v1")
    a.I("v_mul_u32_u24 v6, 896, v6")
    a.I("v_and_b32 v7, 7, v1")
    a.I("v_lshl_add_u32 v6, v7, 4, v6")
    a.I("v_add_u32 v%d, s3, v6" % vTo)
    a.I("v_add_u32 v%d, 7168, v%d" % (vTo2, vTo))
    a.I("v_add_u32 v%d, %d, v%d" % (vTh, -7168, vTo))
    a.I("s_mul_i32 s%d, s%d, 2176" % (sT4, sW))
    a.I("s_add_u32 s%d, s%d, %d" % (sT4, sT4, STG_K + 1088))
    a.I("v_lshrrev_b32 v3, 4, v1")
    a.I("v_and_b32 v2, 15, v1")
    a.I("s_and_b32 s%d, s%d, 1" % (sT0, sW))
    a.I("s_lshl_b32 s%d, s%d, 4" % (sT0, sT0))
    a.I("v_add_u32 v4, s%d, v2" % sT0)
    a.I("s_lshl_b32 s%d, s%d, 9" % (sT1, sX))
    a.I("v_lshl_add_u32 v5, v4, 4, s%d" % sT1)
    a.I("s_waitcnt lgkmcnt(0)")
    srd(a, SRD_K, K, IN_BYTES)
    srd(a, SRD_V, V, IN_BYTES)
    a.I("s_mov_b32 m0, s%d" % sT4)
    a.I("buffer_load_dwordx4 v%d, %s, 0 offen %s lds" % (vTo, s4(SRD_K), pin))
    a.I("s_sub_u32 m0, s%d, %d" % (sT4, STG_K + 1088 - STG_V))
    a.I("buffer_load_dwordx4 v%d, %s, 0 offen %s lds" % (vTo, s4(SRD_V), pin))
    a.I("s_add_u32 m0, s%d, 1088" % sT4)
    a.I("buffer_load_dwordx4 v%d, %s, 0 offen %s lds" % (vTo2, s4(SRD_K), pin))
    a.I("s_sub_u32 m0, s%d, %d" % (sT4, STG_K - STG_V))
    a.I("buffer_load_dwordx4 v%d, %s, 0 offen %s lds" % (vTo2, s4(SRD_V), pin))
    a.I("s_cmp_lg_u32 s%d, 0" % sW)
    a.I("s_cbranch_scc1 L_B_nh")
    a.I("s_mov_b32 m0, %d" % STG_K)
    a.I("s_mov_b32 exec_lo, 0")
    a.I("s_mov_b32 exec_hi, 0xffffff00")
    a.I("buffer_load_dwordx4 v%d, %s, 0 offen %s lds" % (vTh, s4(SRD_K), pin))
    a.I("s_mov_b64 exec, -1")
    a.label("L_B_nh")
    a.I("global_load_dwordx4 %s, v5, %s" % (v4(WR_), sp(SHK)))
    ssm_first = 0
    a.I("s_lshr_b32 s%d, s%d, 1" % (sT2, sW))
    a.I("s_lshl_b32 s3, s%d, 4" % sSUB)
    a.I("s_lshl_b32 s%d, s%d, 2" % (sT0, sT2))
    a.I("s_add_u32 s3, s3, s%d" % sT0)
    a.I("v_add_u32 v6, s%d, v3" % sT0)
    a.I("v_mul_u32_u24 v6, 1088, v6")
    a.I("v_lshl_add_u32 v6, v4, 2, v6")
    a.I("v_add_u32 v%d, %d, v6" % (vTo, STG_K))
    a.I("v_add_u32 v%d, %d, v6" % (vTo2, STG_V))
    a.I("s_lshr_b32 s%d, s%d, 1" % (sT0, sC))
    a.I("s_lshl_b32 s%d, s%d, 2" % (sT0, sT0))
    a.I("s_load_dword s%d, %s, s%d" % (sT3, sp(SSD), sT0))
    a.I("s_getreg_b32 s%d, hwreg(HW_REG_XCC_ID, 0, 4)" % sXCC)
    a.I("s_add_u32 s%d, s%d, 1" % (sXCC, sXCC))
    a.I("s_mul_i32 s%d, s%d, 2560" % (sT0, sW))
    a.I("s_add_u32 s%d, s%d, %d" % (sT0, sT0, SHUF_OFF))
    a.I("v_mul_u32_u24 v6, 160, v2")
    a.I("v_sub_u32 v7, 3, v3")
    a.I("v_lshl_add_u32 v6, v7, 4, v6")
    a.I("v_add_u32 v%d, s%d, v6" % (vSW, sT0))
    a.I("v_lshrrev_b32 v6, 2, v1")
    a.I("v_and_b32 v7, 3, v1")
    a.I("v_mul_u32_u24 v8, 80, v6")
    a.I("v_lshl_add_u32 v8, v7, 4, v8")
    a.I("v_add_u32 v%d, s%d, v8" % (vSR, sT0))
    a.I("s_sub_u32 s3, 252, s3")
    a.I("s_lshl_b32 s3, s3, 4")
    a.I("s_lshl_b32 s%d, s%d, 18" % (sT0, sX))
    a.I("s_add_u32 s3, s3, s%d" % sT0)
    a.I("s_and_b32 s%d, s%d, 1" % (sT0, sW))
    a.I("s_lshl_b32 s%d, s%d, 17" % (sT0, sT0))
    a.I("s_add_u32 s3, s3, s%d" % sT0)
    a.I("v_lshlrev_b32 v6, 12, v6")
    a.I("v_lshl_add_u32 v6, v7, 4, v6")
    a.I("v_add_u32 v%d, s3, v6" % vST)
    a.I("s_lshl_b32 s3, s%d, 14" % sGRP)
    a.I("v_lshl_add_u32 v%d, v0, 4, s3" % vIL)
    a.I("s_lshl_b32 s%d, s%d, 11" % (sT0, sW))
    a.I("s_add_u32 s3, s3, s%d" % sT0)
    a.I("v_lshl_add_u32 v9, v2, 7, s3")
    a.I("s_lshl_b32 s3, s%d, 5" % sX)
    a.I("v_mov_b32 v10, s3")
    a.I("s_lshl_b32 s%d, s%d, 7" % (sT0, sSUB))
    a.I("s_lshl_b32 s%d, s%d, 4" % (sT1, sW))
    a.I("s_add_u32 s%d, s%d, s%d" % (sT0, sT0, sT1))
    a.I("s_mul_i32 s%d, s%d, 896" % (sT0, sT0))
    a.I("s_lshl_b32 s%d, s%d, 7" % (sT1, sX))
    a.I("s_add_u32 s%d, s%d, s%d" % (sT0, sT0, sT1))
    a.I("v_mul_u32_u24 v11, 896, v2")
    a.I("v_add_u32 v11, s%d, v11" % sT0)
    if cfg.get("b0", 1) == 1:
        a.I("s_barrier")
    nlate = 1
    if not cfg.get("noinpf"):
        a.I("global_load_dword v%d, v9, %s %s" % (vDUMMY, sp(WS), cfg["nt_pf"]))
        nlate += 1
    a.I("global_load_dword v%d, v10, %s" % (vDUMMY, sp(DBG)))
    if not ssm_first:
        load_T_global(a, vS)
        nlate += 3
    if cfg.get("qpf", 0) == 0:
        a.I("global_load_dword v%d, v11, %s %s" % (vDUMMY, sp(Q), cfg["nt_pf"]))
        nlate += 1
    stamp(a, 0)
    srd(a, SRD_IN, Q, IN_BYTES)
    srd(a, SRD_OUT, OUT, OUT_BYTES)
    srd(a, SRD_W, WS, IN_BYTES)
    a.I("s_mov_b32 s%d, 65536" % s64K)
    a.I("s_mov_b32 s%d, 8192" % s8K)
    zero_quad(a, 56)
    zero_counters(a, 56, 4)
    zero_T_pads(a, 56, 9, 10)
    a.I("v_and_b32 v2, 255, v0")
    a.I("v_lshlrev_b32 v2, 4, v2")
    a.I("s_mul_i32 s3, s%d, %d" % (sHB, RS))
    a.I("s_add_u32 s3, s3, %d" % R_OFF)
    a.I("v_add_u32 v%d, s3, v2" % vRW)
    a.I("s_lshl_b32 s3, s%d, 5" % sX)
    a.I("s_add_u32 s3, s3, 15")
    a.I("s_lshl_b32 s%d, s%d, 2" % (sT0, sCH))
    a.I("s_sub_u32 s3, s3, s%d" % sT0)
    a.I("v_lshrrev_b32 v3, 4, v1")
    a.I("v_sub_u32 v%d, s3, v3" % vPA)
    a.I("s_and_b32 s3, s%d, 1" % sC)
    a.I("s_lshl_b32 s3, s3, 4")
    a.I("s_waitcnt lgkmcnt(0)")
    a.I("s_lshr_b32 s%d, s%d, s3" % (sT3, sT3))
    a.I("s_lshl_b32 s%d, s%d, 16" % (sT3, sT3))
    a.I("s_waitcnt vmcnt(%d)" % nlate)
    a.I("s_barrier")
    stamp(a, 1)
    q = LdsQueue(a)
    rd = {}
    for j in range(3):
        rd["h"] = q.op("ds_read_b32 v%d, v%d offset:%d" % (KK + j, vTo, 640 + 128 * j))
    for j in range(8):
        q.op("ds_read_b32 v%d, v%d offset:%d" % (KK + 3 + j, vTo, 1088 + 128 * j))
        rd[j] = q.op("ds_read_b32 v%d, v%d offset:%d" % (VV + j, vTo2, 128 * j))
        if j == 5:
            break
    a.I("v_lshlrev_b32 v%d, 16, v%d" % (WP + 0, WR_ + 0))
    a.I("v_lshlrev_b32 v%d, 16, v%d" % (WP + 1, WR_ + 2))
    a.I("v_and_b32 v%d, 0xffff0000, v%d" % (WP + 2, WR_ + 0))
    a.I("v_and_b32 v%d, 0xffff0000, v%d" % (WP + 3, WR_ + 2))
    a.I("v_lshlrev_b32 v%d, 16, v%d" % (WP + 4, WR_ + 1))
    a.I("v_lshlrev_b32 v%d, 16, v%d" % (WP + 5, WR_ + 3))
    a.I("v_and_b32 v%d, 0xffff0000, v%d" % (WP + 6, WR_ + 1))
    a.I("v_and_b32 v%d, 0xffff0000, v%d" % (WP + 7, WR_ + 3))

    def unp(dst, src):
        a.I("v_lshlrev_b32 v%d, 16, v%d" % (dst, src))
        a.I("v_and_b32 v%d, 0xffff0000, v%d" % (dst + 1, src))
    q.wait_for(rd["h"])
    for j in range(3):
        unp(KU + 2 * j, KK + j)
    for j in (6, 7):
        q.op("ds_read_b32 v%d, v%d offset:%d" % (KK + 3 + j, vTo, 1088 + 128 * j))
        rd[j] = q.op("ds_read_b32 v%d, v%d offset:%d" % (VV + j, vTo2, 128 * j))
    for r in range(8):
        if r % 2 == 0:
            q.wait_for(rd[r + 1])
        R_ = RES + 2 * r
        unp(KU + 2 * (r + 3), KK + 3 + r)
        a.I("v_pk_mul_f32 %s, %s, %s" % (vp(R_), vp(KU + 2 * r), vp(WP + 6)))
        vu = VU + 2 * (r & 1)
        unp(vu, VV + r)
        for t in (2, 1, 0):
            a.I("v_pk_fma_f32 %s, %s, %s, %s" % (vp(R_), vp(KU + 2 * (r + 3 - t)), vp(WP + 2 * t), vp(R_)))
        a.I("v_pk_mul_f32 %s, %s, %s" % (vp(R_), vp(R_), vp(vu)))
        if r & 1:
            for e in range(2):
                a.I("v_cvt_pk_bf16_f32 v%d, v%d, v%d" % (G + 4 * e + 3 - (r >> 1), R_ + e, R_ - 2 + e))
    a.I("ds_write_b128 v%d, %s" % (vSW, v4(G)))
    a.I("ds_write_b128 v%d, %s offset:80" % (vSW, v4(G + 4)))
    a.I("ds_read_b128 %s, v%d" % (v4(IN), vSR))
    a.I("ds_read_b128 %s, v%d offset:1280" % (v4(IN + 4), vSR))
    a.I("s_waitcnt lgkmcnt(1)")
    a.I("buffer_store_dwordx4 %s, v%d, %s, 0 offen" % (v4(IN), vST, s4(SRD_W)))
    a.I("s_waitcnt lgkmcnt(0)")
    a.I("buffer_store_dwordx4 %s, v%d, %s, s%d offen" % (v4(IN + 4), vST, s4(SRD_W), s64K))
    stamp(a, 2)
    if not ssm_first:
        a.I("s_waitcnt vmcnt(%d)" % (2 + (1 if cfg.get("qpf", 0) == 0 else 0)))
        build_T_from_global(a, vS)
    a.I("s_waitcnt vmcnt(0)")
    a.I("s_barrier")
    a.I("s_cmp_lg_u32 s%d, 0" % sW)
    a.I("s_cbranch_scc1 L_B_nf")
    a.I("s_lshl_b32 s3, s%d, 5" % sX)
    a.I("s_add_u32 s3, s3, s%d" % sSUB)
    a.I("v_mov_b32 v2, s3")
    a.I("v_mov_b32 v3, s%d" % sXCC)
    a.I("global_store_byte v2, v3, %s" % sp(DBG))
    a.label("L_B_nf")
    stamp(a, 3)
    zero_R_pad(a, 56, 2)
    a.I("s_cmp_eq_u32 s%d, 0" % sHB)
    a.I("s_cbranch_scc0 L_B_j1")
    conv_addr(a)
    a.I("s_branch L_B_j2")
    a.label("L_B_j1")
    help_rows(a)
    a.label("L_B_j2")
    if cfg.get("qpf", 0) == 1:
        a.I("global_load_dword v%d, v11, %s %s" % (vDUMMY, sp(Q), cfg["nt_pf"]))
    if cfg.get("qpf", 0) == 2:
        pass
    a.I("s_movk_i32 s%d, %d" % (sPOLL, cfg.get("polls", 64)))
    a.label("L_B_poll")
    a.I("global_load_ubyte v%d, v%d, %s sc1" % (vPV, vPA, sp(DBG)))
    a.I("s_waitcnt vmcnt(0)")
    a.I("v_cmp_ne_u32 vcc, s%d, v%d" % (sXCC, vPV))
    a.I("s_nop 1")
    a.I("s_cbranch_vccz L_B_got")
    a.I("s_sub_u32 s%d, s%d, 1" % (sPOLL, sPOLL))
    a.I("s_cmp_lg_u32 s%d, 0" % sPOLL)
    a.I("s_cbranch_scc1 L_B_poll")
    a.I("v_mov_b32 v2, 1")
    a.I("s_branch L_B_join")
    a.label("L_B_got")
    stamp(a, 8)
    a.I("buffer_load_dwordx4 %s, v%d, %s, 0 offen sc1" % (v4(IN), vIL, s4(SRD_W)))
    a.I("buffer_load_dwordx4 %s, v%d, %s, s%d offen sc1" % (v4(IN + 4), vIL, s4(SRD_W), s8K))
    a.I("v_mov_b32 v2, %d" % cfg.get("forcefb", 0))
    a.I("s_waitcnt vmcnt(1)")
    a.I("ds_write_b128 v%d, %s" % (vRW, v4(IN)))
    a.I("s_waitcnt vmcnt(0)")
    a.I("ds_write_b128 v%d, %s offset:%d" % (vRW, v4(IN + 4), 2 * RS))
    a.label("L_B_join")
    a.I("s_lshl_b32 s3, s%d, 8" % sW)
    a.I("s_add_u32 s3, s3, %d" % OKS_OFF)
    a.I("v_lshl_add_u32 v3, v1, 2, s3")
    a.I("ds_write_b32 v3, v2")
    a.I("v_and_b32 v3, 7, v1")
    a.I("v_lshlrev_b32 v3, 8, v3")
    a.I("v_add_u32 v3, %d, v3" % OKS_OFF)
    a.I("s_waitcnt lgkmcnt(0)")
    a.I("s_barrier")
    a.I("ds_read_b32 v2, v3")
    a.I("s_waitcnt lgkmcnt(0)")
    a.I("v_cmp_ne_u32 vcc, 0, v2")
    a.I("s_nop 1")
    a.I("s_cbranch_vccnz L_B_fb")
    a.label("L_B_go")
    stamp(a, 4)
    if cfg["dump"]:
        dump_lds(a)
    a.I("s_cmp_eq_u32 s%d, 0" % sHB)
    a.I("s_cbranch_scc1 L_CONV")
    help_qloads(a, 0, 8)
    a.I("s_branch L_HELP2")
    a.label("L_B_fb")
    vK, vVv, vO, vOH, vR = 144, 158, 40, 41, 42
    a.I("s_lshl_b32 s3, s%d, 5" % sGRP)
    a.I("s_load_dwordx8 s[%d:%d], %s, s3" % (16, 23, sp(SHK)))
    a.I("s_lshl_b32 s3, s%d, 3" % sGRP)
    a.I("v_mul_u32_u24 v24, 3584, v0")
    a.I("v_add_u32 v%d, s3, v24" % vO)
    a.I("v_add_u32 v%d, %d, v%d" % (vOH, -2688, vO))
    a.I("v_cmp_eq_u32 vcc, 0, v0")
    a.I("v_bfrev_b32 v2, 1")
    a.I("v_cndmask_b32 v%d, v%d, v2, vcc" % (vOH, vOH))
    a.I("v_lshlrev_b32 v3, 3, v0")
    a.I("v_sub_u32 v%d, %d, v3" % (vR, R_OFF + 4088))
    kv_loads(a, vK, vVv, vO, vOH)
    a.I("s_waitcnt lgkmcnt(0)")
    unpack_weights_uniform(a)
    a.I("s_waitcnt vmcnt(4)")
    kv_halo(a, vK)
    cfg["_vwait"] = 0
    kv_compute(a, vK, vVv, vR)
    a.I("s_waitcnt lgkmcnt(0)")
    a.I("s_barrier")
    a.I("s_branch L_B_go")


HEADER = open("cdna_kernels/%s.s.ref" % NAME).read().split("; Override launch geometry")[0]


def build():
    a = Asm()
    gen_entry(a)
    gen_A(a)
    gen_B(a)
    gen_conv(a)
    gen_help(a)
    a.label("L_end")
    a.I("s_endpgm")
    a.label("L_codeend")
    body = a.finalize()
    txt = HEADER
    txt += "; @launch grid=(256,1,1) block=(512,1,1) lds=%d\n" % LDS_SIZE
    txt += '.amdgcn_target "amdgcn-amd-amdhsa--gfx950"\n.text\n.globl %s_kernel\n.p2align 8\n.type %s_kernel,@function\n%s_kernel:\n' % (NAME, NAME, NAME)
    txt += body
    txt += """.section .rodata,"a"
.p2align 6
.amdhsa_kernel %s_kernel
  .amdhsa_next_free_vgpr %d
  .amdhsa_next_free_sgpr 102
  .amdhsa_accum_offset %d
  .amdhsa_group_segment_fixed_size 0
  .amdhsa_kernarg_size 128
  .amdhsa_user_sgpr_count 2
  .amdhsa_user_sgpr_kernarg_segment_ptr 1
  .amdhsa_system_sgpr_workgroup_id_x 1
  .amdhsa_float_denorm_mode_32 3
.end_amdhsa_kernel
""" % (NAME, NVGPR if not cfg["stamps"] else 232, NVGPR if not cfg["stamps"] else 232)
    return txt, a


if __name__ == "__main__":
    out = sys.argv[1]
    for kv in sys.argv[2:]:
        k, v = kv.split("=", 1)
        try:
            v = json.loads(v)
        except Exception:
            pass
        cfg[k] = v
    txt, a = build()
    open(out, "w").write(txt)
    print("instructions:", a.count(), "auto nops:", a.nops)
```

```python
import sys
import json
from asmgen import Asm, LdsQueue

NAME = "concat_heads__ssm_conv_s4d__ssm_conv_h3__prompt"

cfg = dict(
    stamps=0,
    dump=None,
    nt_in="nt",
    nt_pf="nt",
    nt_out="",
    codepf=2,
    lag=10,
    margin=10,
    look=40,
    phases=[[0, 4, 0, 8], [4, 8, 0, 8]],
    merge=[1, 2],
    p1=4,
    ul=[0.2, 0.35, 0.5, 0.65],
    uc=[0.55, 0.7, 0.85, 1.0],
    pre=10,
    hard=9,
)

ROWB = 2064
CS = 4160
TS = 4 * CS + 32
RS = 4576
YS = 4672
R_OFF = 0
Y_OFF = 4 * RS
T_OFF = 33 * ROWB
RAW_OFF = T_OFF + 4 * TS
RAWS = 2080
RED_OFF = RAW_OFF + 8 * RAWS
CNT_OFF = RED_OFF + 4 * 3072
LDS_SIZE = CNT_OFF + 16
GATE_OFF = CNT_OFF
assert LDS_SIZE <= 163840 and Y_OFF + 4 * YS <= T_OFF
IN_BYTES = 2048 * 896
OUT_BYTES = 2048 * 1792

sX, sSUB, sGRP, sW = 4, 5, 6, 7
U, LAR, AIM, CR, CI, LDT, DSK, Q = 8, 10, 12, 14, 16, 18, 20, 22
K, V, SHK, SSK, SSD, OUT, DBG, WS = 24, 26, 28, 30, 32, 34, 36, 38
sPC = 40
sT0, sT1 = 42, 43
SRD_OUT, SRD_IN, SRD_K, SRD_V, SRD_SK = 44, 48, 52, 56, 60
sCH, sHB, sC, sT2, sT3, sT4, sISB = 88, 89, 90, 91, 92, 93, 94
sST = 96
vSTAMP = 224
vDUMMY = 225
NVGPR = 232


def sp(n):
    return "s[%d:%d]" % (n, n + 1)


def s4(n):
    return "s[%d:%d]" % (n, n + 3)


def vp(n):
    assert n % 2 == 0
    return "v[%d:%d]" % (n, n + 1)


def v4(n):
    assert n % 2 == 0
    return "v[%d:%d]" % (n, n + 3)


def stamp(a, idx):
    if cfg["stamps"] and (cfg.get("only") is None or idx in cfg["only"]):
        a.I("s_memrealtime %s" % sp(sST))
        a.I("s_memtime %s" % sp(sST + 2))
        a.I("s_waitcnt lgkmcnt(0)")
        a.I("v_writelane_b32 v%d, s%d, %d" % (vSTAMP, sST, idx))
        a.I("v_writelane_b32 v%d, s%d, %d" % (vSTAMP, sST + 2, idx + 32))


def stamp_flush(a):
    if cfg["stamps"]:
        a.I("s_lshl_b32 s%d, s2, 11" % sT0)
        a.I("s_lshl_b32 s%d, s%d, 8" % (sT1, sW))
        a.I("s_add_u32 s%d, s%d, s%d" % (sT0, sT0, sT1))
        a.I("s_add_u32 s%d, s%d, 0x1000000" % (sT0, sT0))
        a.I("v_lshl_add_u32 v2, v1, 2, s%d" % sT0)
        if cfg["stamps"] == 3:
            lab = "L_amp%d" % len(a.items)
            a.I("s_lshl_b32 s%d, s%d, 8" % (sT1, sW))
            a.I("s_or_b32 s%d, s2, s%d" % (sT0, sT1))
            a.I("s_cmp_eq_u32 s%d, %d" % (sT0, 0x400 + cfg["amp_wg"]))
            a.I("s_cbranch_scc0 %s" % lab)
            a.I("v_readlane_b32 s%d, v%d, %d" % (sT0, vSTAMP, cfg["amp_from"]))
            a.I("v_readlane_b32 s%d, v%d, %d" % (sT1, vSTAMP, cfg["amp_to"]))
            a.I("s_nop 4")
            a.I("s_sub_u32 s%d, s%d, s%d" % (sT0, sT1, sT0))
            a.I("s_mul_i32 s%d, s%d, 10" % (sT0, sT0))
            a.I("s_memrealtime %s" % sp(sST))
            a.I("s_waitcnt lgkmcnt(0)")
            a.I("s_mov_b32 s%d, s%d" % (sT1, sST))
            a.label(lab + "l")
            a.I("s_sleep 2")
            a.I("s_memrealtime %s" % sp(sST))
            a.I("s_waitcnt lgkmcnt(0)")
            a.I("s_sub_u32 s3, s%d, s%d" % (sST, sT1))
            a.I("s_cmp_lt_u32 s3, s%d" % sT0)
            a.I("s_cbranch_scc1 %sl" % lab)
            a.label(lab)
        elif cfg["stamps"] == 2:
            lab = "L_nodbg%d" % len(a.items)
            a.I("s_and_b32 s%d, s2, 0xfffffff7" % sT0)
            a.I("s_lshl_b32 s%d, s%d, 8" % (sT1, sW))
            a.I("s_or_b32 s%d, s%d, s%d" % (sT0, sT0, sT1))
            a.I("s_cmp_eq_u32 s%d, 0x400" % sT0)
            a.I("s_cbranch_scc0 %s" % lab)
            a.I("s_lshl_b32 s%d, s2, 2" % sT0)
            a.I("v_lshl_add_u32 v2, v1, 2, s%d" % sT0)
            a.I("s_mov_b32 exec_lo, 0xff")
            a.I("s_mov_b32 exec_hi, 0")
            a.I("global_store_dword v2, v%d, %s" % (vSTAMP, sp(DBG)))
            a.label(lab)
        else:
            a.I("global_store_dword v2, v%d, %s" % (vSTAMP, sp(WS)))


def srd(a, dst, ptr, nbytes):
    a.I("s_mov_b32 s%d, s%d" % (dst, ptr))
    a.I("s_mov_b32 s%d, s%d" % (dst + 1, ptr + 1))
    a.I("s_mov_b32 s%d, %d" % (dst + 2, nbytes))
    a.I("s_mov_b32 s%d, 0x20000" % (dst + 3))


def dump_lds(a):
    a.I("s_mul_i32 s%d, s2, 163840" % sT0)
    a.I("v_lshlrev_b32 v2, 4, v0")
    a.I("v_add_u32 v3, s%d, v2" % sT0)
    for j in range(LDS_SIZE // 8192 + 1):
        a.I("ds_read_b128 v[4:7], v2")
        a.I("s_waitcnt lgkmcnt(0)")
        a.I("global_store_dwordx4 v3, v[4:7], %s" % sp(WS))
        a.I("s_waitcnt vmcnt(0)")
        a.I("v_add_u32 v2, 8192, v2")
        a.I("v_add_u32 v3, 8192, v3")
    a.I("s_barrier")


def gen_entry(a):
    a.I("s_load_dwordx16 s[8:23], s[0:1], 0")
    a.I("s_load_dwordx16 s[24:39], s[0:1], 64")
    a.I("s_cmp_ge_u32 s2, 256")
    a.I("s_cbranch_scc1 L_end")
    a.I("s_and_b32 s%d, s2, 7" % sX)
    a.I("s_cmp_eq_u32 s%d, 7" % sX)
    a.I("s_cbranch_scc1 L_end")
    if cfg["codepf"]:
        a.I("s_getpc_b64 %s" % sp(sPC))
        a.label("L_pc")
        if cfg["codepf"] == 1:
            a.I("v_lshlrev_b32 v2, 7, v0")
        else:
            a.I("s_and_b32 s3, s2, 0xf8")
            a.I("v_and_b32 v2, 7, v0")
            a.I("v_add_u32 v2, s3, v2")
            a.I("v_lshlrev_b32 v2, 7, v2")
        a.I("v_min_u32 v2, L_codeend-L_pc-4, v2")
        a.I("global_load_dword v%d, v2, %s" % (vDUMMY, sp(sPC)))
    if cfg["stamps"]:
        a.I("v_mov_b32 v%d, 0" % vSTAMP)
        a.I("s_memrealtime %s" % sp(sST))
        a.I("s_waitcnt lgkmcnt(0)")
        a.I("v_writelane_b32 v%d, s%d, 9" % (vSTAMP, sST))
    a.I("v_lshrrev_b32 v2, 6, v0")
    a.I("v_and_b32 v1, 63, v0")
    a.I("v_readfirstlane_b32 s%d, v2" % sW)
    a.I("s_lshr_b32 s3, s2, 3")
    a.I("s_lshr_b32 s%d, s3, 1" % sSUB)
    a.I("s_lshl_b32 s%d, s%d, 4" % (sGRP, sX))
    a.I("s_add_u32 s%d, s%d, s%d" % (sGRP, sGRP, sSUB))
    a.I("s_and_b32 s%d, s3, 1" % sISB)
    a.I("s_and_b32 s%d, s%d, 3" % (sCH, sW))
    a.I("s_lshr_b32 s%d, s%d, 2" % (sHB, sW))
    a.I("s_lshl_b32 s%d, s%d, 2" % (sC, sGRP))
    a.I("s_add_u32 s%d, s%d, s%d" % (sC, sC, sCH))
    a.I("s_cmp_eq_u32 s%d, 1" % sISB)
    a.I("s_cbranch_scc1 L_B")


def zero_quad(a, q):
    for i in range(4):
        a.I("v_mov_b32 v%d, 0" % (q + i))


def zero_R_pad(a, zq, tmp):
    a.I("s_mul_i32 s%d, s%d, %d" % (sT0, sCH, RS))
    a.I("s_add_u32 s%d, s%d, %d" % (sT0, sT0, R_OFF + 4096))
    a.I("v_min_u32 v%d, 29, v1" % tmp)
    a.I("v_lshl_add_u32 v%d, v%d, 4, s%d" % (tmp, tmp, sT0))
    a.I("ds_write_b128 v%d, %s" % (tmp, v4(zq)))


def zero_RAW_front(a, zq, tmp):
    a.I("v_and_b32 v%d, 1, v1" % tmp)
    a.I("v_lshlrev_b32 v%d, 4, v%d" % (tmp, tmp))
    a.I("v_add_u32 v%d, %d, v%d" % (tmp, RAW_OFF, tmp))
    a.I("ds_write_b128 v%d, %s" % (tmp, v4(zq)))


def zero_counters(a, zq, tmp):
    a.I("v_mov_b32 v%d, %d" % (tmp, CNT_OFF))
    a.I("s_mov_b64 exec, 1")
    a.I("ds_write_b128 v%d, %s" % (tmp, v4(zq)))
    a.I("s_mov_b64 exec, -1")


def zero_T_pads(a, zq, t0, t1):
    a.I("v_bfe_u32 v%d, v1, 3, 2" % t0)
    a.I("v_mul_u32_u24 v%d, %d, v%d" % (t0, TS, t0))
    a.I("v_bfe_u32 v%d, v1, 1, 2" % t1)
    a.I("v_mul_u32_u24 v%d, %d, v%d" % (t1, CS, t1))
    a.I("v_add_u32 v%d, v%d, v%d" % (t0, t0, t1))
    a.I("v_and_b32 v%d, 1, v1" % t1)
    a.I("v_lshl_add_u32 v%d, v%d, 4, v%d" % (t0, t1, t0))
    a.I("v_add_u32 v%d, %d, v%d" % (t0, T_OFF, t0))
    a.I("ds_write_b128 v%d, %s" % (t0, v4(zq)))


vU = 8
vP = 16
vAB = 20
v2DT = 22
vOFFU = 24
vAA = 25
vZ, vC, vV, vW, vG, vXc, vQ, vT, vT2 = 28, 30, 32, 34, 36, 38, 40, 42, 44
vTMP = 46
vO = 52
vZQ = 56
vNEG = 152
vX2, vQ2 = 156, 158
vACC = 64
vOP = 80
sLHI, sLLO, sLN2 = 64, 65, 66
s8, s256 = 68, 70
sHM, sODD = 72, 74
sSO = 76
sM0 = 80


class KG:
    def __init__(self, a):
        self.a = a
        self.k = 0

    def cmul(self, D, X, Y, T=vT):
        a = self.a
        if cfg.get("scal"):
            assert D != X
            ny = {vV: vNEG, vW: vNEG + 1, vG: vNEG + 2}[Y]
            a.I("v_mul_f32 v%d, v%d, v%d" % (D, X + 1, ny))
            a.I("v_mul_f32 v%d, v%d, v%d" % (D + 1, X + 1, Y))
            a.I("v_fmac_f32 v%d, v%d, v%d" % (D, X, Y))
            a.I("v_fmac_f32 v%d, v%d, v%d" % (D + 1, X, Y + 1))
            return
        a.I("v_pk_mul_f32 %s, %s, %s op_sel:[1,1] op_sel_hi:[1,0] neg_lo:[1,0]" % (vp(T), vp(X), vp(Y)))
        a.I("v_pk_fma_f32 %s, %s, %s, %s op_sel_hi:[0,1,1]" % (vp(D), vp(X), vp(Y), vp(T)))

    def out(self, row, X, neg):
        a = self.a
        r = vO + (self.k & 3)
        self.k += 1
        a.I("v_cvt_pk_bf16_f32 v%d, v%d, %sv%d" % (r, X, "-" if neg else "", X + 1))
        a.I("ds_write_addtid_b32 v%d offset:%d" % (r, row * ROWB))

    def anchor(self, P, Zs):
        a = self.a
        a.I("v_fract_f32 v%d, v%d" % (vTMP + 1, Zs + 1))
        a.I("v_exp_f32 v%d, v%d" % (vTMP, Zs))
        a.I("v_cos_f32 v%d, v%d" % (P, vTMP + 1))
        a.I("v_sin_f32 v%d, v%d" % (P + 1, vTMP + 1))
        if cfg.get("scal"):
            a.I("v_mul_f32 v%d, v%d, v%d" % (P, P, vTMP))
            a.I("v_mul_f32 v%d, v%d, v%d" % (P + 1, P + 1, vTMP))
            a.I("v_sub_f32 v%d, 0, v%d" % ({vV: vNEG, vW: vNEG + 1, vG: vNEG + 2}[P], P + 1))
        else:
            a.I("v_pk_mul_f32 %s, %s, %s op_sel_hi:[1,0]" % (vp(P), vp(P), vp(vTMP)))


def exp_bf16(a, dst, x, t0, t1):
    a.I("v_mul_f32 v%d, s%d, v%d" % (t0, sLHI, x))
    a.I("v_fma_f32 v%d, v%d, s%d, -v%d" % (t1, x, sLHI, t0))
    a.I("v_exp_f32 v%d, v%d" % (t0, t0))
    a.I("v_fmac_f32 v%d, s%d, v%d" % (t1, sLLO, x))
    a.I("v_mul_f32 v%d, s%d, v%d" % (t1, sLN2, t1))
    a.I("v_fmac_f32 v%d, v%d, v%d" % (t0, t0, t1))
    a.I("v_cvt_pk_bf16_f32 v%d, v%d, v%d" % (t0, t0, t0))
    a.I("v_lshlrev_b32 v%d, 16, v%d" % (dst, t0))


def kgen_batch(beta):
    b = Asm()
    kg = KG(b)

    def unpack(dst, src):
        if beta == 0:
            b.I("v_lshlrev_b32 v%d, 16, v%d" % (dst, src))
        else:
            b.I("v_and_b32 v%d, 0xffff0000, v%d" % (dst, src))

    unpack(vTMP + 2, vP + 0)
    unpack(vZ + 1, vP + 1)
    unpack(vC, vP + 2)
    unpack(vC + 1, vP + 3)
    exp_bf16(b, vZ, vTMP + 2, vTMP + 3, vTMP + 4)
    sc = cfg.get("scal")

    def pkmul(D, X, Y, bc):
        if not sc:
            b.I("v_pk_mul_f32 %s, %s, %s%s" % (vp(D), vp(X), Y[0], " op_sel_hi:[1,0]" if bc else ""))
        else:
            b.I("v_mul_f32 v%d, %s, v%d" % (D, Y[1], X))
            b.I("v_mul_f32 v%d, %s, v%d" % (D + 1, Y[1] if bc else Y[2], X + 1))
    pkmul(vC, vC, (vp(v2DT), "v%d" % v2DT), True)
    pkmul(vZ, vZ, (vp(vAB), "v%d" % vAB, "v%d" % (vAB + 1)), False)
    kg.out(0, vC, True)
    pkmul(vT2, vZ, (sp(s256), "s%d" % s256), True)
    kg.anchor(vG, vT2)
    pkmul(vT2, vZ, (sp(s8), "s%d" % s8), True)
    kg.anchor(vW, vT2)
    kg.anchor(vV, vZ)

    def other(r, p, p2):
        return (p2 if r == p else p) if sc else p
    src = vC
    for row in (8, 12, 16, 20, 18, 22, 19, 23):
        d = other(src, vQ, vQ2)
        kg.cmul(d, src, vG)
        kg.out(row, d, True)
        src = d
    src = vC
    for r in range(1, 8):
        d = other(src, vXc, vX2)
        kg.cmul(d, src, vV)
        kg.out(r, d, True)
        src = d
        if r == 2:
            kg.cmul(vQ, src, vG)
            kg.out(9, vQ, True)
        if r == 4:
            qq = src
            for row in (10, 13, 17):
                d2 = other(qq, vQ, vQ2)
                kg.cmul(d2, qq, vG)
                kg.out(row, d2, True)
                qq = d2
        if r == 6:
            kg.cmul(vQ, src, vG)
            kg.out(11, vQ, True)
    partA = [it.text for it in b.items]
    b = Asm()
    kg.a = b
    kg.out(1, vW, False)
    src = vW
    for j in range(2, 32):
        d = other(src, vXc, vX2)
        kg.cmul(d, src, vW)
        kg.out(j, d, False)
        src = d
    return partA, [it.text for it in b.items]


vAB_ = 26
vUR, vUW, vUT = 4, 5, 6
vUH = 60
vTR = 144


def gen_kgen_stream(a):
    q = LdsQueue(a)
    A0, B0 = kgen_batch(0)
    A1, B1 = kgen_batch(1)
    OPA, OPB = vOP, vOP + 32
    st = {"vm": 0, "vmidx": {}}
    rb = {}

    def reads(kind):
        def f():
            for s_ in range(8):
                if cfg.get("kx_noreads"):
                    rb[s_] = -1
                    continue
                if kind == "A":
                    q.op("ds_read_b128 %s, v%d offset:%d" % (v4(OPA + 4 * s_), vAA, 32 * s_))
                else:
                    rb[s_] = q.op("ds_read_b128 %s, v%d offset:%d" % (v4(OPB + 4 * s_), vAB_, 32 * s_))
        return f

    def mfma(s_, first):
        def f():
            if cfg.get("kx_nomfma"):
                return
            q.wait_for(rb[s_])
            c = "0" if (first and s_ == 0) else "v[%d:%d]" % (vACC, vACC + 15)
            a.I("v_mfma_f32_32x32x16_bf16 v[%d:%d], %s, %s, %s" % (vACC, vACC + 15, v4(OPA + 4 * s_), v4(OPB + 4 * s_), c))
        return f

    def uload(j):
        def f():
            if j == 0:
                a.I("s_mov_b64 exec, 7")
                a.I("buffer_load_dwordx2 %s, v7, %s, 0 offen" % (vp(vUH), s4(SRD_IN)))
                a.I("s_mov_b64 exec, -1")
                st["vm"] += 1
            a.I("buffer_load_dwordx2 %s, v%d, %s, s%d offen" % (vp(vU + 2 * j), vOFFU, s4(SRD_IN), sSO + j))
            st["vm"] += 1
            st["vmidx"][j] = st["vm"]
        return f
    tr = {}

    def ucons1(j):
        def f():
            if cfg.get("ustamps"):
                stamp(a, 10 + 2 * j)
            a.I("s_waitcnt vmcnt(%d)" % (st["vm"] - st["vmidx"][j]))
            if cfg.get("ustamps"):
                stamp(a, 11 + 2 * j)
            if j == 0:
                a.I("s_mov_b64 exec, 7")
                q.op("ds_write_b64 v%d, %s" % (vUR, vp(vUH)))
                a.I("s_mov_b64 exec, -1")
            q.op("ds_write_b64 v%d, %s offset:%d" % (vUR, vp(vU + 2 * j), 24 + 512 * j))
            for c in range(4):
                tr[c] = q.op("ds_read_b64_tr_b16 %s, v%d offset:%d" % (vp(vTR + 2 * c), vUW, 512 * j + 8 * (3 - c)))
        return f

    def ucons2(j):
        def f():
            for c in range(4):
                q.wait_for(tr[c])
                q.op("ds_write_b64 v%d, %s offset:%d" % (vUT, vp(vTR + 2 * c), c * CS + 128 * j))
        return f

    nA, nB = len(A0), len(B0)
    tot = 2 * (nA + nB)
    ins = {}

    def at(pos, f):
        ins.setdefault(pos, []).append(f)
    at(nA, reads("A"))
    at(nA + nB, reads("B"))
    m0 = nA + nB + cfg.get("km0", 30)
    for s_ in range(8):
        at(m0 + s_ * cfg.get("kmd", 9), mfma(s_, True))
    assert m0 + 7 * cfg.get("kmd", 9) < 2 * nA + nB
    at(2 * nA + nB, reads("A"))
    if not cfg.get("nou"):
        for j in range(4):
            at(int(tot * cfg["ul"][j]), uload(j))
            p = int(tot * cfg["uc"][j])
            if p < tot - 14:
                at(p, ucons1(j))
                at(p + 14, ucons2(j))
    kp = cfg.get("kprio", 0)
    if kp:
        a.I("s_cmp_eq_u32 s%d, 0" % sHB)
        a.I("s_cbranch_scc1 L_kp0")
        a.I("s_setprio 1")
        a.label("L_kp0")
        at(int(tot * cfg.get("kpx", 0.5)), lambda: a.I("s_setprio 0"))
    for i, t in enumerate(A0 + B0 + A1 + B1):
        for f in ins.get(i, []):
            f()
        if t.startswith("ds_"):
            if not cfg.get("kx_nowrites"):
                q.op(t)
        else:
            a.I(t)
    reads("B")()
    late = [j for j in range(4) if int(tot * cfg["uc"][j]) >= tot - 14 and not cfg.get("nou")]
    for s_ in range(8):
        mfma(s_, False)()
        if late and s_ % 2 == 1:
            pass
    for j in late:
        ucons1(j)()
        ucons2(j)()
    return q


def gen_A(a):
    a.label("L_A")
    a.I("s_lshl_b32 s3, s%d, 9" % sC)
    a.I("s_lshl_b32 s%d, s%d, 8" % (sT0, sHB))
    a.I("s_add_u32 s3, s3, s%d" % sT0)
    a.I("v_lshl_add_u32 v4, v1, 2, s3")
    a.I("s_lshl_b32 s%d, s%d, 7" % (sT0, sSUB))
    a.I("s_lshl_b32 s%d, s%d, 4" % (sT1, sW))
    a.I("s_add_u32 s%d, s%d, s%d" % (sT0, sT0, sT1))
    a.I("s_mul_i32 s%d, s%d, 896" % (sT0, sT0))
    a.I("s_lshl_b32 s%d, s%d, 7" % (sT1, sX))
    a.I("s_add_u32 s%d, s%d, s%d" % (sT0, sT0, sT1))
    a.I("v_and_b32 v5, 15, v1")
    a.I("v_mul_u32_u24 v5, 896, v5")
    a.I("v_add_u32 v5, s%d, v5" % sT0)
    a.I("s_lshr_b32 s3, s%d, 1" % sC)
    a.I("s_lshl_b32 s3, s3, 2")
    a.I("s_waitcnt lgkmcnt(0)")
    for i, p in enumerate((LAR, AIM, CR, CI)):
        a.I("global_load_dword v%d, v4, %s %s" % (vP + i, sp(p), cfg["nt_in"]))
    a.I("s_load_dword s%d, %s, s3" % (sT2, sp(LDT)))
    a.I("s_load_dword s%d, %s, s3" % (sT3, sp(DSK)))
    a.I("global_load_dword v%d, v5, %s %s" % (vDUMMY, sp(U), cfg["nt_pf"]))
    stamp(a, 0)
    srd(a, SRD_IN, U, IN_BYTES)
    srd(a, SRD_OUT, OUT, OUT_BYTES)
    for j in range(4):
        a.I("s_mov_b32 s%d, %d" % (sSO + j, j * 64 * 896))
    a.I("s_lshl_b32 s3, s%d, 3" % sGRP)
    a.I("s_mul_i32 s%d, s%d, %d" % (sT0, sW, 256 * 896))
    a.I("s_add_u32 s3, s3, s%d" % sT0)
    a.I("v_mul_u32_u24 v%d, 896, v1" % vOFFU)
    a.I("v_add_u32 v%d, s3, v%d" % (vOFFU, vOFFU))
    a.I("v_add_u32 v7, %d, v%d" % (-2688, vOFFU))
    a.I("s_mov_b32 s%d, 0x3fb8aa3b" % sLHI)
    a.I("s_mov_b32 s%d, 0x32a57060" % sLLO)
    a.I("s_mov_b32 s%d, 0x3f317218" % sLN2)
    a.I("s_mov_b32 s%d, 0x41000000" % s8)
    a.I("s_mov_b32 s%d, 0x43800000" % s256)
    a.I("s_mov_b32 s%d, 0" % sHM)
    a.I("s_mov_b32 s%d, -1" % (sHM + 1))
    a.I("s_mov_b32 s%d, 0xaaaaaaaa" % sODD)
    a.I("s_mov_b32 s%d, 0xaaaaaaaa" % (sODD + 1))
    a.I("s_lshl_b32 s3, s%d, 8" % sW)
    a.I("s_mov_b32 m0, s3")
    a.I("v_and_b32 v2, 31, v1")
    a.I("v_mul_u32_u24 v3, %d, v2" % ROWB)
    a.I("v_lshrrev_b32 v4, 5, v1")
    a.I("v_lshl_add_u32 v4, v4, 4, s3")
    a.I("v_add_u32 v%d, v3, v4" % vAA)
    a.I("v_mov_b32 v5, %d" % (32 * ROWB))
    a.I("v_cmp_eq_u32 vcc, 0, v2")
    a.I("v_cndmask_b32 v3, v3, v5, vcc")
    a.I("v_add_u32 v%d, v3, v4" % vAB_)
    a.I("v_lshl_add_u32 v2, v1, 2, s3")
    a.I("v_add_u32 v2, v5, v2")
    a.I("v_mov_b32 v%d, 0x3f80" % vO)
    a.I("ds_write_b32 v2, v%d" % vO)
    zero_quad(a, vZQ)
    zero_counters(a, vZQ, 2)
    zero_T_pads(a, vZQ, 2, 3)
    a.I("s_mul_i32 s3, s%d, %d" % (sW, RAWS))
    a.I("s_add_u32 s3, s3, %d" % RAW_OFF)
    a.I("v_lshl_add_u32 v%d, v1, 3, s3" % vUR)
    a.I("v_and_b32 v2, 3, v1")
    a.I("v_bfe_u32 v3, v1, 2, 2")
    a.I("v_lshrrev_b32 v27, 4, v1")
    a.I("v_lshl_add_u32 v%d, v2, 2, v3" % vUW)
    a.I("v_lshl_add_u32 v%d, v27, 4, v%d" % (vUW, vUW))
    a.I("v_lshl_add_u32 v%d, v%d, 3, s3" % (vUW, vUW))
    a.I("v_lshl_add_u32 v3, v27, 2, v3")
    a.I("v_mul_u32_u24 v2, %d, v2" % TS)
    a.I("v_lshl_add_u32 v2, v3, 3, v2")
    a.I("s_lshl_b32 s3, s%d, 9" % sW)
    a.I("s_add_u32 s3, s3, %d" % (T_OFF + 32))
    a.I("v_add_u32 v%d, s3, v2" % vUT)
    a.I("s_and_b32 s3, s%d, 1" % sC)
    a.I("s_lshl_b32 s3, s3, 4")
    a.I("s_waitcnt lgkmcnt(0)")
    a.I("s_lshr_b32 s%d, s%d, s3" % (sT2, sT2))
    a.I("s_lshl_b32 s%d, s%d, 16" % (sT2, sT2))
    a.I("s_lshr_b32 s%d, s%d, s3" % (sT3, sT3))
    a.I("s_lshl_b32 s%d, s%d, 16" % (sT3, sT3))
    a.I("v_mov_b32 v%d, s%d" % (vTMP + 2, sT2))
    exp_bf16(a, vTMP + 5, vTMP + 2, vTMP + 3, vTMP + 4)
    a.I("v_mul_f32 v%d, 0xbfb8aa3b, v%d" % (vAB, vTMP + 5))
    a.I("v_mul_f32 v%d, 0.15915494, v%d" % (vAB + 1, vTMP + 5))
    a.I("v_add_f32 v%d, v%d, v%d" % (v2DT, vTMP + 5, vTMP + 5))
    a.I("s_waitcnt vmcnt(1)")
    stamp(a, 1)
    gen_kgen_stream(a)
    stamp(a, 2)
    a.I("s_mul_i32 s3, s%d, 3072" % sCH)
    a.I("s_add_u32 s3, s3, %d" % RED_OFF)
    a.I("v_lshl_add_u32 v2, v1, 4, s3")
    a.I("s_cmp_eq_u32 s%d, 0" % sHB)
    a.I("s_cbranch_scc1 L_A_lo")
    a.I("s_nop 7")
    for k in range(3):
        a.I("ds_write_b128 v2, %s offset:%d" % (v4(vACC + 4 * k), 1024 * k))
    a.I("s_waitcnt lgkmcnt(0)")
    a.I("s_barrier")
    stamp(a, 3)
    if cfg["dump"]:
        a.I("s_barrier")
        dump_lds(a)
    a.I("s_branch L_HELP")
    a.label("L_A_lo")
    a.I("s_mul_i32 s3, s%d, %d" % (sCH, RS))
    a.I("s_add_u32 s3, s3, %d" % (R_OFF + 4080 - 2 * 1792 + 1024))
    a.I("v_lshlrev_b32 v4, 4, v1")
    a.I("v_sub_u32 v4, s3, v4")
    a.I("v_and_b32 v5, 31, v1")
    a.I("v_lshlrev_b32 v5, 4, v5")
    a.I("v_lshrrev_b32 v6, 5, v1")
    a.I("v_lshl_add_u32 v5, v6, 3, v5")
    a.I("s_add_u32 s3, s3, %d" % (2 * 1792 + 8 - 1024))
    a.I("v_sub_u32 v5, s3, v5")
    a.I("v_cmp_eq_u32 vcc, 0, v1")
    a.I("v_mov_b32 v6, s%d" % sT3)
    a.I("v_cndmask_b32 v6, 0, v6, vcc")
    conv_addr(a, tmp=(8, 9, 10, 11))
    a.I("s_waitcnt lgkmcnt(0)")
    a.I("s_barrier")
    stamp(a, 3)
    zero_R_pad(a, vZQ, 3)
    P = vOP
    for k in range(3):
        a.I("ds_read_b128 %s, v2 offset:%d" % (v4(P + 4 * k), 1024 * k))
    A_ = vACC
    a.I("v_add_f32 v%d, v%d, v6" % (A_, A_))
    for k in range(3):
        a.I("s_waitcnt lgkmcnt(%d)" % (2 - k))
        for h in range(2):
            r = 4 * k + 2 * h
            a.I("v_pk_add_f32 %s, %s, %s" % (vp(A_ + r), vp(A_ + r), vp(P + r)))
    N4, N8, N10, N11 = vOP + 12, vOP + 13, vOP + 14, vOP + 15
    X = vOP + 16
    O = vOP + 24
    dpp = "row_mask:0xf bank_mask:0xf"
    a.I("v_cvt_pk_bf16_f32 v%d, v%d, v%d" % (O, A_ + 3, A_ + 2))
    a.I("v_cvt_pk_bf16_f32 v%d, v%d, v%d" % (O + 1, A_ + 1, A_ + 0))
    a.I("ds_write_b64 v5, %s" % vp(O))
    a.I("v_mov_b32_dpp v%d, v%d wave_rol:1 %s" % (N4, A_ + 8, dpp))
    a.I("v_mov_b32_dpp v%d, v%d wave_rol:1 %s" % (N8, A_ + 10, dpp))
    a.I("v_mov_b32_dpp v%d, v%d wave_rol:1 %s" % (N10, A_ + 11, dpp))
    a.I("v_mov_b32_dpp v%d, v%d wave_rol:1 %s" % (N11, A_ + 11, dpp))
    a.I("v_mov_b32_dpp v%d, v%d wave_shl:1 %s" % (N4, A_ + 4, dpp))
    a.I("v_mov_b32_dpp v%d, v%d wave_shl:1 %s" % (N8, A_ + 8, dpp))
    a.I("v_mov_b32_dpp v%d, v%d wave_shl:1 %s" % (N10, A_ + 10, dpp))
    hm, od = sp(sHM), sp(sODD)
    a.I("v_cndmask_b32 v%d, v%d, v%d, %s" % (X + 0, A_ + 7, N4, hm))
    a.I("v_cndmask_b32 v%d, v%d, v%d, %s" % (X + 1, A_ + 6, A_ + 5, hm))
    a.I("v_cndmask_b32 v%d, v%d, v%d, %s" % (X + 2, A_ + 5, A_ + 4, hm))
    a.I("v_cvt_pk_bf16_f32 v%d, v%d, v%d" % (O + 4, N4, X + 0))
    a.I("v_cvt_pk_bf16_f32 v%d, v%d, v%d" % (O + 5, X + 1, X + 1))
    a.I("v_cvt_pk_bf16_f32 v%d, v%d, v%d" % (O + 6, X + 1, X + 2))
    a.I("v_cvt_pk_bf16_f32 v%d, v%d, v%d" % (O + 7, A_ + 4, A_ + 4))
    a.I("ds_write_b128 v4, %s offset:%d" % (v4(O + 4), 2 * (1280 - 256)))
    a.I("v_cndmask_b32 v%d, v%d, v%d, %s" % (X + 3, A_ + 9, N8, hm))
    a.I("v_cndmask_b32 v%d, v%d, v%d, %s" % (X + 4, A_ + 8, N8, od))
    a.I("v_cndmask_b32 v%d, v%d, v%d, %s" % (X + 4, A_ + 9, X + 4, hm))
    a.I("v_cndmask_b32 v%d, v%d, v%d, %s" % (X + 5, A_ + 9, A_ + 8, hm))
    a.I("v_cvt_pk_bf16_f32 v%d, v%d, v%d" % (O + 8, N8, N8))
    a.I("v_cvt_pk_bf16_f32 v%d, v%d, v%d" % (O + 9, X + 3, X + 4))
    a.I("v_cvt_pk_bf16_f32 v%d, v%d, v%d" % (O + 10, X + 5, A_ + 8))
    a.I("v_cvt_pk_bf16_f32 v%d, v%d, v%d" % (O + 11, A_ + 8, A_ + 8))
    a.I("ds_write_b128 v4, %s offset:%d" % (v4(O + 8), 2 * (1280 - 768)))
    for (src, nx, o, base) in ((A_ + 10, N10, O + 12, 1280), (A_ + 11, N11, O + 16, 1792)):
        a.I("v_cndmask_b32 v%d, v%d, v%d, %s" % (X + 6, src, nx, od))
        a.I("v_cvt_pk_bf16_f32 v%d, v%d, v%d" % (o, nx, nx))
        a.I("v_cvt_pk_bf16_f32 v%d, v%d, v%d" % (o + 1, nx, X + 6))
        a.I("v_cvt_pk_bf16_f32 v%d, v%d, v%d" % (o + 2, src, src))
        a.I("v_cvt_pk_bf16_f32 v%d, v%d, v%d" % (o + 3, src, src))
        if base == 1792:
            a.I("v_add_u32 v7, -1024, v4")
            a.I("s_mov_b32 exec_hi, 0")
            a.I("ds_write_b128 v7, %s" % v4(o))
        else:
            a.I("ds_write_b128 v4, %s" % v4(o))
    a.I("s_mov_b32 exec_hi, -1")
    stamp(a, 4)
    if cfg["dump"]:
        a.I("s_waitcnt lgkmcnt(0)")
        a.I("s_barrier")
        dump_lds(a)
    a.I("s_branch L_CONV")


vCA, vCB, vCY, vCF, vONE, vGATE, vTHR = 25, 26, 27, 28, 29, 30, 31
ACC = 32
POOL0 = 64
NPOOL = 40
vCV = 4


def conv_addr(a, tmp=(2, 3, 4, 5)):
    a2, a3, a4, a5 = tmp
    a.I("v_and_b32 v{a2}, 15, v1".format(a2=a2, a3=a3, a4=a4, a5=a5))
    a.I("v_lshrrev_b32 v{a3}, 4, v1".format(a2=a2, a3=a3, a4=a4, a5=a5))
    a.I("v_sub_u32 v{a4}, 15, v{a2}".format(a2=a2, a3=a3, a4=a4, a5=a5))
    a.I("v_and_b32 v{a5}, 3, v{a4}".format(a2=a2, a3=a3, a4=a4, a5=a5))
    a.I("v_mul_u32_u24 v{a5}, %d, v{a5}".format(a2=a2, a3=a3, a4=a4, a5=a5) % CS)
    a.I("v_lshrrev_b32 v{a4}, 2, v{a4}".format(a2=a2, a3=a3, a4=a4, a5=a5))
    a.I("v_lshlrev_b32 v{a4}, 3, v{a4}".format(a2=a2, a3=a3, a4=a4, a5=a5))
    a.I("v_sub_u32 v{a5}, v{a5}, v{a4}".format(a2=a2, a3=a3, a4=a4, a5=a5))
    a.I("v_lshl_add_u32 v{a5}, v{a3}, 4, v{a5}".format(a2=a2, a3=a3, a4=a4, a5=a5))
    a.I("s_mul_i32 s3, s%d, %d".format(a2=a2, a3=a3, a4=a4, a5=a5) % (sCH, TS))
    a.I("s_add_u32 s3, s3, %d".format(a2=a2, a3=a3, a4=a4, a5=a5) % (T_OFF + 32))
    a.I("v_add_u32 v%d, s3, v{a5}".format(a2=a2, a3=a3, a4=a4, a5=a5) % vCA)
    a.I("v_lshlrev_b32 v{a4}, 5, v{a2}".format(a2=a2, a3=a3, a4=a4, a5=a5))
    a.I("v_lshlrev_b32 v{a5}, 4, v{a3}".format(a2=a2, a3=a3, a4=a4, a5=a5))
    a.I("v_sub_u32 v{a5}, v{a5}, v{a4}".format(a2=a2, a3=a3, a4=a4, a5=a5))
    a.I("s_mul_i32 s3, s%d, %d".format(a2=a2, a3=a3, a4=a4, a5=a5) % (sCH, RS))
    a.I("s_add_u32 s3, s3, %d".format(a2=a2, a3=a3, a4=a4, a5=a5) % (R_OFF + 480))
    a.I("v_add_u32 v%d, s3, v{a5}".format(a2=a2, a3=a3, a4=a4, a5=a5) % vCB)
    a.I("v_mul_u32_u24 v{a5}, 144, v{a3}".format(a2=a2, a3=a3, a4=a4, a5=a5))
    a.I("v_lshl_add_u32 v{a5}, v{a2}, 3, v{a5}".format(a2=a2, a3=a3, a4=a4, a5=a5))
    a.I("s_mul_i32 s3, s%d, %d".format(a2=a2, a3=a3, a4=a4, a5=a5) % (sCH, YS))
    a.I("s_add_u32 s3, s3, %d".format(a2=a2, a3=a3, a4=a4, a5=a5) % Y_OFF)
    a.I("v_add_u32 v%d, s3, v{a5}".format(a2=a2, a3=a3, a4=a4, a5=a5) % vCY)
    a.I("s_lshl_b32 s3, s%d, 2".format(a2=a2, a3=a3, a4=a4, a5=a5) % sCH)
    a.I("s_add_u32 s3, s3, %d".format(a2=a2, a3=a3, a4=a4, a5=a5) % CNT_OFF)
    a.I("v_mov_b32 v%d, s3".format(a2=a2, a3=a3, a4=a4, a5=a5) % vCF)
    a.I("v_mov_b32 v%d, 1".format(a2=a2, a3=a3, a4=a4, a5=a5) % vONE)
    a.I("v_and_b32 v{a2}, 3, v1".format(a2=a2, a3=a3, a4=a4, a5=a5))
    a.I("v_lshlrev_b32 v{a2}, 8, v{a2}".format(a2=a2, a3=a3, a4=a4, a5=a5))
    a.I("v_add_u32 v%d, %d, v{a2}".format(a2=a2, a3=a3, a4=a4, a5=a5) % (vGATE, GATE_OFF))
    a.I("v_mov_b32 v%d, s%d".format(a2=a2, a3=a3, a4=a4, a5=a5) % (vTHR, sISB))


def conv_order():
    merge = cfg["merge"]
    order = []
    for ph, (tlo, thi, dlo, dhi) in enumerate(cfg["phases"]):
        mg = merge[ph]
        top = thi - 1
        for rho in range(8 - mg):
            order += [(ph, rho, i, d) for i in range(top + 1) for d in range(dhi - 1, dlo - 1, -1) if tlo <= i + d < thi]
        for t in range(tlo, thi):
            for rho in range(8 - mg, 8):
                order += [(ph, rho, t - d, d) for d in range(min(dhi - 1, t), dlo - 1, -1)]
    assert len(order) == 288 and len(set((r, i, d) for _, r, i, d in order)) == 288
    return order


def gen_conv(a):
    a.label("L_CONV")
    if cfg.get("prio", 1):
        a.I("s_setprio 2")
    q = LdsQueue(a)
    lag, margin, look = cfg["lag"], cfg["margin"], cfg["look"]
    order = conv_order()
    N = len(order)
    first, last = {}, {}
    seq = []
    for g, (ph, rho, i, d) in enumerate(order):
        for o in ((ph, "A", rho, i), (ph, "B", rho, d)):
            if o not in first:
                first[o] = g
                seq.append(o)
            last[o] = g
    tile_last = {}
    for g, (ph, rho, i, d) in enumerate(order):
        tile_last[i + d] = g
    loads = []
    for o in seq:
        n = 2 if o[1] == "A" else 1
        for h in range(n):
            loads.append((o, h, h == n - 1))
    free = list(range(NPOOL))
    quad, loaded = {}, {}
    st = {"lp": 0, "dbl": 0, "maxlive": 0}

    def can_load():
        if st["lp"] >= len(loads):
            return False
        o, h, _ = loads[st["lp"]]
        return h > 0 or len(free) > 0

    def do_load():
        if gate_ops():
            return
        o, h, lastp = loads[st["lp"]]
        st["lp"] += 1
        if h == 0:
            quad[o] = POOL0 + 4 * free.pop(0)
            st["maxlive"] = max(st["maxlive"], NPOOL - len(free))
        r = quad[o]
        ph, kind, rho, idx = o
        if kind == "A":
            t = "ds_read_b64 %s, v%d offset:%d" % (vp(r + 2 * h), vCA, 64 * rho + 512 * idx + 8 * h)
        else:
            t = "ds_read_b128 %s, v%d offset:%d" % (v4(r), vCB, 64 * rho + 512 * (7 - idx))
        ix = q.op(t)
        if lastp:
            loaded[o] = ix

    gate_at = min(k for k, (o, h, _) in enumerate(loads) if o[1] == "B" and o[3] >= 4)
    gate_pre = max(0, gate_at - 8)
    gst = {}

    def gate_ops():
        if not cfg.get("gate"):
            return False
        if st["lp"] == gate_pre and "rd" not in gst:
            gst["rd"] = q.op("ds_read_b32 v12, v%d" % vGATE)
            return True
        if st["lp"] == gate_at and "ok" not in gst:
            gst["ok"] = 1
            q.wait_for(gst["rd"])
            a.I("v_cmp_lt_u32 vcc, v12, v%d" % vTHR)
            a.I("s_nop 1")
            a.I("s_cbranch_vccz L_gate_ok")
            a.label("L_gate_spin")
            a.I("s_sleep 1")
            a.I("ds_read_b32 v12, v%d" % vGATE)
            a.I("s_waitcnt lgkmcnt(0)")
            a.I("v_cmp_lt_u32 vcc, v12, v%d" % vTHR)
            a.I("s_nop 1")
            a.I("s_cbranch_vccnz L_gate_spin")
            a.label("L_gate_ok")
            stamp(a, 8)
        return False

    def next_first():
        return first[loads[st["lp"]][0]] if st["lp"] < len(loads) else 1 << 30

    extras = []
    for n_, t in enumerate(sorted(tile_last, key=lambda t: tile_last[t])):
        r = vCV + 2 * (n_ % 4)
        g0 = tile_last[t] + 4

        def f1(t=t, r=r):
            a.I("v_cvt_pk_bf16_f32 v%d, v%d, v%d" % (r, ACC + 4 * t, ACC + 4 * t + 1))
            a.I("v_cvt_pk_bf16_f32 v%d, v%d, v%d" % (r + 1, ACC + 4 * t + 2, ACC + 4 * t + 3))

        def f2(t=t, r=r):
            q.op("ds_write_b64 v%d, %s offset:%d" % (vCY, vp(r), 576 * t))

        def f3(t=t):
            a.I("s_mov_b64 exec, 1")
            q.op("ds_add_u32 v%d, v%d" % (vCF, vONE))
            a.I("s_mov_b64 exec, -1")
        extras += [(g0, f1), (g0 + 1, f2), (g0 + 2, f3)]
    while next_first() <= cfg.get("pre", 2):
        do_load()
    started = set()
    for g, (ph, rho, i, d) in enumerate(order):
        oa, ob = (ph, "A", rho, i), (ph, "B", rho, d)
        assert oa in loaded and ob in loaded, (g, oa, ob)
        q.wait_for(max(loaded[oa], loaded[ob]), lag)
        t = i + d
        acc = ACC + 4 * t
        c = v4(acc) if t in started else "0"
        started.add(t)
        a.I("v_mfma_f32_16x16x32_bf16 %s, %s, %s, %s" % (v4(acc), v4(quad[oa]), v4(quad[ob]), c))
        for o in (oa, ob):
            if last[o] == g:
                free.append((quad[o] - POOL0) // 4)
        n = 0
        urgent = can_load() and next_first() - g <= margin
        if not urgent and extras and extras[0][0] <= g:
            extras.pop(0)[1]()
            n = 1
        elif can_load() and next_first() - g <= look:
            do_load()
            n = 1
        while can_load() and next_first() - g <= min(margin, cfg.get("hard", 4)):
            do_load()
            n += 1
        if n > 1:
            st["dbl"] += n - 1
            st.setdefault("where", []).append(g)
        if g == tile_last[cfg["p1"] - 1] + 8:
            stamp(a, 5)
    for _, f in extras:
        f()
    print("conv: loads", len(loads), "doubled", st["dbl"], "max live quads", st["maxlive"], "left extras", len(extras), st.get("where"))
    stamp(a, 6)
    stamp_flush(a)
    a.I("s_endpgm")


vHQ = 168
sQO, sOO = 64, 8
vHY = 32
vHT = 48
vHQU = 184
vHR, vHO, vHI, vHC = 4, 5, 6, 7


def help_rows(a):
    a.I("s_lshl_b32 s3, s%d, 6" % sCH)
    a.I("v_add_u32 v2, s3, v1")
    a.I("s_lshl_b32 s3, s%d, 3" % sGRP)
    a.I("v_mul_u32_u24 v%d, 896, v2" % vHI)
    a.I("v_add_u32 v%d, s3, v%d" % (vHI, vHI))
    a.I("s_mul_i32 s%d, s%d, 896" % (sT0, sISB))
    a.I("s_add_u32 s3, s3, s%d" % sT0)
    a.I("v_mul_u32_u24 v%d, 1792, v2" % vHO)
    a.I("v_add_u32 v%d, s3, v%d" % (vHO, vHO))
    for t in range(8):
        a.I("s_mov_b32 s%d, %d" % (sQO + t, t * 256 * 896))
        a.I("s_mov_b32 s%d, %d" % (sOO + t, t * 256 * 1792))


def help_qloads(a, lo, hi):
    if cfg.get("noq"):
        return
    for t in range(lo, hi):
        a.I("buffer_load_dwordx2 %s, v%d, %s, s%d offen" % (vp(vHQ + 2 * t), vHI, s4(SRD_IN), sQO + t))


def gen_help(a):
    a.label("L_HELP")
    help_rows(a)
    a.label("L_HELP2")
    if cfg.get("hprio", 0):
        a.I("s_setprio %d" % cfg["hprio"])
    a.I("v_bfe_u32 v2, v1, 2, 2")
    a.I("v_mul_u32_u24 v2, %d, v2" % YS)
    a.I("v_and_b32 v3, 3, v1")
    a.I("v_mul_u32_u24 v3, 144, v3")
    a.I("v_add_u32 v2, v2, v3")
    a.I("v_lshrrev_b32 v3, 4, v1")
    a.I("v_lshl_add_u32 v2, v3, 3, v2")
    a.I("s_lshl_b32 s3, s%d, 5" % sCH)
    a.I("s_add_u32 s3, s3, %d" % Y_OFF)
    a.I("v_add_u32 v%d, s3, v2" % vHR)
    a.I("v_and_b32 v2, 3, v1")
    a.I("v_lshlrev_b32 v2, 2, v2")
    a.I("v_add_u32 v%d, %d, v2" % (vHC, CNT_OFF))
    a.I("s_cmp_eq_u32 s%d, 0" % sISB)
    a.I("s_cbranch_scc1 L_HA")
    for isb in (1, 0):
        if not isb:
            a.label("L_HA")
        nst = 0
        for t in range(8):
            lab = "L_hp%d_%d" % (isb, t)
            if isb:
                a.I("s_waitcnt vmcnt(%d)" % (7 - t + nst if not cfg.get("noq") else 63))
                for h in range(2):
                    qq, T = vHQ + 2 * t + h, vHQU + 4 * t + 2 * h
                    a.I("v_lshlrev_b32 v%d, 16, v%d" % (T, qq))
                    a.I("v_and_b32 v%d, 0xffff0000, v%d" % (T + 1, qq))
            a.label(lab)
            a.I("ds_read_b32 v8, v%d" % vHC)
            a.I("s_waitcnt lgkmcnt(0)")
            a.I("v_cmp_ge_u32 vcc, %d, v8" % t)
            a.I("s_nop 1")
            a.I("s_cbranch_vccz %s_go" % lab)
            a.I("s_sleep %d" % cfg.get("hsleep", 1))
            a.I("s_branch %s" % lab)
            a.label(lab + "_go")
            a.I("ds_read_b64_tr_b16 %s, v%d offset:%d" % (vp(vHY + 2 * t), vHR, 576 * t))
            if cfg.get("hstamps"):
                stamp(a, 10 + 2 * t)
            elif t == cfg["p1"] - 1:
                stamp(a, 5)
            elif t == 7:
                stamp(a, 6)
            a.I("s_waitcnt lgkmcnt(0)")
            if isb:
                for h in range(2):
                    y, T, QU = vHY + 2 * t + h, vHT + 4 * (t & 1) + 2 * h, vHQU + 4 * t + 2 * h
                    a.I("v_lshlrev_b32 v%d, 16, v%d" % (T, y))
                    a.I("v_and_b32 v%d, 0xffff0000, v%d" % (T + 1, y))
                    a.I("v_mul_f32 v%d, v%d, v%d" % (T, T, QU))
                    a.I("v_mul_f32 v%d, v%d, v%d" % (T + 1, T + 1, QU + 1))
                    a.I("v_cvt_pk_bf16_f32 v%d, v%d, v%d" % (y, T, T + 1))
            a.I("buffer_store_dwordx2 %s, v%d, %s, s%d offen %s" % (vp(vHY + 2 * t), vHO, s4(SRD_OUT), sOO + t, cfg["nt_out"]))
            nst += 1
            if cfg.get("hstamps"):
                stamp(a, 11 + 2 * t)
        if cfg["stamps"]:
            a.I("s_waitcnt vmcnt(0)")
            stamp(a, 7)
            stamp_flush(a)
        a.I("s_endpgm")


sWR = 16
sWU = 72


def build_T_from_global(a, vS):
    dpp = "row_mask:0xf bank_mask:0xf"
    for p in range(2):
        a.I("v_mov_b32_dpp v%d, v%d wave_shr:1 %s" % (vS + p, vS + 4 + p, dpp))
        a.I("v_mov_b32_dpp v%d, v%d wave_ror:1 %s" % (vS + 6 + p, vS + 4 + p, dpp))
    for p in range(2):
        a.I("v_mov_b32_dpp v%d, v%d wave_shr:1 %s" % (vS + 6 + p, vS + 10 + p, dpp))
    a.I("s_cmp_eq_u32 s%d, 0" % sHB)
    a.I("s_cselect_b32 s%d, s%d, 0" % (sT3, sT3))
    a.I("v_cmp_eq_u32 vcc, 0, v1")
    a.I("v_mov_b32 v2, s%d" % sT3)
    a.I("v_cndmask_b32 v2, 0, v2, vcc")
    a.I("v_lshlrev_b32 v3, 16, v%d" % (vS + 2))
    a.I("v_add_f32 v3, v3, v2")
    a.I("v_cvt_pk_bf16_f32 v3, v3, v3")
    a.I("s_mov_b32 s3, 0xffff")
    a.I("v_bfi_b32 v%d, s3, v3, v%d" % (vS + 2, vS + 2))
    a.I("s_mul_i32 s3, s%d, %d" % (sCH, TS))
    a.I("s_lshl_b32 s%d, s%d, 11" % (sT0, sHB))
    a.I("s_add_u32 s3, s3, s%d" % sT0)
    a.I("s_add_u32 s3, s3, %d" % (T_OFF + 32))
    a.I("v_lshl_add_u32 v2, v1, 4, s3")
    W = vS + 12
    for u in range(2):
        d = lambda k: vS + 6 * u + 2 + k
        a.I("ds_write_b128 v2, %s offset:%d" % (v4(d(0)), 1024 * u))
        o = W + 12 * u
        for k in range(4):
            a.I("v_alignbit_b32 v%d, v%d, v%d, 16" % (o + k, d(k), d(k - 1)))
        a.I("ds_write_b128 v2, %s offset:%d" % (v4(o), CS + 1024 * u))
        for k in range(4):
            a.I("v_mov_b32 v%d, v%d" % (o + 4 + k, d(k - 1)))
        a.I("ds_write_b128 v2, %s offset:%d" % (v4(o + 4), 2 * CS + 1024 * u))
        for k in range(4):
            a.I("v_alignbit_b32 v%d, v%d, v%d, 16" % (o + 8 + k, d(k - 1), d(k - 2)))
        a.I("ds_write_b128 v2, %s offset:%d" % (v4(o + 8), 3 * CS + 1024 * u))


def load_T_global(a, vS):
    a.I("s_lshl_b32 s3, s%d, 12" % sC)
    a.I("s_add_u32 s%d, s%d, s3" % (SRD_SK, SSK))
    a.I("s_addc_u32 s%d, s%d, 0" % (SRD_SK + 1, SSK + 1))
    a.I("s_mov_b32 s%d, 4096" % (SRD_SK + 2))
    a.I("s_mov_b32 s%d, 0x20000" % (SRD_SK + 3))
    a.I("s_lshl_b32 s3, s%d, 11" % sHB)
    a.I("v_lshl_add_u32 v2, v1, 4, s3")
    a.I("v_add_u32 v3, -8, v2")
    a.I("buffer_load_dwordx4 %s, v2, %s, 0 offen %s" % (v4(vS + 2), s4(SRD_SK), cfg["nt_in"]))
    a.I("buffer_load_dwordx4 %s, v2, %s, 0 offen offset:1024 %s" % (v4(vS + 8), s4(SRD_SK), cfg["nt_in"]))
    a.I("s_mov_b32 exec_lo, 1")
    a.I("s_mov_b32 exec_hi, 0")
    a.I("buffer_load_dwordx2 %s, v3, %s, 0 offen %s" % (vp(vS), s4(SRD_SK), cfg["nt_in"]))
    a.I("s_mov_b64 exec, -1")


def unpack_weights_uniform(a):
    for c in range(4):
        p, e = c >> 1, c & 1
        for t in range(4):
            src = sWR + 2 * c + (t >> 1)
            dst = sWU + 8 * p + 2 * t + e
            if t & 1:
                a.I("s_and_b32 s%d, s%d, 0xffff0000" % (dst, src))
            else:
                a.I("s_lshl_b32 s%d, s%d, 16" % (dst, src))


def kv_compute(a, vK, vVv, vR):
    KU = 100
    VU = 116
    RES = 124
    O = 132
    for p in range(2):
        for r in range(7):
            a.I("v_lshlrev_b32 v%d, 16, v%d" % (KU + 2 * r, vK + 2 * r + p))
            a.I("v_and_b32 v%d, 0xffff0000, v%d" % (KU + 2 * r + 1, vK + 2 * r + p))
        for r in range(4):
            R_ = RES + 2 * r
            a.I("v_pk_mul_f32 %s, %s, %s" % (vp(R_), vp(KU + 2 * r), sp(sWU + 8 * p + 6)))
            for t in (2, 1, 0):
                a.I("v_pk_fma_f32 %s, %s, %s, %s" % (vp(R_), vp(KU + 2 * (r + 3 - t)), sp(sWU + 8 * p + 2 * t), vp(R_)))
        if p == 0:
            a.I("s_waitcnt vmcnt(%d)" % cfg.get("_vwait", 0))
        for r in range(4):
            a.I("v_lshlrev_b32 v%d, 16, v%d" % (VU + 2 * r, vVv + 2 * r + p))
            a.I("v_and_b32 v%d, 0xffff0000, v%d" % (VU + 2 * r + 1, vVv + 2 * r + p))
            a.I("v_pk_mul_f32 %s, %s, %s" % (vp(RES + 2 * r), vp(RES + 2 * r), vp(VU + 2 * r)))
        for e in range(2):
            o = O + 4 * p + 2 * e
            a.I("v_cvt_pk_bf16_f32 v%d, v%d, v%d" % (o, RES + 6 + e, RES + 4 + e))
            a.I("v_cvt_pk_bf16_f32 v%d, v%d, v%d" % (o + 1, RES + 2 + e, RES + e))
            a.I("ds_write_b64 v%d, %s offset:%d" % (vR, vp(o), (2 * p + e) * RS))


def kv_loads(a, vK, vVv, vO, vOH):
    a.I("s_mov_b64 s[%d:%d], exec" % (sT0, sT1))
    a.I("s_mov_b32 exec_lo, 1")
    a.I("s_mov_b32 exec_hi, 0")
    for j in range(3):
        a.I("buffer_load_dwordx2 %s, v%d, %s, 0 offen offset:%d" % (vp(vK + 2 * j), vOH, s4(SRD_K), 896 * j))
    a.I("s_mov_b64 exec, s[%d:%d]" % (sT0, sT1))
    for j in range(4):
        a.I("buffer_load_dwordx2 %s, v%d, %s, 0 offen offset:%d" % (vp(vK + 6 + 2 * j), vO, s4(SRD_K), 896 * j))
    for j in range(4):
        a.I("buffer_load_dwordx2 %s, v%d, %s, 0 offen offset:%d" % (vp(vVv + 2 * j), vO, s4(SRD_V), 896 * j))


def kv_halo(a, vK):
    for j in range(3):
        for p in range(2):
            a.I("v_mov_b32_dpp v%d, v%d wave_shr:1 row_mask:0xf bank_mask:0xf" % (vK + 2 * j + p, vK + 8 + 2 * j + p))


SHUF_OFF = 0
OKS_OFF = RAW_OFF + 17 * 1088
sXCC, sPOLL = 95, 93


STG_K = RAW_OFF
STG_V = Y_OFF + 4 * YS
assert STG_V + 16 * 1088 <= T_OFF and 8 * 2560 <= STG_V and OKS_OFF + 2048 <= CNT_OFF


def gen_B(a):
    a.label("L_B")
    vS = 64
    KK, VV, WR_, WP = 16, 28, 36, 40
    KU, VU, RES, G, IN = 100, 122, 126, 144, 152
    vTo, vTo2, vTh, vSW, vSR, vST, vIL, vRW, vPA, vPV = 48, 49, 50, 51, 52, 53, 54, 55, 60, 61
    SRD_W = 72
    s64K, s8K = 76, 77
    pin = cfg["nt_in"]
    a.I("s_lshl_b32 s3, s%d, 7" % sSUB)
    a.I("s_lshl_b32 s%d, s%d, 4" % (sT0, sW))
    a.I("s_add_u32 s3, s3, s%d" % sT0)
    a.I("s_mul_i32 s3, s3, 896")
    a.I("s_lshl_b32 s%d, s%d, 7" % (sT0, sX))
    a.I("s_add_u32 s3, s3, s%d" % sT0)
    a.I("v_lshrrev_b32 v6, 3, v1")
    a.I("v_mul_u32_u24 v6, 896, v6")
    a.I("v_and_b32 v7, 7, v1")
    a.I("v_lshl_add_u32 v6, v7, 4, v6")
    a.I("v_add_u32 v%d, s3, v6" % vTo)
    a.I("v_add_u32 v%d, 7168, v%d" % (vTo2, vTo))
    a.I("v_add_u32 v%d, %d, v%d" % (vTh, -7168, vTo))
    a.I("s_mul_i32 s%d, s%d, 2176" % (sT4, sW))
    a.I("s_add_u32 s%d, s%d, %d" % (sT4, sT4, STG_K + 1088))
    a.I("v_lshrrev_b32 v3, 4, v1")
    a.I("v_and_b32 v2, 15, v1")
    a.I("s_and_b32 s%d, s%d, 1" % (sT0, sW))
    a.I("s_lshl_b32 s%d, s%d, 4" % (sT0, sT0))
    a.I("v_add_u32 v4, s%d, v2" % sT0)
    a.I("s_lshl_b32 s%d, s%d, 9" % (sT1, sX))
    a.I("v_lshl_add_u32 v5, v4, 4, s%d" % sT1)
    a.I("s_waitcnt lgkmcnt(0)")
    srd(a, SRD_K, K, IN_BYTES)
    srd(a, SRD_V, V, IN_BYTES)
    a.I("s_mov_b32 m0, s%d" % sT4)
    a.I("buffer_load_dwordx4 v%d, %s, 0 offen %s lds" % (vTo, s4(SRD_K), pin))
    a.I("s_sub_u32 m0, s%d, %d" % (sT4, STG_K + 1088 - STG_V))
    a.I("buffer_load_dwordx4 v%d, %s, 0 offen %s lds" % (vTo, s4(SRD_V), pin))
    a.I("s_add_u32 m0, s%d, 1088" % sT4)
    a.I("buffer_load_dwordx4 v%d, %s, 0 offen %s lds" % (vTo2, s4(SRD_K), pin))
    a.I("s_sub_u32 m0, s%d, %d" % (sT4, STG_K - STG_V))
    a.I("buffer_load_dwordx4 v%d, %s, 0 offen %s lds" % (vTo2, s4(SRD_V), pin))
    a.I("s_cmp_lg_u32 s%d, 0" % sW)
    a.I("s_cbranch_scc1 L_B_nh")
    a.I("s_mov_b32 m0, %d" % STG_K)
    a.I("s_mov_b32 exec_lo, 0")
    a.I("s_mov_b32 exec_hi, 0xffffff00")
    a.I("buffer_load_dwordx4 v%d, %s, 0 offen %s lds" % (vTh, s4(SRD_K), pin))
    a.I("s_mov_b64 exec, -1")
    a.label("L_B_nh")
    a.I("global_load_dwordx4 %s, v5, %s" % (v4(WR_), sp(SHK)))
    ssm_first = 0
    a.I("s_lshr_b32 s%d, s%d, 1" % (sT2, sW))
    a.I("s_lshl_b32 s3, s%d, 4" % sSUB)
    a.I("s_lshl_b32 s%d, s%d, 2" % (sT0, sT2))
    a.I("s_add_u32 s3, s3, s%d" % sT0)
    a.I("v_add_u32 v6, s%d, v3" % sT0)
    a.I("v_mul_u32_u24 v6, 1088, v6")
    a.I("v_lshl_add_u32 v6, v4, 2, v6")
    a.I("v_add_u32 v%d, %d, v6" % (vTo, STG_K))
    a.I("v_add_u32 v%d, %d, v6" % (vTo2, STG_V))
    a.I("s_lshr_b32 s%d, s%d, 1" % (sT0, sC))
    a.I("s_lshl_b32 s%d, s%d, 2" % (sT0, sT0))
    a.I("s_load_dword s%d, %s, s%d" % (sT3, sp(SSD), sT0))
    a.I("s_getreg_b32 s%d, hwreg(HW_REG_XCC_ID, 0, 4)" % sXCC)
    a.I("s_add_u32 s%d, s%d, 1" % (sXCC, sXCC))
    a.I("s_mul_i32 s%d, s%d, 2560" % (sT0, sW))
    a.I("s_add_u32 s%d, s%d, %d" % (sT0, sT0, SHUF_OFF))
    a.I("v_mul_u32_u24 v6, 160, v2")
    a.I("v_sub_u32 v7, 3, v3")
    a.I("v_lshl_add_u32 v6, v7, 4, v6")
    a.I("v_add_u32 v%d, s%d, v6" % (vSW, sT0))
    a.I("v_lshrrev_b32 v6, 2, v1")
    a.I("v_and_b32 v7, 3, v1")
    a.I("v_mul_u32_u24 v8, 80, v6")
    a.I("v_lshl_add_u32 v8, v7, 4, v8")
    a.I("v_add_u32 v%d, s%d, v8" % (vSR, sT0))
    a.I("s_sub_u32 s3, 252, s3")
    a.I("s_lshl_b32 s3, s3, 4")
    a.I("s_lshl_b32 s%d, s%d, 18" % (sT0, sX))
    a.I("s_add_u32 s3, s3, s%d" % sT0)
    a.I("s_and_b32 s%d, s%d, 1" % (sT0, sW))
    a.I("s_lshl_b32 s%d, s%d, 17" % (sT0, sT0))
    a.I("s_add_u32 s3, s3, s%d" % sT0)
    a.I("v_lshlrev_b32 v6, 12, v6")
    a.I("v_lshl_add_u32 v6, v7, 4, v6")
    a.I("v_add_u32 v%d, s3, v6" % vST)
    a.I("s_lshl_b32 s3, s%d, 14" % sGRP)
    a.I("v_lshl_add_u32 v%d, v0, 4, s3" % vIL)
    a.I("s_lshl_b32 s%d, s%d, 11" % (sT0, sW))
    a.I("s_add_u32 s3, s3, s%d" % sT0)
    a.I("v_lshl_add_u32 v9, v2, 7, s3")
    a.I("s_lshl_b32 s3, s%d, 5" % sX)
    a.I("v_mov_b32 v10, s3")
    a.I("s_lshl_b32 s%d, s%d, 7" % (sT0, sSUB))
    a.I("s_lshl_b32 s%d, s%d, 4" % (sT1, sW))
    a.I("s_add_u32 s%d, s%d, s%d" % (sT0, sT0, sT1))
    a.I("s_mul_i32 s%d, s%d, 896" % (sT0, sT0))
    a.I("s_lshl_b32 s%d, s%d, 7" % (sT1, sX))
    a.I("s_add_u32 s%d, s%d, s%d" % (sT0, sT0, sT1))
    a.I("v_mul_u32_u24 v11, 896, v2")
    a.I("v_add_u32 v11, s%d, v11" % sT0)
    if cfg.get("b0", 1) == 1:
        a.I("s_barrier")
    nlate = 1
    if not cfg.get("noinpf"):
        a.I("global_load_dword v%d, v9, %s %s" % (vDUMMY, sp(WS), cfg["nt_pf"]))
        nlate += 1
    a.I("global_load_dword v%d, v10, %s" % (vDUMMY, sp(DBG)))
    if not ssm_first:
        load_T_global(a, vS)
        nlate += 3
    if cfg.get("qpf", 0) == 0:
        a.I("global_load_dword v%d, v11, %s %s" % (vDUMMY, sp(Q), cfg["nt_pf"]))
        nlate += 1
    stamp(a, 0)
    srd(a, SRD_IN, Q, IN_BYTES)
    srd(a, SRD_OUT, OUT, OUT_BYTES)
    srd(a, SRD_W, WS, IN_BYTES)
    a.I("s_mov_b32 s%d, 65536" % s64K)
    a.I("s_mov_b32 s%d, 8192" % s8K)
    zero_quad(a, 56)
    zero_counters(a, 56, 4)
    zero_T_pads(a, 56, 9, 10)
    a.I("v_and_b32 v2, 255, v0")
    a.I("v_lshlrev_b32 v2, 4, v2")
    a.I("s_mul_i32 s3, s%d, %d" % (sHB, RS))
    a.I("s_add_u32 s3, s3, %d" % R_OFF)
    a.I("v_add_u32 v%d, s3, v2" % vRW)
    a.I("s_lshl_b32 s3, s%d, 5" % sX)
    a.I("s_add_u32 s3, s3, 15")
    a.I("s_lshl_b32 s%d, s%d, 2" % (sT0, sCH))
    a.I("s_sub_u32 s3, s3, s%d" % sT0)
    a.I("v_lshrrev_b32 v3, 4, v1")
    a.I("v_sub_u32 v%d, s3, v3" % vPA)
    a.I("s_and_b32 s3, s%d, 1" % sC)
    a.I("s_lshl_b32 s3, s3, 4")
    a.I("s_waitcnt lgkmcnt(0)")
    a.I("s_lshr_b32 s%d, s%d, s3" % (sT3, sT3))
    a.I("s_lshl_b32 s%d, s%d, 16" % (sT3, sT3))
    a.I("s_waitcnt vmcnt(%d)" % nlate)
    a.I("s_barrier")
    stamp(a, 1)
    q = LdsQueue(a)
    rd = {}
    for j in range(3):
        rd["h"] = q.op("ds_read_b32 v%d, v%d offset:%d" % (KK + j, vTo, 640 + 128 * j))
    for j in range(8):
        q.op("ds_read_b32 v%d, v%d offset:%d" % (KK + 3 + j, vTo, 1088 + 128 * j))
        rd[j] = q.op("ds_read_b32 v%d, v%d offset:%d" % (VV + j, vTo2, 128 * j))
        if j == 5:
            break
    a.I("v_lshlrev_b32 v%d, 16, v%d" % (WP + 0, WR_ + 0))
    a.I("v_lshlrev_b32 v%d, 16, v%d" % (WP + 1, WR_ + 2))
    a.I("v_and_b32 v%d, 0xffff0000, v%d" % (WP + 2, WR_ + 0))
    a.I("v_and_b32 v%d, 0xffff0000, v%d" % (WP + 3, WR_ + 2))
    a.I("v_lshlrev_b32 v%d, 16, v%d" % (WP + 4, WR_ + 1))
    a.I("v_lshlrev_b32 v%d, 16, v%d" % (WP + 5, WR_ + 3))
    a.I("v_and_b32 v%d, 0xffff0000, v%d" % (WP + 6, WR_ + 1))
    a.I("v_and_b32 v%d, 0xffff0000, v%d" % (WP + 7, WR_ + 3))

    def unp(dst, src):
        a.I("v_lshlrev_b32 v%d, 16, v%d" % (dst, src))
        a.I("v_and_b32 v%d, 0xffff0000, v%d" % (dst + 1, src))
    q.wait_for(rd["h"])
    for j in range(3):
        unp(KU + 2 * j, KK + j)
    for j in (6, 7):
        q.op("ds_read_b32 v%d, v%d offset:%d" % (KK + 3 + j, vTo, 1088 + 128 * j))
        rd[j] = q.op("ds_read_b32 v%d, v%d offset:%d" % (VV + j, vTo2, 128 * j))
    for r in range(8):
        if r % 2 == 0:
            q.wait_for(rd[r + 1])
        R_ = RES + 2 * r
        unp(KU + 2 * (r + 3), KK + 3 + r)
        a.I("v_pk_mul_f32 %s, %s, %s" % (vp(R_), vp(KU + 2 * r), vp(WP + 6)))
        vu = VU + 2 * (r & 1)
        unp(vu, VV + r)
        for t in (2, 1, 0):
            a.I("v_pk_fma_f32 %s, %s, %s, %s" % (vp(R_), vp(KU + 2 * (r + 3 - t)), vp(WP + 2 * t), vp(R_)))
        a.I("v_pk_mul_f32 %s, %s, %s" % (vp(R_), vp(R_), vp(vu)))
        if r & 1:
            for e in range(2):
                a.I("v_cvt_pk_bf16_f32 v%d, v%d, v%d" % (G + 4 * e + 3 - (r >> 1), R_ + e, R_ - 2 + e))
    a.I("ds_write_b128 v%d, %s" % (vSW, v4(G)))
    a.I("ds_write_b128 v%d, %s offset:80" % (vSW, v4(G + 4)))
    a.I("ds_read_b128 %s, v%d" % (v4(IN), vSR))
    a.I("ds_read_b128 %s, v%d offset:1280" % (v4(IN + 4), vSR))
    a.I("s_waitcnt lgkmcnt(1)")
    a.I("buffer_store_dwordx4 %s, v%d, %s, 0 offen" % (v4(IN), vST, s4(SRD_W)))
    a.I("s_waitcnt lgkmcnt(0)")
    a.I("buffer_store_dwordx4 %s, v%d, %s, s%d offen" % (v4(IN + 4), vST, s4(SRD_W), s64K))
    stamp(a, 2)
    if not ssm_first:
        a.I("s_waitcnt vmcnt(%d)" % (2 + (1 if cfg.get("qpf", 0) == 0 else 0)))
        build_T_from_global(a, vS)
    a.I("s_waitcnt vmcnt(0)")
    a.I("s_barrier")
    a.I("s_cmp_lg_u32 s%d, 0" % sW)
    a.I("s_cbranch_scc1 L_B_nf")
    a.I("s_lshl_b32 s3, s%d, 5" % sX)
    a.I("s_add_u32 s3, s3, s%d" % sSUB)
    a.I("v_mov_b32 v2, s3")
    a.I("v_mov_b32 v3, s%d" % sXCC)
    a.I("global_store_byte v2, v3, %s" % sp(DBG))
    a.label("L_B_nf")
    stamp(a, 3)
    zero_R_pad(a, 56, 2)
    a.I("s_cmp_eq_u32 s%d, 0" % sHB)
    a.I("s_cbranch_scc0 L_B_j1")
    conv_addr(a)
    a.I("s_branch L_B_j2")
    a.label("L_B_j1")
    help_rows(a)
    a.label("L_B_j2")
    if cfg.get("qpf", 0) == 1:
        a.I("global_load_dword v%d, v11, %s %s" % (vDUMMY, sp(Q), cfg["nt_pf"]))
    if cfg.get("qpf", 0) == 2:
        pass
    a.I("s_movk_i32 s%d, %d" % (sPOLL, cfg.get("polls", 64)))
    a.label("L_B_poll")
    a.I("global_load_ubyte v%d, v%d, %s sc1" % (vPV, vPA, sp(DBG)))
    a.I("s_waitcnt vmcnt(0)")
    a.I("v_cmp_ne_u32 vcc, s%d, v%d" % (sXCC, vPV))
    a.I("s_nop 1")
    a.I("s_cbranch_vccz L_B_got")
    a.I("s_sub_u32 s%d, s%d, 1" % (sPOLL, sPOLL))
    a.I("s_cmp_lg_u32 s%d, 0" % sPOLL)
    a.I("s_cbranch_scc1 L_B_poll")
    a.I("v_mov_b32 v2, 1")
    a.I("s_branch L_B_join")
    a.label("L_B_got")
    stamp(a, 8)
    a.I("buffer_load_dwordx4 %s, v%d, %s, 0 offen sc1" % (v4(IN), vIL, s4(SRD_W)))
    a.I("buffer_load_dwordx4 %s, v%d, %s, s%d offen sc1" % (v4(IN + 4), vIL, s4(SRD_W), s8K))
    a.I("v_mov_b32 v2, %d" % cfg.get("forcefb", 0))
    a.I("s_waitcnt vmcnt(1)")
    a.I("ds_write_b128 v%d, %s" % (vRW, v4(IN)))
    a.I("s_waitcnt vmcnt(0)")
    a.I("ds_write_b128 v%d, %s offset:%d" % (vRW, v4(IN + 4), 2 * RS))
    a.label("L_B_join")
    a.I("s_lshl_b32 s3, s%d, 8" % sW)
    a.I("s_add_u32 s3, s3, %d" % OKS_OFF)
    a.I("v_lshl_add_u32 v3, v1, 2, s3")
    a.I("ds_write_b32 v3, v2")
    a.I("v_and_b32 v3, 7, v1")
    a.I("v_lshlrev_b32 v3, 8, v3")
    a.I("v_add_u32 v3, %d, v3" % OKS_OFF)
    a.I("s_waitcnt lgkmcnt(0)")
    a.I("s_barrier")
    a.I("ds_read_b32 v2, v3")
    a.I("s_waitcnt lgkmcnt(0)")
    a.I("v_cmp_ne_u32 vcc, 0, v2")
    a.I("s_nop 1")
    a.I("s_cbranch_vccnz L_B_fb")
    a.label("L_B_go")
    stamp(a, 4)
    if cfg["dump"]:
        dump_lds(a)
    a.I("s_cmp_eq_u32 s%d, 0" % sHB)
    a.I("s_cbranch_scc1 L_CONV")
    help_qloads(a, 0, 8)
    a.I("s_branch L_HELP2")
    a.label("L_B_fb")
    vK, vVv, vO, vOH, vR = 144, 158, 40, 41, 42
    a.I("s_lshl_b32 s3, s%d, 5" % sGRP)
    a.I("s_load_dwordx8 s[%d:%d], %s, s3" % (16, 23, sp(SHK)))
    a.I("s_lshl_b32 s3, s%d, 3" % sGRP)
    a.I("v_mul_u32_u24 v24, 3584, v0")
    a.I("v_add_u32 v%d, s3, v24" % vO)
    a.I("v_add_u32 v%d, %d, v%d" % (vOH, -2688, vO))
    a.I("v_cmp_eq_u32 vcc, 0, v0")
    a.I("v_bfrev_b32 v2, 1")
    a.I("v_cndmask_b32 v%d, v%d, v2, vcc" % (vOH, vOH))
    a.I("v_lshlrev_b32 v3, 3, v0")
    a.I("v_sub_u32 v%d, %d, v3" % (vR, R_OFF + 4088))
    kv_loads(a, vK, vVv, vO, vOH)
    a.I("s_waitcnt lgkmcnt(0)")
    unpack_weights_uniform(a)
    a.I("s_waitcnt vmcnt(4)")
    kv_halo(a, vK)
    cfg["_vwait"] = 0
    kv_compute(a, vK, vVv, vR)
    a.I("s_waitcnt lgkmcnt(0)")
    a.I("s_barrier")
    a.I("s_branch L_B_go")


HEADER = open("cdna_kernels/%s.s.ref" % NAME).read().split("; Override launch geometry")[0]


def build():
    a = Asm()
    gen_entry(a)
    gen_A(a)
    gen_B(a)
    gen_conv(a)
    gen_help(a)
    a.label("L_end")
    a.I("s_endpgm")
    a.label("L_codeend")
    body = a.finalize()
    txt = HEADER
    txt += "; @launch grid=(256,1,1) block=(512,1,1) lds=%d\n" % LDS_SIZE
    txt += '.amdgcn_target "amdgcn-amd-amdhsa--gfx950"\n.text\n.globl %s_kernel\n.p2align 8\n.type %s_kernel,@function\n%s_kernel:\n' % (NAME, NAME, NAME)
    txt += body
    txt += """.section .rodata,"a"
.p2align 6
.amdhsa_kernel %s_kernel
  .amdhsa_next_free_vgpr %d
  .amdhsa_next_free_sgpr 102
  .amdhsa_accum_offset %d
  .amdhsa_group_segment_fixed_size 0
  .amdhsa_kernarg_size 128
  .amdhsa_user_sgpr_count 2
  .amdhsa_user_sgpr_kernarg_segment_ptr 1
  .amdhsa_system_sgpr_workgroup_id_x 1
  .amdhsa_float_denorm_mode_32 3
.end_amdhsa_kernel
""" % (NAME, NVGPR if not cfg["stamps"] else 232, NVGPR if not cfg["stamps"] else 232)
    return txt, a


if __name__ == "__main__":
    out = sys.argv[1]
    for kv in sys.argv[2:]:
        k, v = kv.split("=", 1)
        try:
            v = json.loads(v)
        except Exception:
            pass
        cfg[k] = v
    txt, a = build()
    open(out, "w").write(txt)
    print("instructions:", a.count(), "auto nops:", a.nops)
```

```python
import sys
import json
from asmgen import Asm, LdsQueue

NAME = "concat_heads__ssm_conv_s4d__ssm_conv_h3__prompt"

cfg = dict(
    stamps=0,
    dump=None,
    nt_in="nt",
    nt_pf="",
    nt_out="",
    codepf=2,
    lag=10,
    margin=10,
    look=40,
    phases=[[0, 4, 0, 8], [4, 8, 0, 8]],
    merge=[0, 2],
    hlong=[4, 30, 10, 30],
    p1=4,
    gate=1, upf_late=1, kpx=0.6, tprio=20, scal=[0, 3], km0=24, kmd=5, kspread=1,
    apf=4, qpf=3, prio=0, hprio=3, hsleep=2, b0=1, kprio=1,
    ul=[0.2, 0.35, 0.5, 0.65],
    uc=[0.55, 0.7, 0.85, 1.0],
    pre=10,
    hard=9,
)

ROWB = 2064
CS = 4160
TS = 4 * CS + 32
RS = 4576
YS = 4672
R_OFF = 0
Y_OFF = 4 * RS
T_OFF = 33 * ROWB
RAW_OFF = T_OFF + 4 * TS
RAWS = 2080
RED_OFF = RAW_OFF + 8 * RAWS
CNT_OFF = RED_OFF + 4 * 3072
GATE_OFF = CNT_OFF + 16
LDS_SIZE = CNT_OFF + 32
assert LDS_SIZE <= 163840 and Y_OFF + 4 * YS <= T_OFF
IN_BYTES = 2048 * 896
OUT_BYTES = 2048 * 1792

sX, sSUB, sGRP, sW = 4, 5, 6, 7
U, LAR, AIM, CR, CI, LDT, DSK, Q = 8, 10, 12, 14, 16, 18, 20, 22
K, V, SHK, SSK, SSD, OUT, DBG, WS = 24, 26, 28, 30, 32, 34, 36, 38
sPC = 40
sT0, sT1 = 42, 43
SRD_OUT, SRD_IN, SRD_K, SRD_V, SRD_SK = 44, 48, 52, 56, 60
sCH, sHB, sC, sT2, sT3, sT4, sISB = 88, 89, 90, 91, 92, 93, 94
sST = 96
vSTAMP = 254
vDUMMY = 255
NVGPR = 256


def sp(n):
    return "s[%d:%d]" % (n, n + 1)


def s4(n):
    return "s[%d:%d]" % (n, n + 3)


def vp(n):
    assert n % 2 == 0
    return "v[%d:%d]" % (n, n + 1)


def v4(n):
    assert n % 2 == 0
    return "v[%d:%d]" % (n, n + 3)


def stamp(a, idx):
    if cfg["stamps"] and (cfg.get("only") is None or idx in cfg["only"]):
        a.I("s_memrealtime %s" % sp(sST))
        a.I("s_memtime %s" % sp(sST + 2))
        a.I("s_waitcnt lgkmcnt(0)")
        a.I("v_writelane_b32 v%d, s%d, %d" % (vSTAMP, sST, idx))
        a.I("v_writelane_b32 v%d, s%d, %d" % (vSTAMP, sST + 2, idx + 32))


def stamp_flush(a):
    if cfg["stamps"]:
        a.I("s_lshl_b32 s%d, s2, 11" % sT0)
        a.I("s_lshl_b32 s%d, s%d, 8" % (sT1, sW))
        a.I("s_add_u32 s%d, s%d, s%d" % (sT0, sT0, sT1))
        a.I("s_add_u32 s%d, s%d, 0x1000000" % (sT0, sT0))
        a.I("v_lshl_add_u32 v2, v1, 2, s%d" % sT0)
        if cfg["stamps"] == 3:
            lab = "L_amp%d" % len(a.items)
            a.I("s_lshl_b32 s%d, s%d, 8" % (sT1, sW))
            a.I("s_or_b32 s%d, s2, s%d" % (sT0, sT1))
            a.I("s_cmp_eq_u32 s%d, %d" % (sT0, 0x400 + cfg["amp_wg"]))
            a.I("s_cbranch_scc0 %s" % lab)
            a.I("v_readlane_b32 s%d, v%d, %d" % (sT0, vSTAMP, cfg["amp_from"]))
            a.I("v_readlane_b32 s%d, v%d, %d" % (sT1, vSTAMP, cfg["amp_to"]))
            a.I("s_nop 4")
            a.I("s_sub_u32 s%d, s%d, s%d" % (sT0, sT1, sT0))
            a.I("s_mul_i32 s%d, s%d, 10" % (sT0, sT0))
            a.I("s_memrealtime %s" % sp(sST))
            a.I("s_waitcnt lgkmcnt(0)")
            a.I("s_mov_b32 s%d, s%d" % (sT1, sST))
            a.label(lab + "l")
            a.I("s_sleep 2")
            a.I("s_memrealtime %s" % sp(sST))
            a.I("s_waitcnt lgkmcnt(0)")
            a.I("s_sub_u32 s3, s%d, s%d" % (sST, sT1))
            a.I("s_cmp_lt_u32 s3, s%d" % sT0)
            a.I("s_cbranch_scc1 %sl" % lab)
            a.label(lab)
        elif cfg["stamps"] == 2:
            lab = "L_nodbg%d" % len(a.items)
            a.I("s_and_b32 s%d, s2, 0xfffffff7" % sT0)
            a.I("s_lshl_b32 s%d, s%d, 8" % (sT1, sW))
            a.I("s_or_b32 s%d, s%d, s%d" % (sT0, sT0, sT1))
            a.I("s_cmp_eq_u32 s%d, 0x400" % sT0)
            a.I("s_cbranch_scc0 %s" % lab)
            a.I("s_lshl_b32 s%d, s2, 2" % sT0)
            a.I("v_lshl_add_u32 v2, v1, 2, s%d" % sT0)
            a.I("s_mov_b32 exec_lo, 0xff")
            a.I("s_mov_b32 exec_hi, 0")
            a.I("global_store_dword v2, v%d, %s" % (vSTAMP, sp(DBG)))
            a.label(lab)
        else:
            a.I("global_store_dword v2, v%d, %s" % (vSTAMP, sp(WS)))


def srd(a, dst, ptr, nbytes):
    a.I("s_mov_b32 s%d, s%d" % (dst, ptr))
    a.I("s_mov_b32 s%d, s%d" % (dst + 1, ptr + 1))
    a.I("s_mov_b32 s%d, %d" % (dst + 2, nbytes))
    a.I("s_mov_b32 s%d, 0x20000" % (dst + 3))


def dump_lds(a):
    a.I("s_mul_i32 s%d, s2, 163840" % sT0)
    a.I("v_lshlrev_b32 v2, 4, v0")
    a.I("v_add_u32 v3, s%d, v2" % sT0)
    for j in range(LDS_SIZE // 8192 + 1):
        a.I("ds_read_b128 v[4:7], v2")
        a.I("s_waitcnt lgkmcnt(0)")
        a.I("global_store_dwordx4 v3, v[4:7], %s" % sp(WS))
        a.I("s_waitcnt vmcnt(0)")
        a.I("v_add_u32 v2, 8192, v2")
        a.I("v_add_u32 v3, 8192, v3")
    a.I("s_barrier")


def gen_entry(a):
    a.I("s_load_dwordx16 s[8:23], s[0:1], 0")
    a.I("s_load_dwordx16 s[24:39], s[0:1], 64")
    a.I("s_cmp_ge_u32 s2, 256")
    a.I("s_cbranch_scc1 L_end")
    a.I("s_and_b32 s%d, s2, 7" % sX)
    a.I("s_cmp_eq_u32 s%d, 7" % sX)
    a.I("s_cbranch_scc1 L_end")
    if cfg["codepf"]:
        a.I("s_getpc_b64 %s" % sp(sPC))
        a.label("L_pc")
        if cfg["codepf"] == 1:
            a.I("v_lshlrev_b32 v2, 7, v0")
        else:
            a.I("s_and_b32 s3, s2, 0xf8")
            a.I("v_and_b32 v2, 7, v0")
            a.I("v_add_u32 v2, s3, v2")
            a.I("v_lshlrev_b32 v2, 7, v2")
        a.I("v_min_u32 v2, L_codeend-L_pc-4, v2")
        a.I("global_load_dword v%d, v2, %s" % (vDUMMY, sp(sPC)))
    if cfg["stamps"]:
        a.I("v_mov_b32 v%d, 0" % vSTAMP)
        a.I("s_memrealtime %s" % sp(sST))
        a.I("s_waitcnt lgkmcnt(0)")
        a.I("v_writelane_b32 v%d, s%d, 9" % (vSTAMP, sST))
    a.I("v_lshrrev_b32 v2, 6, v0")
    a.I("v_and_b32 v1, 63, v0")
    a.I("v_readfirstlane_b32 s%d, v2" % sW)
    a.I("s_lshr_b32 s3, s2, 3")
    if cfg.get("afirst"):
        a.I("s_and_b32 s%d, s3, 15" % sSUB)
        a.I("s_lshr_b32 s3, s3, 4")
    else:
        a.I("s_lshr_b32 s%d, s3, 1" % sSUB)
    a.I("s_lshl_b32 s%d, s%d, 4" % (sGRP, sX))
    a.I("s_add_u32 s%d, s%d, s%d" % (sGRP, sGRP, sSUB))
    a.I("s_and_b32 s%d, s3, 1" % sISB)
    if cfg.get("afirst") == 2:
        a.I("s_xor_b32 s%d, s%d, 1" % (sISB, sISB))
    a.I("s_and_b32 s%d, s%d, 3" % (sCH, sW))
    a.I("s_lshr_b32 s%d, s%d, 2" % (sHB, sW))
    a.I("s_lshl_b32 s%d, s%d, 2" % (sC, sGRP))
    a.I("s_add_u32 s%d, s%d, s%d" % (sC, sC, sCH))
    a.I("s_cmp_eq_u32 s%d, 1" % sISB)
    a.I("s_cbranch_scc1 L_B")


def zero_quad(a, q):
    for i in range(4):
        a.I("v_mov_b32 v%d, 0" % (q + i))


def zero_R_pad(a, zq, tmp):
    a.I("s_mul_i32 s%d, s%d, %d" % (sT0, sCH, RS))
    a.I("s_add_u32 s%d, s%d, %d" % (sT0, sT0, R_OFF + 4096))
    a.I("v_min_u32 v%d, 29, v1" % tmp)
    a.I("v_lshl_add_u32 v%d, v%d, 4, s%d" % (tmp, tmp, sT0))
    a.I("ds_write_b128 v%d, %s" % (tmp, v4(zq)))


def zero_RAW_front(a, zq, tmp):
    a.I("v_and_b32 v%d, 1, v1" % tmp)
    a.I("v_lshlrev_b32 v%d, 4, v%d" % (tmp, tmp))
    a.I("v_add_u32 v%d, %d, v%d" % (tmp, RAW_OFF, tmp))
    a.I("ds_write_b128 v%d, %s" % (tmp, v4(zq)))


def zero_counters(a, zq, tmp):
    a.I("v_lshlrev_b32 v%d, 4, v1" % tmp)
    a.I("v_add_u32 v%d, %d, v%d" % (tmp, CNT_OFF, tmp))
    a.I("s_mov_b64 exec, 3")
    a.I("ds_write_b128 v%d, %s" % (tmp, v4(zq)))
    a.I("s_mov_b64 exec, -1")


def zero_T_pads(a, zq, t0, t1):
    a.I("v_bfe_u32 v%d, v1, 3, 2" % t0)
    a.I("v_mul_u32_u24 v%d, %d, v%d" % (t0, TS, t0))
    a.I("v_bfe_u32 v%d, v1, 1, 2" % t1)
    a.I("v_mul_u32_u24 v%d, %d, v%d" % (t1, CS, t1))
    a.I("v_add_u32 v%d, v%d, v%d" % (t0, t0, t1))
    a.I("v_and_b32 v%d, 1, v1" % t1)
    a.I("v_lshl_add_u32 v%d, v%d, 4, v%d" % (t0, t1, t0))
    a.I("v_add_u32 v%d, %d, v%d" % (t0, T_OFF, t0))
    a.I("ds_write_b128 v%d, %s" % (t0, v4(zq)))


vU = 8
vP = 16
vAB = 20
v2DT = 22
vOFFU = 24
vAA = 25
vZ, vC, vV, vW, vG, vXc, vQ, vT, vT2 = 28, 30, 32, 34, 36, 38, 40, 42, 44
vTMP = 46
vO = 52
vZQ = 56
vNEG = 152
vX2, vQ2 = 156, 158
vACC = 64
vOP = 80
sLHI, sLLO, sLN2 = 64, 65, 66
s8, s256 = 68, 70
sHM, sODD = 72, 74
sSO = 76
sM0 = 80


class KG:
    def __init__(self, a, nscal=0):
        self.a = a
        self.k = 0
        self.n = 0
        self.nscal = nscal
        self.ntail = 0

    def cmul(self, D, X, Y, T=vT):
        a = self.a
        self.n += 1
        if self.n <= self.nscal or self.n > 50 - self.ntail:
            assert D != X
            ny = {vV: vNEG, vW: vNEG + 1, vG: vNEG + 2}[Y]
            a.I("v_mul_f32 v%d, v%d, v%d" % (D, X + 1, ny))
            a.I("v_mul_f32 v%d, v%d, v%d" % (D + 1, X + 1, Y))
            a.I("v_fmac_f32 v%d, v%d, v%d" % (D, X, Y))
            a.I("v_fmac_f32 v%d, v%d, v%d" % (D + 1, X, Y + 1))
            return
        a.I("v_pk_mul_f32 %s, %s, %s op_sel:[1,1] op_sel_hi:[1,0] neg_lo:[1,0]" % (vp(T), vp(X), vp(Y)))
        a.I("v_pk_fma_f32 %s, %s, %s, %s op_sel_hi:[0,1,1]" % (vp(D), vp(X), vp(Y), vp(T)))

    def out(self, row, X, neg):
        a = self.a
        r = vO + (self.k & 3)
        self.k += 1
        a.I("v_cvt_pk_bf16_f32 v%d, v%d, %sv%d" % (r, X, "-" if neg else "", X + 1))
        a.I("ds_write_addtid_b32 v%d offset:%d" % (r, row * ROWB))

    def anchor(self, P, Zs):
        a = self.a
        a.I("v_fract_f32 v%d, v%d" % (vTMP + 1, Zs + 1))
        a.I("v_exp_f32 v%d, v%d" % (vTMP, Zs))
        a.I("v_cos_f32 v%d, v%d" % (P, vTMP + 1))
        a.I("v_sin_f32 v%d, v%d" % (P + 1, vTMP + 1))
        if self.nscal:
            a.I("v_mul_f32 v%d, v%d, v%d" % (P, P, vTMP))
            a.I("v_mul_f32 v%d, v%d, v%d" % (P + 1, P + 1, vTMP))
            a.I("v_sub_f32 v%d, 0, v%d" % ({vV: vNEG, vW: vNEG + 1, vG: vNEG + 2}[P], P + 1))
        else:
            a.I("v_pk_mul_f32 %s, %s, %s op_sel_hi:[1,0]" % (vp(P), vp(P), vp(vTMP)))


def exp_bf16(a, dst, x, t0, t1):
    a.I("v_mul_f32 v%d, s%d, v%d" % (t0, sLHI, x))
    a.I("v_fma_f32 v%d, v%d, s%d, -v%d" % (t1, x, sLHI, t0))
    a.I("v_exp_f32 v%d, v%d" % (t0, t0))
    a.I("v_fmac_f32 v%d, s%d, v%d" % (t1, sLLO, x))
    a.I("v_mul_f32 v%d, s%d, v%d" % (t1, sLN2, t1))
    a.I("v_fmac_f32 v%d, v%d, v%d" % (t0, t0, t1))
    a.I("v_cvt_pk_bf16_f32 v%d, v%d, v%d" % (t0, t0, t0))
    a.I("v_lshlrev_b32 v%d, 16, v%d" % (dst, t0))


def kgen_batch(beta):
    b = Asm()
    nscal = cfg.get("scal", [0, 0])[beta]
    kg = KG(b, nscal)
    kg.ntail = cfg.get("stail", [0, 0])[beta]
    assert nscal or not kg.ntail

    def unpack(dst, src):
        if beta == 0:
            b.I("v_lshlrev_b32 v%d, 16, v%d" % (dst, src))
        else:
            b.I("v_and_b32 v%d, 0xffff0000, v%d" % (dst, src))

    unpack(vTMP + 2, vP + 0)
    unpack(vZ + 1, vP + 1)
    unpack(vC, vP + 2)
    unpack(vC + 1, vP + 3)
    exp_bf16(b, vZ, vTMP + 2, vTMP + 3, vTMP + 4)
    sc = nscal > 0

    def pkmul(D, X, Y, bc):
        if not sc:
            b.I("v_pk_mul_f32 %s, %s, %s%s" % (vp(D), vp(X), Y[0], " op_sel_hi:[1,0]" if bc else ""))
        else:
            b.I("v_mul_f32 v%d, %s, v%d" % (D, Y[1], X))
            b.I("v_mul_f32 v%d, %s, v%d" % (D + 1, Y[1] if bc else Y[2], X + 1))
    pkmul(vC, vC, (vp(v2DT), "v%d" % v2DT), True)
    pkmul(vZ, vZ, (vp(vAB), "v%d" % vAB, "v%d" % (vAB + 1)), False)
    kg.out(0, vC, True)
    pkmul(vT2, vZ, (sp(s256), "s%d" % s256), True)
    kg.anchor(vG, vT2)
    pkmul(vT2, vZ, (sp(s8), "s%d" % s8), True)
    kg.anchor(vW, vT2)
    kg.anchor(vV, vZ)

    def other(r, p, p2):
        return (p2 if r == p else p) if sc else p
    src = vC
    for row in (8, 12, 16, 20, 18, 22, 19, 23):
        d = other(src, vQ, vQ2)
        kg.cmul(d, src, vG)
        kg.out(row, d, True)
        src = d
    src = vC
    for r in range(1, 8):
        d = other(src, vXc, vX2)
        kg.cmul(d, src, vV)
        kg.out(r, d, True)
        src = d
        if r == 2:
            kg.cmul(vQ, src, vG)
            kg.out(9, vQ, True)
        if r == 4:
            qq = src
            for row in (10, 13, 17):
                d2 = other(qq, vQ, vQ2)
                kg.cmul(d2, qq, vG)
                kg.out(row, d2, True)
                qq = d2
        if r == 6:
            kg.cmul(vQ, src, vG)
            kg.out(11, vQ, True)
    partA = [it.text for it in b.items]
    b = Asm()
    kg.a = b
    kg.out(31, vW, False)
    src = vW
    for j in range(2, 32):
        d = other(src, vXc, vX2)
        kg.cmul(d, src, vW)
        kg.out(32 - j, d, False)
        src = d
    return partA, [it.text for it in b.items]


vAB_ = 26
vUR, vUW, vUT = 4, 5, 6
vUH = 60
vTR = 144


def gen_kgen_stream(a):
    q = LdsQueue(a)
    A0, B0 = kgen_batch(0)
    A1, B1 = kgen_batch(1)
    OPA, OPB = vOP, vOP + 32
    st = {"vm": 0, "vmidx": {}}
    rb = {}

    def read(kind, s_):
        def f():
            if cfg.get("kx_noreads"):
                rb[s_] = -1
            elif kind == "A":
                q.op("ds_read_b128 %s, v%d offset:%d" % (v4(OPA + 4 * s_), vAA, 32 * s_))
            else:
                rb[s_] = q.op("ds_read_b128 %s, v%d offset:%d" % (v4(OPB + 4 * s_), vAB_, 32 * s_))
        return f

    def mfma(s_, first):
        def f():
            if cfg.get("kx_nomfma"):
                return
            q.wait_for(rb[s_])
            c = "0" if (first and s_ == 0) else "v[%d:%d]" % (vACC, vACC + 15)
            a.I("v_mfma_f32_32x32x16_bf16 v[%d:%d], %s, %s, %s" % (vACC, vACC + 15, v4(OPA + 4 * s_), v4(OPB + 4 * s_), c))
        return f

    def uload(j):
        def f():
            if j == 0:
                a.I("s_mov_b64 exec, 7")
                a.I("buffer_load_dwordx2 %s, v7, %s, 0 offen" % (vp(vUH), s4(SRD_IN)))
                a.I("s_mov_b64 exec, -1")
                st["vm"] += 1
            a.I("buffer_load_dwordx2 %s, v%d, %s, s%d offen" % (vp(vU + 2 * j), vOFFU, s4(SRD_IN), sSO + j))
            st["vm"] += 1
            st["vmidx"][j] = st["vm"]
        return f

    def tbuild(js):
        steps = []
        tr = {}
        for j in js:
            def raw(j=j):
                a.I("s_waitcnt vmcnt(%d)" % (st["vm"] - st["vmidx"][j]))
                if j == 0:
                    a.I("s_mov_b64 exec, 7")
                    q.op("ds_write_b64 v%d, %s" % (vUR, vp(vUH)))
                    a.I("s_mov_b64 exec, -1")
                q.op("ds_write_b64 v%d, %s offset:%d" % (vUR, vp(vU + 2 * j), 24 + 512 * j))
            steps.append(raw)
        slots = [(j, c) for j in js for c in range(4)]
        D = cfg.get("tdepth", 6)
        assert D < 8
        for n_ in range(len(slots) + D):
            if n_ < len(slots):
                def rd(n_=n_):
                    j, c = slots[n_]
                    tr[n_] = q.op("ds_read_b64_tr_b16 %s, v%d offset:%d" % (vp(vTR + 2 * (n_ % 8)), vUW, 512 * j + 8 * (3 - c)))
                steps.append(rd)
            if n_ >= D:
                def wr(n_=n_ - D):
                    j, c = slots[n_]
                    q.wait_for(tr[n_])
                    q.op("ds_write_b64 v%d, %s offset:%d" % (vUT, vp(vTR + 2 * (n_ % 8)), c * CS + 128 * j))
                steps.append(wr)
        return steps

    nA0, nB0, nA1, nB1 = len(A0), len(B0), len(A1), len(B1)
    tot = nA0 + nB0 + nA1 + nB1
    ins = {}

    def at(pos, f):
        ins.setdefault(pos, []).append(f)
    sp_ = cfg.get("kspread", 2)
    if cfg.get("kbar", 0) & 1:
        at(nA0 + nB0 - cfg.get("kbarpos", 0), lambda: a.I("s_barrier"))
    for s_ in range(8):
        at(nA0 + 1 + 3 * s_, read("A", s_))
        at(nA0 + nB0 + sp_ * s_, read("B", s_))
        at(nA0 + nB0 + nA1 + 1 + 3 * s_, read("A", s_))
    first_conf = [i for i, t in enumerate(B0) if t.endswith("offset:%d" % (23 * ROWB))][0]
    assert 1 + 3 * 7 <= first_conf
    if cfg.get("kstamps"):
        at(nA0, lambda: stamp(a, 10))
        at(nA0 + nB0, lambda: stamp(a, 11))
        at(nA0 + nB0 + nA1, lambda: stamp(a, 12))
    m0 = nA0 + nB0 + cfg.get("km0", 20)
    kmd = cfg.get("kmd", 9)
    for s_ in range(8):
        at(m0 + s_ * kmd, mfma(s_, True))
    assert m0 + 7 * kmd < nA1 + nA0 + nB0
    early = cfg.get("tearly", [])
    if not cfg.get("nou"):
        for j in range(4):
            at(int(tot * cfg["ul"][j]), uload(j))
        if early:
            steps = tbuild(early)
            p = int(tot * cfg.get("tpos", 0.62))
            for n_, f in enumerate(steps):
                at(p + n_ * cfg.get("tstep", 3), f)
    if cfg.get("apf", 0) & 4:
        def qpf():
            a.I("global_load_dword v%d, v27, %s %s" % (vDUMMY, sp(Q), cfg["nt_pf"]))
            st["vm"] += 1
        at(int(tot * cfg.get("aq", 0.8)), qpf)
    kp = cfg.get("kprio", 0)
    if kp:
        a.I("s_cmp_eq_u32 s%d, 0" % sHB)
        a.I("s_cbranch_scc1 L_kp0")
        a.I("s_setprio 1")
        a.label("L_kp0")
        at(int(tot * cfg.get("kpx", 0.5)), lambda: a.I("s_setprio 0"))
    for i, t in enumerate(A0 + B0 + A1 + B1):
        for f in ins.get(i, []):
            f()
        if t.startswith("ds_"):
            if not cfg.get("kx_nowrites"):
                q.op(t)
        else:
            a.I(t)
    if cfg.get("kstamps"):
        stamp(a, 13)
    if cfg.get("kbar", 0) & 2:
        a.I("s_barrier")
    for s_ in range(8):
        read("B", s_)()
    rest = [j for j in range(4) if j not in early]

    def final(with_t):
        steps = tbuild(rest) if (with_t and not cfg.get("nou")) else []
        per = -(-len(steps) // 9) if steps else 0
        k = 0
        for s_ in range(8):
            for f in steps[k:k + per]:
                f()
            k += per
            mfma(s_, False)()
        for f in steps[k:]:
            f()

    def only_t():
        for n_, f in enumerate([] if cfg.get("nou") else tbuild(rest)):
            if n_ == cfg.get("tprio", 14):
                a.I("s_setprio 3")
            f()
    return q, final, only_t


def gen_A(a):
    a.label("L_A")
    a.I("s_lshl_b32 s3, s%d, 9" % sC)
    a.I("s_lshl_b32 s%d, s%d, 8" % (sT0, sHB))
    a.I("s_add_u32 s3, s3, s%d" % sT0)
    a.I("v_lshl_add_u32 v4, v1, 2, s3")
    a.I("s_lshl_b32 s%d, s%d, 7" % (sT0, sSUB))
    a.I("s_lshl_b32 s%d, s%d, 4" % (sT1, sW))
    a.I("s_add_u32 s%d, s%d, s%d" % (sT0, sT0, sT1))
    a.I("s_mul_i32 s%d, s%d, 896" % (sT0, sT0))
    a.I("s_lshl_b32 s%d, s%d, 7" % (sT1, sX))
    a.I("s_add_u32 s%d, s%d, s%d" % (sT0, sT0, sT1))
    a.I("v_and_b32 v5, 15, v1")
    a.I("v_mul_u32_u24 v5, 896, v5")
    a.I("v_add_u32 v5, s%d, v5" % sT0)
    a.I("s_lshr_b32 s3, s%d, 1" % sC)
    a.I("s_lshl_b32 s3, s3, 2")
    a.I("s_waitcnt lgkmcnt(0)")
    for i, p in enumerate((LAR, AIM, CR, CI)):
        a.I("global_load_dword v%d, v4, %s %s" % (vP + i, sp(p), cfg["nt_in"]))
    a.I("s_load_dword s%d, %s, s3" % (sT2, sp(LDT)))
    a.I("s_load_dword s%d, %s, s3" % (sT3, sp(DSK)))
    if cfg.get("upf_late"):
        a.I("v_mov_b32 v27, v5")
    else:
        a.I("global_load_dword v%d, v5, %s %s" % (vDUMMY, sp(U), cfg["nt_pf"]))
    stamp(a, 0)
    srd(a, SRD_IN, U, IN_BYTES)
    srd(a, SRD_OUT, OUT, OUT_BYTES)
    for j in range(4):
        a.I("s_mov_b32 s%d, %d" % (sSO + j, j * 64 * 896))
    a.I("s_lshl_b32 s3, s%d, 3" % sGRP)
    a.I("s_mul_i32 s%d, s%d, %d" % (sT0, sW, 256 * 896))
    a.I("s_add_u32 s3, s3, s%d" % sT0)
    a.I("v_mul_u32_u24 v%d, 896, v1" % vOFFU)
    a.I("v_add_u32 v%d, s3, v%d" % (vOFFU, vOFFU))
    a.I("v_add_u32 v7, %d, v%d" % (-2688, vOFFU))
    a.I("s_mov_b32 s%d, 0x3fb8aa3b" % sLHI)
    a.I("s_mov_b32 s%d, 0x32a57060" % sLLO)
    a.I("s_mov_b32 s%d, 0x3f317218" % sLN2)
    a.I("s_mov_b32 s%d, 0x41000000" % s8)
    a.I("s_mov_b32 s%d, 0x43800000" % s256)
    a.I("s_mov_b32 s%d, 0" % sHM)
    a.I("s_mov_b32 s%d, -1" % (sHM + 1))
    a.I("s_mov_b32 s%d, 0xaaaaaaaa" % sODD)
    a.I("s_mov_b32 s%d, 0xaaaaaaaa" % (sODD + 1))
    a.I("s_lshl_b32 s3, s%d, 8" % sW)
    a.I("s_mov_b32 m0, s3")
    a.I("v_and_b32 v2, 31, v1")
    a.I("v_mul_u32_u24 v3, %d, v2" % ROWB)
    a.I("v_lshrrev_b32 v4, 5, v1")
    a.I("v_lshl_add_u32 v4, v4, 4, s3")
    a.I("v_add_u32 v%d, v3, v4" % vAA)
    a.I("v_mov_b32 v5, %d" % (32 * ROWB))
    a.I("v_sub_u32 v3, v5, v3")
    a.I("v_add_u32 v%d, v3, v4" % vAB_)
    a.I("v_lshl_add_u32 v2, v1, 2, s3")
    a.I("v_add_u32 v2, v5, v2")
    a.I("v_mov_b32 v%d, 0x3f80" % vO)
    a.I("ds_write_b32 v2, v%d" % vO)
    zero_quad(a, vZQ)
    zero_counters(a, vZQ, 2)
    zero_T_pads(a, vZQ, 2, 3)
    if cfg.get("upf_late") == 1:
        a.I("global_load_dword v%d, v27, %s %s" % (vDUMMY, sp(U), cfg["nt_pf"]))
    napf = 0
    if cfg.get("apf"):
        a.I("s_lshl_b32 s3, s%d, 14" % sGRP)
        a.I("s_lshl_b32 s%d, s%d, 11" % (sT0, sW))
        a.I("s_add_u32 s3, s3, s%d" % sT0)
        a.I("v_and_b32 v63, 15, v1")
        a.I("v_lshl_add_u32 v63, v63, 7, s3")
        if cfg["apf"] & 1:
            a.I("global_load_dword v%d, v63, %s %s" % (vDUMMY, sp(WS), cfg["nt_pf"]))
            napf += 1
        if cfg["apf"] & 2:
            a.I("global_load_dword v%d, v63, %s %s" % (vDUMMY, sp(SSK), cfg["nt_pf"]))
            napf += 1
    a.I("s_mul_i32 s3, s%d, %d" % (sW, RAWS))
    a.I("s_add_u32 s3, s3, %d" % RAW_OFF)
    a.I("v_lshl_add_u32 v%d, v1, 3, s3" % vUR)
    a.I("v_and_b32 v2, 3, v1")
    a.I("v_bfe_u32 v3, v1, 2, 2")
    a.I("v_lshrrev_b32 v62, 4, v1")
    a.I("v_lshl_add_u32 v%d, v2, 2, v3" % vUW)
    a.I("v_lshl_add_u32 v%d, v62, 4, v%d" % (vUW, vUW))
    a.I("v_lshl_add_u32 v%d, v%d, 3, s3" % (vUW, vUW))
    a.I("v_lshl_add_u32 v3, v62, 2, v3")
    a.I("v_mul_u32_u24 v2, %d, v2" % TS)
    a.I("v_lshl_add_u32 v2, v3, 3, v2")
    a.I("s_lshl_b32 s3, s%d, 9" % sW)
    a.I("s_add_u32 s3, s3, %d" % (T_OFF + 32))
    a.I("v_add_u32 v%d, s3, v2" % vUT)
    a.I("s_and_b32 s3, s%d, 1" % sC)
    a.I("s_lshl_b32 s3, s3, 4")
    a.I("s_waitcnt lgkmcnt(0)")
    a.I("s_lshr_b32 s%d, s%d, s3" % (sT2, sT2))
    a.I("s_lshl_b32 s%d, s%d, 16" % (sT2, sT2))
    a.I("s_lshr_b32 s%d, s%d, s3" % (sT3, sT3))
    a.I("s_lshl_b32 s%d, s%d, 16" % (sT3, sT3))
    a.I("v_mov_b32 v%d, s%d" % (vTMP + 2, sT2))
    exp_bf16(a, vTMP + 5, vTMP + 2, vTMP + 3, vTMP + 4)
    a.I("v_mul_f32 v%d, 0xbfb8aa3b, v%d" % (vAB, vTMP + 5))
    a.I("v_mul_f32 v%d, 0.15915494, v%d" % (vAB + 1, vTMP + 5))
    a.I("v_add_f32 v%d, v%d, v%d" % (v2DT, vTMP + 5, vTMP + 5))
    a.I("s_waitcnt vmcnt(%d)" % ((0 if cfg.get("upf_late") == 2 else 1) + napf))
    stamp(a, 1)
    if cfg.get("upf_late") == 2:
        a.I("global_load_dword v%d, v27, %s %s" % (vDUMMY, sp(U), cfg["nt_pf"]))
    q, final, only_t = gen_kgen_stream(a)
    a.I("s_mul_i32 s3, s%d, 3072" % sCH)
    a.I("s_add_u32 s3, s3, %d" % RED_OFF)
    a.I("v_lshl_add_u32 v2, v1, 4, s3")
    a.I("s_cmp_eq_u32 s%d, 0" % sHB)
    a.I("s_cbranch_scc1 L_A_lo")
    saved = (q.n, q.done)
    split = cfg.get("tsplit", 1)
    final(not split)
    stamp(a, 2)
    for k in range(3):
        q.op("ds_write_b128 v2, %s offset:%d" % (v4(vACC + 4 * k), 1024 * k))
    q.drain()
    a.I("s_barrier")
    stamp(a, 3)
    if split:
        only_t()
    a.I("s_lshl_b32 s3, s%d, 2" % sCH)
    a.I("s_add_u32 s3, s3, %d" % GATE_OFF)
    a.I("v_mov_b32 v2, s3")
    a.I("v_mov_b32 v3, 1")
    a.I("s_mov_b64 exec, 1")
    a.I("ds_write_b32 v2, v3")
    a.I("s_mov_b64 exec, -1")
    stamp(a, 4)
    if cfg["dump"]:
        a.I("s_barrier")
        dump_lds(a)
    a.I("s_branch L_HELP")
    a.label("L_A_lo")
    q.n, q.done = saved
    final(True)
    stamp(a, 2)
    a.I("s_mul_i32 s3, s%d, %d" % (sCH, RS))
    a.I("s_add_u32 s3, s3, %d" % (R_OFF + 4080 - 2 * 1792 + 1024))
    a.I("v_lshlrev_b32 v4, 4, v1")
    a.I("v_sub_u32 v4, s3, v4")
    a.I("v_and_b32 v5, 31, v1")
    a.I("v_lshlrev_b32 v5, 4, v5")
    a.I("v_lshrrev_b32 v6, 5, v1")
    a.I("v_lshl_add_u32 v5, v6, 3, v5")
    a.I("s_add_u32 s3, s3, %d" % (2 * 1792 + 8 - 1024))
    a.I("v_sub_u32 v5, s3, v5")
    a.I("v_cmp_eq_u32 vcc, 0, v1")
    a.I("v_mov_b32 v6, s%d" % sT3)
    a.I("v_cndmask_b32 v6, 0, v6, vcc")
    conv_addr(a, tmp=(8, 9, 10, 11))
    a.I("s_waitcnt lgkmcnt(0)")
    a.I("s_barrier")
    stamp(a, 3)
    zero_R_pad(a, vZQ, 3)
    P = vOP
    for k in range(3):
        a.I("ds_read_b128 %s, v2 offset:%d" % (v4(P + 4 * k), 1024 * k))
    A_ = vACC
    a.I("v_add_f32 v%d, v%d, v6" % (A_, A_))
    for k in range(3):
        a.I("s_waitcnt lgkmcnt(%d)" % (2 - k))
        for h in range(2):
            r = 4 * k + 2 * h
            a.I("v_pk_add_f32 %s, %s, %s" % (vp(A_ + r), vp(A_ + r), vp(P + r)))
    N4, N8, N10, N11 = vOP + 12, vOP + 13, vOP + 14, vOP + 15
    X = vOP + 16
    O = vOP + 24
    dpp = "row_mask:0xf bank_mask:0xf"
    a.I("v_cvt_pk_bf16_f32 v%d, v%d, v%d" % (O, A_ + 3, A_ + 2))
    a.I("v_cvt_pk_bf16_f32 v%d, v%d, v%d" % (O + 1, A_ + 1, A_ + 0))
    a.I("ds_write_b64 v5, %s" % vp(O))
    a.I("v_mov_b32_dpp v%d, v%d wave_rol:1 %s" % (N4, A_ + 8, dpp))
    a.I("v_mov_b32_dpp v%d, v%d wave_rol:1 %s" % (N8, A_ + 10, dpp))
    a.I("v_mov_b32_dpp v%d, v%d wave_rol:1 %s" % (N10, A_ + 11, dpp))
    a.I("v_mov_b32_dpp v%d, v%d wave_rol:1 %s" % (N11, A_ + 11, dpp))
    a.I("v_mov_b32_dpp v%d, v%d wave_shl:1 %s" % (N4, A_ + 4, dpp))
    a.I("v_mov_b32_dpp v%d, v%d wave_shl:1 %s" % (N8, A_ + 8, dpp))
    a.I("v_mov_b32_dpp v%d, v%d wave_shl:1 %s" % (N10, A_ + 10, dpp))
    hm, od = sp(sHM), sp(sODD)
    a.I("v_cndmask_b32 v%d, v%d, v%d, %s" % (X + 0, A_ + 7, N4, hm))
    a.I("v_cndmask_b32 v%d, v%d, v%d, %s" % (X + 1, A_ + 6, A_ + 5, hm))
    a.I("v_cndmask_b32 v%d, v%d, v%d, %s" % (X + 2, A_ + 5, A_ + 4, hm))
    a.I("v_cvt_pk_bf16_f32 v%d, v%d, v%d" % (O + 4, N4, X + 0))
    a.I("v_cvt_pk_bf16_f32 v%d, v%d, v%d" % (O + 5, X + 1, X + 1))
    a.I("v_cvt_pk_bf16_f32 v%d, v%d, v%d" % (O + 6, X + 1, X + 2))
    a.I("v_cvt_pk_bf16_f32 v%d, v%d, v%d" % (O + 7, A_ + 4, A_ + 4))
    a.I("ds_write_b128 v4, %s offset:%d" % (v4(O + 4), 2 * (1280 - 256)))
    a.I("v_cndmask_b32 v%d, v%d, v%d, %s" % (X + 3, A_ + 9, N8, hm))
    a.I("v_cndmask_b32 v%d, v%d, v%d, %s" % (X + 4, A_ + 8, N8, od))
    a.I("v_cndmask_b32 v%d, v%d, v%d, %s" % (X + 4, A_ + 9, X + 4, hm))
    a.I("v_cndmask_b32 v%d, v%d, v%d, %s" % (X + 5, A_ + 9, A_ + 8, hm))
    a.I("v_cvt_pk_bf16_f32 v%d, v%d, v%d" % (O + 8, N8, N8))
    a.I("v_cvt_pk_bf16_f32 v%d, v%d, v%d" % (O + 9, X + 3, X + 4))
    a.I("v_cvt_pk_bf16_f32 v%d, v%d, v%d" % (O + 10, X + 5, A_ + 8))
    a.I("v_cvt_pk_bf16_f32 v%d, v%d, v%d" % (O + 11, A_ + 8, A_ + 8))
    a.I("ds_write_b128 v4, %s offset:%d" % (v4(O + 8), 2 * (1280 - 768)))
    for (src, nx, o, base) in ((A_ + 10, N10, O + 12, 1280), (A_ + 11, N11, O + 16, 1792)):
        a.I("v_cndmask_b32 v%d, v%d, v%d, %s" % (X + 6, src, nx, od))
        a.I("v_cvt_pk_bf16_f32 v%d, v%d, v%d" % (o, nx, nx))
        a.I("v_cvt_pk_bf16_f32 v%d, v%d, v%d" % (o + 1, nx, X + 6))
        a.I("v_cvt_pk_bf16_f32 v%d, v%d, v%d" % (o + 2, src, src))
        a.I("v_cvt_pk_bf16_f32 v%d, v%d, v%d" % (o + 3, src, src))
        if base == 1792:
            a.I("v_add_u32 v7, -1024, v4")
            a.I("s_mov_b32 exec_hi, 0")
            a.I("ds_write_b128 v7, %s" % v4(o))
        else:
            a.I("ds_write_b128 v4, %s" % v4(o))
    a.I("s_mov_b32 exec_hi, -1")
    stamp(a, 4)
    if cfg["dump"]:
        a.I("s_waitcnt lgkmcnt(0)")
        a.I("s_barrier")
        dump_lds(a)
    a.I("s_branch L_CONV")


vCA, vCB, vCY, vCF, vONE, vGATE, vTHR = 25, 26, 27, 28, 29, 30, 31
ACC = 32
POOL0 = 64
NPOOL = 47
vCV = 4


def conv_addr(a, tmp=(2, 3, 4, 5)):
    a2, a3, a4, a5 = tmp
    a.I("v_and_b32 v{a2}, 15, v1".format(a2=a2, a3=a3, a4=a4, a5=a5))
    a.I("v_lshrrev_b32 v{a3}, 4, v1".format(a2=a2, a3=a3, a4=a4, a5=a5))
    a.I("v_sub_u32 v{a4}, 15, v{a2}".format(a2=a2, a3=a3, a4=a4, a5=a5))
    a.I("v_and_b32 v{a5}, 3, v{a4}".format(a2=a2, a3=a3, a4=a4, a5=a5))
    a.I("v_mul_u32_u24 v{a5}, %d, v{a5}".format(a2=a2, a3=a3, a4=a4, a5=a5) % CS)
    a.I("v_lshrrev_b32 v{a4}, 2, v{a4}".format(a2=a2, a3=a3, a4=a4, a5=a5))
    a.I("v_lshlrev_b32 v{a4}, 3, v{a4}".format(a2=a2, a3=a3, a4=a4, a5=a5))
    a.I("v_sub_u32 v{a5}, v{a5}, v{a4}".format(a2=a2, a3=a3, a4=a4, a5=a5))
    a.I("v_lshl_add_u32 v{a5}, v{a3}, 4, v{a5}".format(a2=a2, a3=a3, a4=a4, a5=a5))
    a.I("s_mul_i32 s3, s%d, %d".format(a2=a2, a3=a3, a4=a4, a5=a5) % (sCH, TS))
    a.I("s_add_u32 s3, s3, %d".format(a2=a2, a3=a3, a4=a4, a5=a5) % (T_OFF + 32))
    a.I("v_add_u32 v%d, s3, v{a5}".format(a2=a2, a3=a3, a4=a4, a5=a5) % vCA)
    a.I("v_lshlrev_b32 v{a4}, 5, v{a2}".format(a2=a2, a3=a3, a4=a4, a5=a5))
    a.I("v_lshlrev_b32 v{a5}, 4, v{a3}".format(a2=a2, a3=a3, a4=a4, a5=a5))
    a.I("v_sub_u32 v{a5}, v{a5}, v{a4}".format(a2=a2, a3=a3, a4=a4, a5=a5))
    a.I("s_mul_i32 s3, s%d, %d".format(a2=a2, a3=a3, a4=a4, a5=a5) % (sCH, RS))
    a.I("s_add_u32 s3, s3, %d".format(a2=a2, a3=a3, a4=a4, a5=a5) % (R_OFF + 480))
    a.I("v_add_u32 v%d, s3, v{a5}".format(a2=a2, a3=a3, a4=a4, a5=a5) % vCB)
    a.I("v_mul_u32_u24 v{a5}, 144, v{a3}".format(a2=a2, a3=a3, a4=a4, a5=a5))
    a.I("v_lshl_add_u32 v{a5}, v{a2}, 3, v{a5}".format(a2=a2, a3=a3, a4=a4, a5=a5))
    a.I("s_mul_i32 s3, s%d, %d".format(a2=a2, a3=a3, a4=a4, a5=a5) % (sCH, YS))
    a.I("s_add_u32 s3, s3, %d".format(a2=a2, a3=a3, a4=a4, a5=a5) % Y_OFF)
    a.I("v_add_u32 v%d, s3, v{a5}".format(a2=a2, a3=a3, a4=a4, a5=a5) % vCY)
    a.I("s_lshl_b32 s3, s%d, 2".format(a2=a2, a3=a3, a4=a4, a5=a5) % sCH)
    a.I("s_add_u32 s3, s3, %d".format(a2=a2, a3=a3, a4=a4, a5=a5) % CNT_OFF)
    a.I("v_mov_b32 v%d, s3".format(a2=a2, a3=a3, a4=a4, a5=a5) % vCF)
    a.I("v_mov_b32 v%d, 1".format(a2=a2, a3=a3, a4=a4, a5=a5) % vONE)
    a.I("v_and_b32 v{a2}, 3, v1".format(a2=a2, a3=a3, a4=a4, a5=a5))
    a.I("v_lshlrev_b32 v{a2}, 2, v{a2}".format(a2=a2, a3=a3, a4=a4, a5=a5))
    a.I("v_add_u32 v%d, %d, v{a2}".format(a2=a2, a3=a3, a4=a4, a5=a5) % (vGATE, GATE_OFF))
    a.I("s_xor_b32 s3, s%d, 1" % sISB)
    a.I("v_mov_b32 v%d, s3" % vTHR)


def conv_order():
    merge = cfg["merge"]
    order = []
    for ph, (tlo, thi, dlo, dhi) in enumerate(cfg["phases"]):
        mg = merge[ph]
        top = thi - 1
        for rho in range(8 - mg):
            order += [(ph, rho, i, d) for i in range(top + 1) for d in range(dhi - 1, dlo - 1, -1) if tlo <= i + d < thi]
        for t in range(tlo, thi):
            for rho in range(8 - mg, 8):
                order += [(ph, rho, t - d, d) for d in range(min(dhi - 1, t), dlo - 1, -1)]
    assert len(order) == 288 and len(set((r, i, d) for _, r, i, d in order)) == 288
    return order


def gen_conv(a):
    a.label("L_CONV")
    if cfg.get("twice"):
        a.I("s_mov_b32 s%d, 0" % sT4)
        a.label("L_CONV2")
    if cfg.get("prio", 1):
        a.I("s_setprio 2")
    q = LdsQueue(a)
    lag, margin, look = cfg["lag"], cfg["margin"], cfg["look"]
    order = conv_order()
    N = len(order)
    first, last = {}, {}
    seq = []
    for g, (ph, rho, i, d) in enumerate(order):
        for o in ((ph, "A", rho, i), (ph, "B", rho, d)):
            if o not in first:
                first[o] = g
                seq.append(o)
            last[o] = g
    tile_last = {}
    for g, (ph, rho, i, d) in enumerate(order):
        tile_last[i + d] = g
    loads = []
    for o in seq:
        n = 2 if o[1] == "A" else 1
        for h in range(n):
            loads.append((o, h, h == n - 1))
    npool = cfg.get("npool", NPOOL)
    free = list(range(npool))
    quad, loaded = {}, {}
    st = {"lp": 0, "dbl": 0, "maxlive": 0}

    def can_load():
        if st["lp"] >= len(loads):
            return False
        o, h, _ = loads[st["lp"]]
        return h > 0 or len(free) > 0

    def do_load():
        if gate_ops():
            return
        o, h, lastp = loads[st["lp"]]
        st["lp"] += 1
        if h == 0:
            quad[o] = POOL0 + 4 * free.pop(0)
            st["maxlive"] = max(st["maxlive"], npool - len(free))
        r = quad[o]
        ph, kind, rho, idx = o
        if kind == "A":
            t = "ds_read_b64 %s, v%d offset:%d" % (vp(r + 2 * h), vCA, 64 * rho + 512 * idx + 8 * h)
        else:
            t = "ds_read_b128 %s, v%d offset:%d" % (v4(r), vCB, 64 * rho + 512 * (7 - idx))
        if cfg.get("noloads") and st["lp"] > 40:
            ix = 0
        else:
            ix = q.op(t)
        if lastp:
            loaded[o] = ix

    gate_at = min(k for k, (o, h, _) in enumerate(loads) if o[1] == "A" and o[3] >= 4)
    gate_pre = max(0, gate_at - 8)
    gst = {}

    def gate_ops():
        if not cfg.get("gate"):
            return False
        if st["lp"] == gate_pre and "rd" not in gst:
            gst["rd"] = q.op("ds_read_b32 v12, v%d" % vGATE)
            return True
        if st["lp"] == gate_at and "ok" not in gst:
            gst["ok"] = 1
            q.wait_for(gst["rd"])
            a.I("v_cmp_lt_u32 vcc, v12, v%d" % vTHR)
            a.I("s_nop 1")
            a.I("s_cbranch_vccz L_gate_ok")
            a.label("L_gate_spin")
            a.I("s_sleep 1")
            a.I("ds_read_b32 v12, v%d" % vGATE)
            a.I("s_waitcnt lgkmcnt(0)")
            a.I("v_cmp_lt_u32 vcc, v12, v%d" % vTHR)
            a.I("s_nop 1")
            a.I("s_cbranch_vccnz L_gate_spin")
            a.label("L_gate_ok")
            stamp(a, 8)
        return False

    def next_first():
        return first[loads[st["lp"]][0]] if st["lp"] < len(loads) else 1 << 30

    extras = []
    quiet = {}
    for n_, t in enumerate(sorted(tile_last, key=lambda t: tile_last[t])):
        r = vCV + 2 * (n_ % 4)
        g0 = tile_last[t] + 4

        def f1(t=t, r=r):
            a.I("v_cvt_pk_bf16_f32 v%d, v%d, v%d" % (r, ACC + 4 * t, ACC + 4 * t + 1))
            a.I("v_cvt_pk_bf16_f32 v%d, v%d, v%d" % (r + 1, ACC + 4 * t + 2, ACC + 4 * t + 3))

        def f2(t=t, r=r):
            q.op("ds_write_b64 v%d, %s offset:%d" % (vCY, vp(r), 576 * t))

        def f3(t=t):
            a.I("s_mov_b64 exec, 1")
            q.op("ds_add_u32 v%d, v%d" % (vCF, vONE))
            a.I("s_mov_b64 exec, -1")
            if t == cfg["p1"] - 1:
                quiet["from"] = st["g"] + 1
        extras += [(g0, f1), (g0 + 1, f2), (g0 + 2, f3)]
    while next_first() <= cfg.get("pre", 2):
        do_load()
    started = set()
    for g, (ph, rho, i, d) in enumerate(order):
        oa, ob = (ph, "A", rho, i), (ph, "B", rho, d)
        st["g"] = g
        assert oa in loaded and ob in loaded, (g, oa, ob)
        q.wait_for(max(loaded[oa], loaded[ob]), lag)
        t = i + d
        acc = ACC + 4 * t
        c = v4(acc) if t in started else "0"
        started.add(t)
        a.I("v_mfma_f32_16x16x32_bf16 %s, %s, %s, %s" % (v4(acc), v4(quad[oa]), v4(quad[ob]), c))
        for o in (oa, ob):
            if last[o] == g:
                free.append((quad[o] - POOL0) // 4)
        n = 0
        if quiet.get("from") is not None and quiet["from"] <= g < quiet["from"] + cfg.get("quiet", 0) and next_first() - g > 1:
            continue
        urgent = can_load() and next_first() - g <= margin
        if extras and extras[0][0] <= g and (not urgent or g - extras[0][0] >= cfg.get("xwait", 0)):
            extras.pop(0)[1]()
            n = 1
        elif can_load() and next_first() - g <= look:
            do_load()
            n = 1
        while can_load() and next_first() - g <= min(margin, cfg.get("hard", 4)):
            do_load()
            n += 1
        if n > 1:
            st["dbl"] += n - 1
            st.setdefault("where", []).append(g)
        if g == tile_last[cfg["p1"] - 1] + 8 and not cfg.get("twice"):
            stamp(a, 5)
    for _, f in extras:
        f()
    print("conv: loads", len(loads), "doubled", st["dbl"], "max live quads", st["maxlive"], "left extras", len(extras), st.get("where"))
    if cfg.get("twice"):
        a.I("s_cmp_eq_u32 s%d, 1" % sT4)
        a.I("s_cbranch_scc1 L_CONV3")
        a.I("s_mov_b32 s%d, 1" % sT4)
        stamp(a, 5)
        a.I("s_branch L_CONV2")
        a.label("L_CONV3")
    stamp(a, 6)
    stamp_flush(a)
    a.I("s_endpgm")


vHQ = 168
sQO, sOO = 64, 8
vHY = 32
vHT = 48
vHQU = 184
vHR, vHO, vHI, vHC = 4, 5, 6, 7


def help_rows(a):
    a.I("s_lshl_b32 s3, s%d, 6" % sCH)
    a.I("v_add_u32 v2, s3, v1")
    a.I("s_lshl_b32 s3, s%d, 3" % sGRP)
    a.I("v_mul_u32_u24 v%d, 896, v2" % vHI)
    a.I("v_add_u32 v%d, s3, v%d" % (vHI, vHI))
    a.I("s_mul_i32 s%d, s%d, 896" % (sT0, sISB))
    a.I("s_add_u32 s3, s3, s%d" % sT0)
    a.I("v_mul_u32_u24 v%d, 1792, v2" % vHO)
    a.I("v_add_u32 v%d, s3, v%d" % (vHO, vHO))
    for t in range(8):
        a.I("s_mov_b32 s%d, %d" % (sQO + t, t * 256 * 896))
        a.I("s_mov_b32 s%d, %d" % (sOO + t, t * 256 * 1792))


def help_qloads(a, lo, hi):
    if cfg.get("noq"):
        return
    for t in range(lo, hi):
        a.I("buffer_load_dwordx2 %s, v%d, %s, s%d offen" % (vp(vHQ + 2 * t), vHI, s4(SRD_IN), sQO + t) + (" sc1" if cfg.get("qreg") else ""))


def gen_help(a):
    a.label("L_HELP")
    help_rows(a)
    a.label("L_HELP2")
    if cfg.get("nohelp"):
        a.I("s_endpgm")
    if cfg.get("hprio", 0):
        a.I("s_setprio %d" % cfg["hprio"])
    a.I("v_bfe_u32 v2, v1, 2, 2")
    a.I("v_mul_u32_u24 v2, %d, v2" % YS)
    a.I("v_and_b32 v3, 3, v1")
    a.I("v_mul_u32_u24 v3, 144, v3")
    a.I("v_add_u32 v2, v2, v3")
    a.I("v_lshrrev_b32 v3, 4, v1")
    a.I("v_lshl_add_u32 v2, v3, 3, v2")
    a.I("s_lshl_b32 s3, s%d, 5" % sCH)
    a.I("s_add_u32 s3, s3, %d" % Y_OFF)
    a.I("v_add_u32 v%d, s3, v2" % vHR)
    a.I("v_and_b32 v2, 3, v1")
    a.I("v_lshlrev_b32 v2, 2, v2")
    a.I("v_add_u32 v%d, %d, v2" % (vHC, CNT_OFF))
    a.I("s_cmp_eq_u32 s%d, 0" % sISB)
    a.I("s_cbranch_scc1 L_HA")
    for isb in (1, 0):
        if not isb:
            a.label("L_HA")
        nst = 0
        groups = cfg.get("hgroups") or [[t] for t in range(8)]
        for gi, grp in enumerate(groups):
            lab = "L_hp%d_%d" % (isb, gi)
            if isb:
                for t in grp:
                    a.I("s_waitcnt vmcnt(%d)" % (7 - t + nst if not cfg.get("noq") else 63))
                    for h in range(2):
                        qq, T = vHQ + 2 * t + h, vHQU + 4 * t + 2 * h
                        a.I("v_lshlrev_b32 v%d, 16, v%d" % (T, qq))
                        a.I("v_and_b32 v%d, 0xffff0000, v%d" % (T + 1, qq))
            if cfg.get("hlong") and grp[0] in (0, cfg["p1"]):
                n_ = cfg["hlong"][2 * isb + (0 if grp[0] == 0 else 1)]
                while n_ > 0:
                    a.I("s_sleep %d" % min(n_, 127))
                    n_ -= 127
            a.label(lab)
            a.I("ds_read_b32 v8, v%d" % vHC)
            a.I("s_waitcnt lgkmcnt(0)")
            a.I("v_cmp_ge_u32 vcc, %d, v8" % grp[-1])
            a.I("s_nop 1")
            a.I("s_cbranch_vccz %s_go" % lab)
            a.I("s_sleep %d" % cfg.get("hsleep", 1))
            a.I("s_branch %s" % lab)
            a.label(lab + "_go")
            for t in grp:
                a.I("ds_read_b64_tr_b16 %s, v%d offset:%d" % (vp(vHY + 2 * t), vHR, 576 * t))
            if cfg.get("hstamps"):
                stamp(a, 10 + 2 * grp[0])
            elif cfg["p1"] - 1 in grp:
                stamp(a, 5)
            elif 7 in grp:
                stamp(a, 6)
            for n_, t in enumerate(grp):
                a.I("s_waitcnt lgkmcnt(%d)" % (len(grp) - 1 - n_))
                if isb:
                    for h in range(2):
                        y, T, QU = vHY + 2 * t + h, vHT + 4 * (t & 1) + 2 * h, vHQU + 4 * t + 2 * h
                        a.I("v_lshlrev_b32 v%d, 16, v%d" % (T, y))
                        a.I("v_and_b32 v%d, 0xffff0000, v%d" % (T + 1, y))
                        a.I("v_mul_f32 v%d, v%d, v%d" % (T, T, QU))
                        a.I("v_mul_f32 v%d, v%d, v%d" % (T + 1, T + 1, QU + 1))
                        a.I("v_cvt_pk_bf16_f32 v%d, v%d, v%d" % (y, T, T + 1))
                a.I("buffer_store_dwordx2 %s, v%d, %s, s%d offen %s" % (vp(vHY + 2 * t), vHO, s4(SRD_OUT), sOO + t, cfg["nt_out"]))
                nst += 1
            if cfg.get("hstamps"):
                stamp(a, 11 + 2 * grp[-1])
        if cfg["stamps"]:
            a.I("s_waitcnt vmcnt(0)")
            stamp(a, 7)
            stamp_flush(a)
        a.I("s_endpgm")


sWR = 16
sWU = 72


def build_T_from_global(a, vS):
    dpp = "row_mask:0xf bank_mask:0xf"
    for p in range(2):
        a.I("v_mov_b32_dpp v%d, v%d wave_shr:1 %s" % (vS + p, vS + 4 + p, dpp))
        a.I("v_mov_b32_dpp v%d, v%d wave_ror:1 %s" % (vS + 6 + p, vS + 4 + p, dpp))
    for p in range(2):
        a.I("v_mov_b32_dpp v%d, v%d wave_shr:1 %s" % (vS + 6 + p, vS + 10 + p, dpp))
    a.I("s_cmp_eq_u32 s%d, 0" % sHB)
    a.I("s_cselect_b32 s%d, s%d, 0" % (sT3, sT3))
    a.I("v_cmp_eq_u32 vcc, 0, v1")
    a.I("v_mov_b32 v2, s%d" % sT3)
    a.I("v_cndmask_b32 v2, 0, v2, vcc")
    a.I("v_lshlrev_b32 v3, 16, v%d" % (vS + 2))
    a.I("v_add_f32 v3, v3, v2")
    a.I("v_cvt_pk_bf16_f32 v3, v3, v3")
    a.I("s_mov_b32 s3, 0xffff")
    a.I("v_bfi_b32 v%d, s3, v3, v%d" % (vS + 2, vS + 2))
    a.I("s_mul_i32 s3, s%d, %d" % (sCH, TS))
    a.I("s_lshl_b32 s%d, s%d, 11" % (sT0, sHB))
    a.I("s_add_u32 s3, s3, s%d" % sT0)
    a.I("s_add_u32 s3, s3, %d" % (T_OFF + 32))
    a.I("v_lshl_add_u32 v2, v1, 4, s3")
    W = vS + 12
    for u in range(2):
        d = lambda k: vS + 6 * u + 2 + k
        a.I("ds_write_b128 v2, %s offset:%d" % (v4(d(0)), 1024 * u))
        o = W + 12 * u
        for k in range(4):
            a.I("v_alignbit_b32 v%d, v%d, v%d, 16" % (o + k, d(k), d(k - 1)))
        a.I("ds_write_b128 v2, %s offset:%d" % (v4(o), CS + 1024 * u))
        for k in range(4):
            a.I("v_mov_b32 v%d, v%d" % (o + 4 + k, d(k - 1)))
        a.I("ds_write_b128 v2, %s offset:%d" % (v4(o + 4), 2 * CS + 1024 * u))
        for k in range(4):
            a.I("v_alignbit_b32 v%d, v%d, v%d, 16" % (o + 8 + k, d(k - 1), d(k - 2)))
        a.I("ds_write_b128 v2, %s offset:%d" % (v4(o + 8), 3 * CS + 1024 * u))


def load_T_global(a, vS):
    a.I("s_lshl_b32 s3, s%d, 12" % sC)
    a.I("s_add_u32 s%d, s%d, s3" % (SRD_SK, SSK))
    a.I("s_addc_u32 s%d, s%d, 0" % (SRD_SK + 1, SSK + 1))
    a.I("s_mov_b32 s%d, 4096" % (SRD_SK + 2))
    a.I("s_mov_b32 s%d, 0x20000" % (SRD_SK + 3))
    a.I("s_lshl_b32 s3, s%d, 11" % sHB)
    a.I("v_lshl_add_u32 v2, v1, 4, s3")
    a.I("v_add_u32 v3, -8, v2")
    a.I("buffer_load_dwordx4 %s, v2, %s, 0 offen %s" % (v4(vS + 2), s4(SRD_SK), cfg["nt_in"]))
    a.I("buffer_load_dwordx4 %s, v2, %s, 0 offen offset:1024 %s" % (v4(vS + 8), s4(SRD_SK), cfg["nt_in"]))
    a.I("s_mov_b32 exec_lo, 1")
    a.I("s_mov_b32 exec_hi, 0")
    a.I("buffer_load_dwordx2 %s, v3, %s, 0 offen %s" % (vp(vS), s4(SRD_SK), cfg["nt_in"]))
    a.I("s_mov_b64 exec, -1")


def unpack_weights_uniform(a):
    for c in range(4):
        p, e = c >> 1, c & 1
        for t in range(4):
            src = sWR + 2 * c + (t >> 1)
            dst = sWU + 8 * p + 2 * t + e
            if t & 1:
                a.I("s_and_b32 s%d, s%d, 0xffff0000" % (dst, src))
            else:
                a.I("s_lshl_b32 s%d, s%d, 16" % (dst, src))


def kv_compute(a, vK, vVv, vR):
    KU = 100
    VU = 116
    RES = 124
    O = 132
    for p in range(2):
        for r in range(7):
            a.I("v_lshlrev_b32 v%d, 16, v%d" % (KU + 2 * r, vK + 2 * r + p))
            a.I("v_and_b32 v%d, 0xffff0000, v%d" % (KU + 2 * r + 1, vK + 2 * r + p))
        for r in range(4):
            R_ = RES + 2 * r
            a.I("v_pk_mul_f32 %s, %s, %s" % (vp(R_), vp(KU + 2 * r), sp(sWU + 8 * p + 6)))
            for t in (2, 1, 0):
                a.I("v_pk_fma_f32 %s, %s, %s, %s" % (vp(R_), vp(KU + 2 * (r + 3 - t)), sp(sWU + 8 * p + 2 * t), vp(R_)))
        if p == 0:
            a.I("s_waitcnt vmcnt(%d)" % cfg.get("_vwait", 0))
        for r in range(4):
            a.I("v_lshlrev_b32 v%d, 16, v%d" % (VU + 2 * r, vVv + 2 * r + p))
            a.I("v_and_b32 v%d, 0xffff0000, v%d" % (VU + 2 * r + 1, vVv + 2 * r + p))
            a.I("v_pk_mul_f32 %s, %s, %s" % (vp(RES + 2 * r), vp(RES + 2 * r), vp(VU + 2 * r)))
        for e in range(2):
            o = O + 4 * p + 2 * e
            a.I("v_cvt_pk_bf16_f32 v%d, v%d, v%d" % (o, RES + 6 + e, RES + 4 + e))
            a.I("v_cvt_pk_bf16_f32 v%d, v%d, v%d" % (o + 1, RES + 2 + e, RES + e))
            a.I("ds_write_b64 v%d, %s offset:%d" % (vR, vp(o), (2 * p + e) * RS))


def kv_loads(a, vK, vVv, vO, vOH):
    a.I("s_mov_b64 s[%d:%d], exec" % (sT0, sT1))
    a.I("s_mov_b32 exec_lo, 1")
    a.I("s_mov_b32 exec_hi, 0")
    for j in range(3):
        a.I("buffer_load_dwordx2 %s, v%d, %s, 0 offen offset:%d" % (vp(vK + 2 * j), vOH, s4(SRD_K), 896 * j))
    a.I("s_mov_b64 exec, s[%d:%d]" % (sT0, sT1))
    for j in range(4):
        a.I("buffer_load_dwordx2 %s, v%d, %s, 0 offen offset:%d" % (vp(vK + 6 + 2 * j), vO, s4(SRD_K), 896 * j))
    for j in range(4):
        a.I("buffer_load_dwordx2 %s, v%d, %s, 0 offen offset:%d" % (vp(vVv + 2 * j), vO, s4(SRD_V), 896 * j))


def kv_halo(a, vK):
    for j in range(3):
        for p in range(2):
            a.I("v_mov_b32_dpp v%d, v%d wave_shr:1 row_mask:0xf bank_mask:0xf" % (vK + 2 * j + p, vK + 8 + 2 * j + p))


SHUF_OFF = 0
OKS_OFF = RAW_OFF + 17 * 1088
sXCC, sPOLL = 95, 93


STG_K = RAW_OFF
STG_V = Y_OFF + 4 * YS
assert STG_V + 16 * 1088 <= T_OFF and 8 * 2560 <= STG_V and OKS_OFF + 2048 <= CNT_OFF


def gen_B(a):
    a.label("L_B")
    vS = 64
    KK, VV, WR_, WP = 16, 28, 36, 40
    KU, VU, RES, G, IN = 100, 122, 126, 144, 152
    vTo, vTo2, vTh, vSW, vSR, vST, vIL, vRW, vPA, vPV = 48, 49, 50, 51, 52, 53, 54, 55, 60, 61
    SRD_W = 72
    s64K, s8K, s128K, sQB = 76, 77, 78, 79
    QIN = 2097152
    pin = cfg["nt_in"]
    a.I("s_lshl_b32 s3, s%d, 7" % sSUB)
    a.I("s_lshl_b32 s%d, s%d, 4" % (sT0, sW))
    a.I("s_add_u32 s3, s3, s%d" % sT0)
    a.I("s_mul_i32 s3, s3, 896")
    a.I("s_lshl_b32 s%d, s%d, 7" % (sT0, sX))
    a.I("s_add_u32 s3, s3, s%d" % sT0)
    a.I("v_lshrrev_b32 v6, 3, v1")
    a.I("v_mul_u32_u24 v6, 896, v6")
    a.I("v_and_b32 v7, 7, v1")
    a.I("v_lshl_add_u32 v6, v7, 4, v6")
    a.I("v_add_u32 v%d, s3, v6" % vTo)
    a.I("v_add_u32 v%d, 7168, v%d" % (vTo2, vTo))
    a.I("v_add_u32 v%d, %d, v%d" % (vTh, -7168, vTo))
    qreg = cfg.get("qreg")
    if qreg:
        a.I("v_mov_b32 v12, v%d" % vTo)
        a.I("v_mov_b32 v13, v%d" % vTo2)
    a.I("s_mul_i32 s%d, s%d, 2176" % (sT4, sW))
    a.I("s_add_u32 s%d, s%d, %d" % (sT4, sT4, STG_K + 1088))
    a.I("v_lshrrev_b32 v3, 4, v1")
    a.I("v_and_b32 v2, 15, v1")
    a.I("s_and_b32 s%d, s%d, 1" % (sT0, sW))
    a.I("s_lshl_b32 s%d, s%d, 4" % (sT0, sT0))
    a.I("v_add_u32 v4, s%d, v2" % sT0)
    a.I("s_lshl_b32 s%d, s%d, 9" % (sT1, sX))
    a.I("v_lshl_add_u32 v5, v4, 4, s%d" % sT1)
    a.I("s_waitcnt lgkmcnt(0)")
    srd(a, SRD_K, K, IN_BYTES)
    srd(a, SRD_V, V, IN_BYTES)
    a.I("s_mov_b32 m0, s%d" % sT4)
    a.I("buffer_load_dwordx4 v%d, %s, 0 offen %s lds" % (vTo, s4(SRD_K), pin))
    a.I("s_sub_u32 m0, s%d, %d" % (sT4, STG_K + 1088 - STG_V))
    a.I("buffer_load_dwordx4 v%d, %s, 0 offen %s lds" % (vTo, s4(SRD_V), pin))
    a.I("s_add_u32 m0, s%d, 1088" % sT4)
    a.I("buffer_load_dwordx4 v%d, %s, 0 offen %s lds" % (vTo2, s4(SRD_K), pin))
    a.I("s_sub_u32 m0, s%d, %d" % (sT4, STG_K - STG_V))
    a.I("buffer_load_dwordx4 v%d, %s, 0 offen %s lds" % (vTo2, s4(SRD_V), pin))
    a.I("s_cmp_lg_u32 s%d, 0" % sW)
    a.I("s_cbranch_scc1 L_B_nh")
    a.I("s_mov_b32 m0, %d" % STG_K)
    a.I("s_mov_b32 exec_lo, 0")
    a.I("s_mov_b32 exec_hi, 0xffffff00")
    a.I("buffer_load_dwordx4 v%d, %s, 0 offen %s lds" % (vTh, s4(SRD_K), pin))
    a.I("s_mov_b64 exec, -1")
    a.label("L_B_nh")
    a.I("global_load_dwordx4 %s, v5, %s" % (v4(WR_), sp(SHK)))
    ssm_first = 0
    a.I("s_lshr_b32 s%d, s%d, 1" % (sT2, sW))
    a.I("s_lshl_b32 s3, s%d, 4" % sSUB)
    a.I("s_lshl_b32 s%d, s%d, 2" % (sT0, sT2))
    a.I("s_add_u32 s3, s3, s%d" % sT0)
    a.I("v_add_u32 v6, s%d, v3" % sT0)
    a.I("v_mul_u32_u24 v6, 1088, v6")
    a.I("v_lshl_add_u32 v6, v4, 2, v6")
    a.I("v_add_u32 v%d, %d, v6" % (vTo, STG_K))
    a.I("v_add_u32 v%d, %d, v6" % (vTo2, STG_V))
    a.I("s_lshr_b32 s%d, s%d, 1" % (sT0, sC))
    a.I("s_lshl_b32 s%d, s%d, 2" % (sT0, sT0))
    a.I("s_load_dword s%d, %s, s%d" % (sT3, sp(SSD), sT0))
    a.I("s_getreg_b32 s%d, hwreg(HW_REG_XCC_ID, 0, 4)" % sXCC)
    a.I("s_add_u32 s%d, s%d, 1" % (sXCC, sXCC))
    a.I("s_mul_i32 s%d, s%d, 2560" % (sT0, sW))
    a.I("s_add_u32 s%d, s%d, %d" % (sT0, sT0, SHUF_OFF))
    a.I("v_mul_u32_u24 v6, 160, v2")
    a.I("v_sub_u32 v7, 3, v3")
    a.I("v_lshl_add_u32 v6, v7, 4, v6")
    a.I("v_add_u32 v%d, s%d, v6" % (vSW, sT0))
    a.I("v_lshrrev_b32 v6, 2, v1")
    a.I("v_and_b32 v7, 3, v1")
    a.I("v_mul_u32_u24 v8, 80, v6")
    a.I("v_lshl_add_u32 v8, v7, 4, v8")
    a.I("v_add_u32 v%d, s%d, v8" % (vSR, sT0))
    a.I("s_sub_u32 s3, 252, s3")
    a.I("s_lshl_b32 s3, s3, 4")
    a.I("s_lshl_b32 s%d, s%d, 18" % (sT0, sX))
    a.I("s_add_u32 s3, s3, s%d" % sT0)
    a.I("s_and_b32 s%d, s%d, 1" % (sT0, sW))
    a.I("s_lshl_b32 s%d, s%d, 17" % (sT0, sT0))
    a.I("s_add_u32 s3, s3, s%d" % sT0)
    a.I("v_lshlrev_b32 v6, 12, v6")
    a.I("v_lshl_add_u32 v6, v7, 4, v6")
    a.I("v_add_u32 v%d, s3, v6" % vST)
    a.I("s_lshl_b32 s3, s%d, 14" % sGRP)
    a.I("v_lshl_add_u32 v%d, v0, 4, s3" % vIL)
    a.I("s_lshl_b32 s%d, s%d, 11" % (sT0, sW))
    a.I("s_add_u32 s3, s3, s%d" % sT0)
    a.I("v_lshl_add_u32 v9, v2, 7, s3")
    a.I("s_lshl_b32 s3, s%d, 5" % sX)
    a.I("v_mov_b32 v10, s3")
    a.I("s_lshl_b32 s%d, s%d, 7" % (sT0, sSUB))
    a.I("s_lshl_b32 s%d, s%d, 4" % (sT1, sW))
    a.I("s_add_u32 s%d, s%d, s%d" % (sT0, sT0, sT1))
    a.I("s_mul_i32 s%d, s%d, 896" % (sT0, sT0))
    a.I("s_lshl_b32 s%d, s%d, 7" % (sT1, sX))
    a.I("s_add_u32 s%d, s%d, s%d" % (sT0, sT0, sT1))
    a.I("v_mul_u32_u24 v11, 896, v2")
    a.I("v_add_u32 v11, s%d, v11" % sT0)
    late = cfg.get("late", 0)

    def late_group():
        n = 1
        if not cfg.get("noinpf") and not cfg.get("apf", 0) & 1:
            a.I("global_load_dword v%d, v9, %s %s" % (vDUMMY, sp(WS), cfg["nt_pf"]))
            n += 1
        a.I("global_load_dword v%d, v10, %s" % (vDUMMY, sp(DBG)))
        load_T_global(a, vS)
        n += 3
        if cfg.get("qpf", 0) == 0:
            a.I("global_load_dword v%d, v11, %s %s" % (vDUMMY, sp(Q), cfg["nt_pf"]))
            n += 1
        if qreg:
            a.I("s_mul_i32 s3, s%d, %d" % (sCH, TS))
            a.I("s_lshl_b32 s%d, s%d, 11" % (sT0, sHB))
            a.I("s_add_u32 s3, s3, s%d" % sT0)
            a.I("s_add_u32 s%d, s3, %d" % (sQB, T_OFF + 32))
            a.I("s_mov_b32 m0, s%d" % sQB)
            a.I("buffer_load_dwordx4 v12, %s, 0 offen %s lds" % (s4(SRD_IN), pin))
            a.I("s_add_u32 m0, s%d, %d" % (sQB, CS))
            a.I("buffer_load_dwordx4 v13, %s, 0 offen %s lds" % (s4(SRD_IN), pin))
            n += 2
        return n
    srd(a, SRD_IN, Q, IN_BYTES)
    nlate = 0
    if not late:
        if cfg.get("b0", 1) == 1:
            a.I("s_barrier")
        nlate = late_group()
    else:
        a.I("v_mov_b32 v62, v9")
        a.I("v_mov_b32 v63, v10")
    stamp(a, 0)
    srd(a, SRD_OUT, OUT, OUT_BYTES)
    srd(a, SRD_W, WS, QIN + IN_BYTES)
    a.I("s_mov_b32 s%d, 65536" % s64K)
    a.I("s_mov_b32 s%d, 8192" % s8K)
    if qreg:
        a.I("s_mov_b32 s%d, 131072" % s128K)
    zero_quad(a, 56)
    zero_counters(a, 56, 4)
    zero_T_pads(a, 56, 9, 10)
    a.I("v_and_b32 v2, 255, v0")
    a.I("v_lshlrev_b32 v2, 4, v2")
    a.I("s_mul_i32 s3, s%d, %d" % (sHB, RS))
    a.I("s_add_u32 s3, s3, %d" % R_OFF)
    a.I("v_add_u32 v%d, s3, v2" % vRW)
    a.I("s_lshl_b32 s3, s%d, 5" % sX)
    a.I("s_add_u32 s3, s3, 15")
    a.I("s_lshl_b32 s%d, s%d, 2" % (sT0, sCH))
    a.I("s_sub_u32 s3, s3, s%d" % sT0)
    a.I("v_lshrrev_b32 v3, 4, v1")
    a.I("v_sub_u32 v%d, s3, v3" % vPA)
    a.I("s_and_b32 s3, s%d, 1" % sC)
    a.I("s_lshl_b32 s3, s3, 4")
    a.I("s_waitcnt lgkmcnt(0)")
    a.I("s_lshr_b32 s%d, s%d, s3" % (sT3, sT3))
    a.I("s_lshl_b32 s%d, s%d, 16" % (sT3, sT3))
    a.I("s_waitcnt vmcnt(%d)" % nlate)
    a.I("s_barrier")
    stamp(a, 1)
    if late:
        a.I("v_mov_b32 v9, v62")
        a.I("v_mov_b32 v10, v63")
        late_group()
    q = LdsQueue(a)
    rd = {}
    for j in range(3):
        rd["h"] = q.op("ds_read_b32 v%d, v%d offset:%d" % (KK + j, vTo, 640 + 128 * j))
    for j in range(8):
        q.op("ds_read_b32 v%d, v%d offset:%d" % (KK + 3 + j, vTo, 1088 + 128 * j))
        rd[j] = q.op("ds_read_b32 v%d, v%d offset:%d" % (VV + j, vTo2, 128 * j))
        if j == 5:
            break
    a.I("v_lshlrev_b32 v%d, 16, v%d" % (WP + 0, WR_ + 0))
    a.I("v_lshlrev_b32 v%d, 16, v%d" % (WP + 1, WR_ + 2))
    a.I("v_and_b32 v%d, 0xffff0000, v%d" % (WP + 2, WR_ + 0))
    a.I("v_and_b32 v%d, 0xffff0000, v%d" % (WP + 3, WR_ + 2))
    a.I("v_lshlrev_b32 v%d, 16, v%d" % (WP + 4, WR_ + 1))
    a.I("v_lshlrev_b32 v%d, 16, v%d" % (WP + 5, WR_ + 3))
    a.I("v_and_b32 v%d, 0xffff0000, v%d" % (WP + 6, WR_ + 1))
    a.I("v_and_b32 v%d, 0xffff0000, v%d" % (WP + 7, WR_ + 3))

    def unp(dst, src):
        a.I("v_lshlrev_b32 v%d, 16, v%d" % (dst, src))
        a.I("v_and_b32 v%d, 0xffff0000, v%d" % (dst + 1, src))
    q.wait_for(rd["h"])
    for j in range(3):
        unp(KU + 2 * j, KK + j)
    for j in (6, 7):
        q.op("ds_read_b32 v%d, v%d offset:%d" % (KK + 3 + j, vTo, 1088 + 128 * j))
        rd[j] = q.op("ds_read_b32 v%d, v%d offset:%d" % (VV + j, vTo2, 128 * j))
    for r in range(8):
        if r % 2 == 0:
            q.wait_for(rd[r + 1])
        R_ = RES + 2 * r
        unp(KU + 2 * (r + 3), KK + 3 + r)
        a.I("v_pk_mul_f32 %s, %s, %s" % (vp(R_), vp(KU + 2 * r), vp(WP + 6)))
        vu = VU + 2 * (r & 1)
        unp(vu, VV + r)
        for t in (2, 1, 0):
            a.I("v_pk_fma_f32 %s, %s, %s, %s" % (vp(R_), vp(KU + 2 * (r + 3 - t)), vp(WP + 2 * t), vp(R_)))
        a.I("v_pk_mul_f32 %s, %s, %s" % (vp(R_), vp(R_), vp(vu)))
        if r & 1:
            for e in range(2):
                a.I("v_cvt_pk_bf16_f32 v%d, v%d, v%d" % (G + 4 * e + 3 - (r >> 1), R_ + e, R_ - 2 + e))
    a.I("ds_write_b128 v%d, %s" % (vSW, v4(G)))
    a.I("ds_write_b128 v%d, %s offset:80" % (vSW, v4(G + 4)))
    a.I("ds_read_b128 %s, v%d" % (v4(IN), vSR))
    a.I("ds_read_b128 %s, v%d offset:1280" % (v4(IN + 4), vSR))
    a.I("s_waitcnt lgkmcnt(1)")
    a.I("buffer_store_dwordx4 %s, v%d, %s, 0 offen" % (v4(IN), vST, s4(SRD_W)))
    a.I("s_waitcnt lgkmcnt(0)")
    a.I("buffer_store_dwordx4 %s, v%d, %s, s%d offen" % (v4(IN + 4), vST, s4(SRD_W), s64K))
    stamp(a, 2)
    if not ssm_first:
        if qreg:
            a.I("v_and_b32 v2, 3, v1")
            a.I("v_lshlrev_b32 v2, 8, v2")
            a.I("v_bfe_u32 v3, v1, 2, 1")
            a.I("v_mul_u32_u24 v3, %d, v3" % CS)
            a.I("v_add_u32 v2, v2, v3")
            a.I("v_lshrrev_b32 v3, 3, v1")
            a.I("v_lshl_add_u32 v2, v3, 3, v2")
            a.I("v_add_u32 v12, s%d, v2" % sQB)
            a.I("s_lshl_b32 s3, s%d, 18" % sX)
            a.I("s_lshl_b32 s%d, s%d, 10" % (sT0, sSUB))
            a.I("s_add_u32 s3, s3, s%d" % sT0)
            a.I("s_lshl_b32 s%d, s%d, 7" % (sT0, sW))
            a.I("s_add_u32 s3, s3, s%d" % sT0)
            a.I("s_add_u32 s3, s3, %d" % QIN)
            a.I("v_lshlrev_b32 v3, 14, v3")
            a.I("v_and_b32 v2, 7, v1")
            a.I("v_lshl_add_u32 v3, v2, 4, v3")
            a.I("v_add_u32 v13, s3, v3")
            a.I("s_waitcnt vmcnt(2)")
            for h in range(2):
                for e in range(2):
                    a.I("ds_read_b64 %s, v12 offset:%d" % (vp(160 + 4 * h + 2 * e), 128 * e + 64 * h))
            a.I("s_waitcnt lgkmcnt(2)")
            a.I("buffer_store_dwordx4 v[160:163], v13, %s, 0 offen" % s4(SRD_W))
            a.I("s_waitcnt lgkmcnt(0)")
            a.I("buffer_store_dwordx4 v[164:167], v13, %s, s%d offen" % (s4(SRD_W), s128K))
        else:
            a.I("s_waitcnt vmcnt(%d)" % (2 + (1 if cfg.get("qpf", 0) == 0 else 0)))
        build_T_from_global(a, vS)
    a.I("s_waitcnt vmcnt(0)")
    a.I("s_barrier")
    a.I("s_cmp_lg_u32 s%d, 0" % sW)
    a.I("s_cbranch_scc1 L_B_nf")
    a.I("s_lshl_b32 s3, s%d, 5" % sX)
    a.I("s_add_u32 s3, s3, s%d" % sSUB)
    a.I("v_mov_b32 v2, s3")
    a.I("v_mov_b32 v3, s%d" % sXCC)
    a.I("global_store_byte v2, v3, %s" % sp(DBG))
    a.label("L_B_nf")
    stamp(a, 3)
    zero_R_pad(a, 56, 2)
    a.I("s_cmp_eq_u32 s%d, 0" % sHB)
    a.I("s_cbranch_scc0 L_B_j1")
    conv_addr(a)
    a.I("s_branch L_B_j2")
    a.label("L_B_j1")
    help_rows(a)
    a.label("L_B_j2")
    if cfg.get("qpf", 0) == 1:
        a.I("global_load_dword v%d, v11, %s %s" % (vDUMMY, sp(Q), cfg["nt_pf"]))
    a.I("s_movk_i32 s%d, %d" % (sPOLL, cfg.get("polls", 64)))
    a.label("L_B_poll")
    a.I("global_load_ubyte v%d, v%d, %s sc1" % (vPV, vPA, sp(DBG)))
    a.I("s_waitcnt vmcnt(0)")
    a.I("v_cmp_ne_u32 vcc, s%d, v%d" % (sXCC, vPV))
    a.I("s_nop 1")
    a.I("s_cbranch_vccz L_B_got")
    a.I("s_sub_u32 s%d, s%d, 1" % (sPOLL, sPOLL))
    a.I("s_cmp_lg_u32 s%d, 0" % sPOLL)
    a.I("s_cbranch_scc1 L_B_poll")
    a.I("v_mov_b32 v2, 1")
    a.I("s_branch L_B_join")
    a.label("L_B_got")
    stamp(a, 8)
    a.I("buffer_load_dwordx4 %s, v%d, %s, 0 offen sc1" % (v4(IN), vIL, s4(SRD_W)))
    a.I("buffer_load_dwordx4 %s, v%d, %s, s%d offen sc1" % (v4(IN + 4), vIL, s4(SRD_W), s8K))
    a.I("v_mov_b32 v2, %d" % cfg.get("forcefb", 0))
    nq_ = 0
    if cfg.get("qpf", 0) == 2:
        a.I("global_load_dword v%d, v11, %s %s" % (vDUMMY, sp(Q), cfg["nt_pf"]))
        nq_ = 1
    a.I("s_waitcnt vmcnt(%d)" % (1 + nq_))
    a.I("ds_write_b128 v%d, %s" % (vRW, v4(IN)))
    a.I("s_waitcnt vmcnt(%d)" % nq_)
    a.I("ds_write_b128 v%d, %s offset:%d" % (vRW, v4(IN + 4), 2 * RS))
    a.label("L_B_join")
    a.I("s_lshl_b32 s3, s%d, 8" % sW)
    a.I("s_add_u32 s3, s3, %d" % OKS_OFF)
    a.I("v_lshl_add_u32 v3, v1, 2, s3")
    a.I("ds_write_b32 v3, v2")
    a.I("v_and_b32 v3, 7, v1")
    a.I("v_lshlrev_b32 v3, 8, v3")
    a.I("v_add_u32 v3, %d, v3" % OKS_OFF)
    a.I("s_waitcnt lgkmcnt(0)")
    a.I("s_barrier")
    a.I("ds_read_b32 v2, v3")
    a.I("s_waitcnt lgkmcnt(0)")
    a.I("v_cmp_ne_u32 vcc, 0, v2")
    a.I("s_nop 1")
    a.I("s_cbranch_vccnz L_B_fb")
    if qreg:
        a.I("s_cmp_eq_u32 s%d, 0" % sHB)
        a.I("s_cbranch_scc1 L_B_go")
        srd(a, SRD_IN, WS, QIN + IN_BYTES)
        a.I("s_lshl_b32 s3, s%d, 14" % sGRP)
        a.I("s_lshl_b32 s%d, s%d, 9" % (sT0, sCH))
        a.I("s_add_u32 s3, s3, s%d" % sT0)
        a.I("s_add_u32 s3, s3, %d" % QIN)
        a.I("v_lshl_add_u32 v%d, v1, 3, s3" % vHI)
        for t in range(8):
            a.I("s_mov_b32 s%d, %d" % (sQO + t, 2048 * t))
    a.label("L_B_go")
    stamp(a, 4)
    if cfg["dump"]:
        dump_lds(a)
    a.I("s_cmp_eq_u32 s%d, 0" % sHB)
    a.I("s_cbranch_scc1 L_CONV")
    help_qloads(a, 0, 8)
    a.I("s_branch L_HELP2")
    a.label("L_B_fb")
    vK, vVv, vO, vOH, vR = 144, 158, 40, 41, 42
    a.I("s_lshl_b32 s3, s%d, 5" % sGRP)
    a.I("s_load_dwordx8 s[%d:%d], %s, s3" % (16, 23, sp(SHK)))
    a.I("s_lshl_b32 s3, s%d, 3" % sGRP)
    a.I("v_mul_u32_u24 v24, 3584, v0")
    a.I("v_add_u32 v%d, s3, v24" % vO)
    a.I("v_add_u32 v%d, %d, v%d" % (vOH, -2688, vO))
    a.I("v_cmp_eq_u32 vcc, 0, v0")
    a.I("v_bfrev_b32 v2, 1")
    a.I("v_cndmask_b32 v%d, v%d, v2, vcc" % (vOH, vOH))
    a.I("v_lshlrev_b32 v3, 3, v0")
    a.I("v_sub_u32 v%d, %d, v3" % (vR, R_OFF + 4088))
    kv_loads(a, vK, vVv, vO, vOH)
    a.I("s_waitcnt lgkmcnt(0)")
    unpack_weights_uniform(a)
    a.I("s_waitcnt vmcnt(4)")
    kv_halo(a, vK)
    cfg["_vwait"] = 0
    kv_compute(a, vK, vVv, vR)
    a.I("s_waitcnt lgkmcnt(0)")
    a.I("s_barrier")
    a.I("s_branch L_B_go")


HEADER = open("cdna_kernels/%s.s.ref" % NAME).read().split("; Override launch geometry")[0]


def build():
    a = Asm()
    gen_entry(a)
    gen_A(a)
    gen_B(a)
    gen_conv(a)
    gen_help(a)
    a.label("L_end")
    a.I("s_endpgm")
    a.label("L_codeend")
    body = a.finalize()
    txt = HEADER
    txt += "; @launch grid=(256,1,1) block=(512,1,1) lds=%d\n" % LDS_SIZE
    txt += '.amdgcn_target "amdgcn-amd-amdhsa--gfx950"\n.text\n.globl %s_kernel\n.p2align 8\n.type %s_kernel,@function\n%s_kernel:\n' % (NAME, NAME, NAME)
    txt += body
    txt += """.section .rodata,"a"
.p2align 6
.amdhsa_kernel %s_kernel
  .amdhsa_next_free_vgpr %d
  .amdhsa_next_free_sgpr 102
  .amdhsa_accum_offset %d
  .amdhsa_group_segment_fixed_size 0
  .amdhsa_kernarg_size 128
  .amdhsa_user_sgpr_count 2
  .amdhsa_user_sgpr_kernarg_segment_ptr 1
  .amdhsa_system_sgpr_workgroup_id_x 1
  .amdhsa_float_denorm_mode_32 3
.end_amdhsa_kernel
""" % (NAME, NVGPR, NVGPR)
    return txt, a


if __name__ == "__main__":
    out = sys.argv[1]
    for kv in sys.argv[2:]:
        k, v = kv.split("=", 1)
        try:
            v = json.loads(v)
        except Exception:
            pass
        cfg[k] = v
    txt, a = build()
    open(out, "w").write(txt)
    print("instructions:", a.count(), "auto nops:", a.nops)
```

```python
import sys
import json
from asmgen import Asm, LdsQueue

NAME = "concat_heads__ssm_conv_s4d__ssm_conv_h3__prompt"

cfg = dict(
    stamps=0,
    dump=None,
    nt_in="nt",
    nt_pf="",
    nt_out="",
    codepf=2,
    lag=10,
    margin=10,
    look=70,
    phases=[[0, 4, 0, 8], [4, 8, 0, 8]],
    merge=[0, 3],
    hlong=[4, 24, 10, 24],
    p1=4,
    qe=4, reuse=1, hoist=1, hgroups=[[0, 1, 2, 3], [4], [5], [6], [7]],
    gate=1, upf_late=1, kpx=0.6, tprio=0, xprio=1, scal=[0, 3], km0=24, kmd=5, kspread=1,
    apf=4, qpf=3, prio=0, hprio=3, hsleep=1, b0=1, kprio=1,
    ul=[0.2, 0.35, 0.5, 0.65],
    uc=[0.55, 0.7, 0.85, 1.0],
    pre=10,
    hard=9,
)

ROWB = 2064
CS = 4160
TS = 4 * CS + 32
RS = 4576
YS = 4672
R_OFF = 0
Y_OFF = 4 * RS
T_OFF = 33 * ROWB
RAW_OFF = T_OFF + 4 * TS
RAWS = 2080
RED_OFF = RAW_OFF + 8 * RAWS
CNT_OFF = RED_OFF + 4 * 3072
GATE_OFF = CNT_OFF + 16
LDS_SIZE = CNT_OFF + 32
assert LDS_SIZE <= 163840 and Y_OFF + 4 * YS <= T_OFF
IN_BYTES = 2048 * 896
OUT_BYTES = 2048 * 1792

sX, sSUB, sGRP, sW = 4, 5, 6, 7
U, LAR, AIM, CR, CI, LDT, DSK, Q = 8, 10, 12, 14, 16, 18, 20, 22
K, V, SHK, SSK, SSD, OUT, DBG, WS = 24, 26, 28, 30, 32, 34, 36, 38
sPC = 40
sT0, sT1 = 42, 43
SRD_OUT, SRD_IN, SRD_K, SRD_V, SRD_SK = 44, 48, 52, 56, 60
sCH, sHB, sC, sT2, sT3, sT4, sISB = 88, 89, 90, 91, 92, 93, 94
sST = 96
vSTAMP = 254
vDUMMY = 255
NVGPR = 256


def sp(n):
    return "s[%d:%d]" % (n, n + 1)


def s4(n):
    return "s[%d:%d]" % (n, n + 3)


def vp(n):
    assert n % 2 == 0
    return "v[%d:%d]" % (n, n + 1)


def v4(n):
    assert n % 2 == 0
    return "v[%d:%d]" % (n, n + 3)


def stamp(a, idx):
    if cfg["stamps"] and (cfg.get("only") is None or idx in cfg["only"]):
        a.I("s_memrealtime %s" % sp(sST))
        a.I("s_memtime %s" % sp(sST + 2))
        a.I("s_waitcnt lgkmcnt(0)")
        a.I("v_writelane_b32 v%d, s%d, %d" % (vSTAMP, sST, idx))
        a.I("v_writelane_b32 v%d, s%d, %d" % (vSTAMP, sST + 2, idx + 32))


def stamp_flush(a):
    if cfg["stamps"]:
        a.I("s_lshl_b32 s%d, s2, 11" % sT0)
        a.I("s_lshl_b32 s%d, s%d, 8" % (sT1, sW))
        a.I("s_add_u32 s%d, s%d, s%d" % (sT0, sT0, sT1))
        a.I("s_add_u32 s%d, s%d, 0x1000000" % (sT0, sT0))
        a.I("v_lshl_add_u32 v2, v1, 2, s%d" % sT0)
        if cfg["stamps"] == 3:
            lab = "L_amp%d" % len(a.items)
            a.I("s_lshl_b32 s%d, s%d, 8" % (sT1, sW))
            a.I("s_or_b32 s%d, s2, s%d" % (sT0, sT1))
            a.I("s_cmp_eq_u32 s%d, %d" % (sT0, 0x400 + cfg["amp_wg"]))
            a.I("s_cbranch_scc0 %s" % lab)
            a.I("v_readlane_b32 s%d, v%d, %d" % (sT0, vSTAMP, cfg["amp_from"]))
            a.I("v_readlane_b32 s%d, v%d, %d" % (sT1, vSTAMP, cfg["amp_to"]))
            a.I("s_nop 4")
            a.I("s_sub_u32 s%d, s%d, s%d" % (sT0, sT1, sT0))
            a.I("s_mul_i32 s%d, s%d, 10" % (sT0, sT0))
            a.I("s_memrealtime %s" % sp(sST))
            a.I("s_waitcnt lgkmcnt(0)")
            a.I("s_mov_b32 s%d, s%d" % (sT1, sST))
            a.label(lab + "l")
            a.I("s_sleep 2")
            a.I("s_memrealtime %s" % sp(sST))
            a.I("s_waitcnt lgkmcnt(0)")
            a.I("s_sub_u32 s3, s%d, s%d" % (sST, sT1))
            a.I("s_cmp_lt_u32 s3, s%d" % sT0)
            a.I("s_cbranch_scc1 %sl" % lab)
            a.label(lab)
        elif cfg["stamps"] == 2:
            lab = "L_nodbg%d" % len(a.items)
            a.I("s_and_b32 s%d, s2, 0xfffffff7" % sT0)
            a.I("s_lshl_b32 s%d, s%d, 8" % (sT1, sW))
            a.I("s_or_b32 s%d, s%d, s%d" % (sT0, sT0, sT1))
            a.I("s_cmp_eq_u32 s%d, 0x400" % sT0)
            a.I("s_cbranch_scc0 %s" % lab)
            a.I("s_lshl_b32 s%d, s2, 2" % sT0)
            a.I("v_lshl_add_u32 v2, v1, 2, s%d" % sT0)
            a.I("s_mov_b32 exec_lo, 0xff")
            a.I("s_mov_b32 exec_hi, 0")
            a.I("global_store_dword v2, v%d, %s" % (vSTAMP, sp(DBG)))
            a.label(lab)
        else:
            a.I("global_store_dword v2, v%d, %s" % (vSTAMP, sp(WS)))


def srd(a, dst, ptr, nbytes):
    a.I("s_mov_b32 s%d, s%d" % (dst, ptr))
    a.I("s_mov_b32 s%d, s%d" % (dst + 1, ptr + 1))
    a.I("s_mov_b32 s%d, %d" % (dst + 2, nbytes))
    a.I("s_mov_b32 s%d, 0x20000" % (dst + 3))


def dump_lds(a):
    a.I("s_mul_i32 s%d, s2, 163840" % sT0)
    a.I("v_lshlrev_b32 v2, 4, v0")
    a.I("v_add_u32 v3, s%d, v2" % sT0)
    for j in range(LDS_SIZE // 8192 + 1):
        a.I("ds_read_b128 v[4:7], v2")
        a.I("s_waitcnt lgkmcnt(0)")
        a.I("global_store_dwordx4 v3, v[4:7], %s" % sp(WS))
        a.I("s_waitcnt vmcnt(0)")
        a.I("v_add_u32 v2, 8192, v2")
        a.I("v_add_u32 v3, 8192, v3")
    a.I("s_barrier")


def gen_entry(a):
    a.I("s_load_dwordx16 s[8:23], s[0:1], 0")
    a.I("s_load_dwordx16 s[24:39], s[0:1], 64")
    a.I("s_cmp_ge_u32 s2, 256")
    a.I("s_cbranch_scc1 L_end")
    a.I("s_and_b32 s%d, s2, 7" % sX)
    if cfg.get("idle", 7) != 7:
        a.I("s_and_b32 s%d, s2, 7" % sX)
        a.I("s_sub_u32 s%d, s%d, %d" % (sX, sX, cfg["idle"] + 1))
        a.I("s_and_b32 s%d, s%d, 7" % (sX, sX))
    a.I("s_cmp_eq_u32 s%d, 7" % sX)
    a.I("s_cbranch_scc1 %s" % ("L_idle" if cfg.get("dirty") else "L_end"))
    if cfg["codepf"]:
        a.I("s_getpc_b64 %s" % sp(sPC))
        a.label("L_pc")
        if cfg["codepf"] == 1:
            a.I("v_lshlrev_b32 v2, 7, v0")
        else:
            a.I("s_and_b32 s3, s2, 0xf8")
            a.I("v_and_b32 v2, 7, v0")
            a.I("v_add_u32 v2, s3, v2")
            a.I("v_lshlrev_b32 v2, 7, v2")
        a.I("v_min_u32 v2, L_codeend-L_pc-4, v2")
        a.I("global_load_dword v%d, v2, %s" % (vDUMMY, sp(sPC)))
    if cfg["stamps"]:
        a.I("v_mov_b32 v%d, 0" % vSTAMP)
        a.I("s_memrealtime %s" % sp(sST))
        a.I("s_waitcnt lgkmcnt(0)")
        a.I("v_writelane_b32 v%d, s%d, 9" % (vSTAMP, sST))
        a.I("s_getreg_b32 s3, hwreg(HW_REG_XCC_ID, 0, 4)")
        a.I("v_writelane_b32 v%d, s3, 31" % vSTAMP)
    a.I("v_lshrrev_b32 v2, 6, v0")
    a.I("v_and_b32 v1, 63, v0")
    a.I("v_readfirstlane_b32 s%d, v2" % sW)
    a.I("s_lshr_b32 s3, s2, 3")
    if cfg.get("afirst"):
        a.I("s_and_b32 s%d, s3, 15" % sSUB)
        a.I("s_lshr_b32 s3, s3, 4")
    else:
        a.I("s_lshr_b32 s%d, s3, 1" % sSUB)
    a.I("s_lshl_b32 s%d, s%d, 4" % (sGRP, sX))
    a.I("s_add_u32 s%d, s%d, s%d" % (sGRP, sGRP, sSUB))
    a.I("s_and_b32 s%d, s3, 1" % sISB)
    if cfg.get("afirst") == 2:
        a.I("s_xor_b32 s%d, s%d, 1" % (sISB, sISB))
    a.I("s_and_b32 s%d, s%d, 3" % (sCH, sW))
    a.I("s_lshr_b32 s%d, s%d, 2" % (sHB, sW))
    a.I("s_lshl_b32 s%d, s%d, 2" % (sC, sGRP))
    a.I("s_add_u32 s%d, s%d, s%d" % (sC, sC, sCH))
    a.I("s_cmp_eq_u32 s%d, 1" % sISB)
    a.I("s_cbranch_scc1 L_B")


def zero_quad(a, q):
    for i in range(4):
        a.I("v_mov_b32 v%d, 0" % (q + i))


def zero_R_pad(a, zq, tmp):
    a.I("s_mul_i32 s%d, s%d, %d" % (sT0, sCH, RS))
    a.I("s_add_u32 s%d, s%d, %d" % (sT0, sT0, R_OFF + 4096))
    a.I("v_min_u32 v%d, 29, v1" % tmp)
    a.I("v_lshl_add_u32 v%d, v%d, 4, s%d" % (tmp, tmp, sT0))
    a.I("ds_write_b128 v%d, %s" % (tmp, v4(zq)))


def zero_RAW_front(a, zq, tmp):
    a.I("v_and_b32 v%d, 1, v1" % tmp)
    a.I("v_lshlrev_b32 v%d, 4, v%d" % (tmp, tmp))
    a.I("v_add_u32 v%d, %d, v%d" % (tmp, RAW_OFF, tmp))
    a.I("ds_write_b128 v%d, %s" % (tmp, v4(zq)))


def zero_counters(a, zq, tmp):
    a.I("v_lshlrev_b32 v%d, 4, v1" % tmp)
    a.I("v_add_u32 v%d, %d, v%d" % (tmp, CNT_OFF, tmp))
    a.I("s_mov_b64 exec, 3")
    a.I("ds_write_b128 v%d, %s" % (tmp, v4(zq)))
    a.I("s_mov_b64 exec, -1")


def zero_T_pads(a, zq, t0, t1):
    a.I("v_bfe_u32 v%d, v1, 3, 2" % t0)
    a.I("v_mul_u32_u24 v%d, %d, v%d" % (t0, TS, t0))
    a.I("v_bfe_u32 v%d, v1, 1, 2" % t1)
    a.I("v_mul_u32_u24 v%d, %d, v%d" % (t1, CS, t1))
    a.I("v_add_u32 v%d, v%d, v%d" % (t0, t0, t1))
    a.I("v_and_b32 v%d, 1, v1" % t1)
    a.I("v_lshl_add_u32 v%d, v%d, 4, v%d" % (t0, t1, t0))
    a.I("v_add_u32 v%d, %d, v%d" % (t0, T_OFF, t0))
    a.I("ds_write_b128 v%d, %s" % (t0, v4(zq)))


vU = 8
vP = 16
vAB = 20
v2DT = 22
vOFFU = 24
vAA = 25
vZ, vC, vV, vW, vG, vXc, vQ, vT, vT2 = 28, 30, 32, 34, 36, 38, 40, 42, 44
vTMP = 46
vO = 52
vZQ = 56
vNEG = 152
vX2, vQ2 = 156, 158
vACC = 64
vOP = 80
sLHI, sLLO, sLN2 = 64, 65, 66
s8, s256 = 68, 70
sHM, sODD = 72, 74
sSO = 76
sM0 = 80


class KG:
    def __init__(self, a, nscal=0):
        self.a = a
        self.k = 0
        self.n = 0
        self.nscal = nscal
        self.ntail = 0

    def cmul(self, D, X, Y, T=vT):
        a = self.a
        self.n += 1
        if self.n <= self.nscal or self.n > 50 - self.ntail:
            assert D != X
            ny = {vV: vNEG, vW: vNEG + 1, vG: vNEG + 2}[Y]
            a.I("v_mul_f32 v%d, v%d, v%d" % (D, X + 1, ny))
            a.I("v_mul_f32 v%d, v%d, v%d" % (D + 1, X + 1, Y))
            a.I("v_fmac_f32 v%d, v%d, v%d" % (D, X, Y))
            a.I("v_fmac_f32 v%d, v%d, v%d" % (D + 1, X, Y + 1))
            return
        a.I("v_pk_mul_f32 %s, %s, %s op_sel:[1,1] op_sel_hi:[1,0] neg_lo:[1,0]" % (vp(T), vp(X), vp(Y)))
        a.I("v_pk_fma_f32 %s, %s, %s, %s op_sel_hi:[0,1,1]" % (vp(D), vp(X), vp(Y), vp(T)))

    def out(self, row, X, neg):
        a = self.a
        r = vO + (self.k & 3)
        self.k += 1
        a.I("v_cvt_pk_bf16_f32 v%d, v%d, %sv%d" % (r, X, "-" if neg else "", X + 1))
        a.I("ds_write_addtid_b32 v%d offset:%d" % (r, row * ROWB))

    def anchor(self, P, Zs):
        a = self.a
        a.I("v_fract_f32 v%d, v%d" % (vTMP + 1, Zs + 1))
        a.I("v_exp_f32 v%d, v%d" % (vTMP, Zs))
        a.I("v_cos_f32 v%d, v%d" % (P, vTMP + 1))
        a.I("v_sin_f32 v%d, v%d" % (P + 1, vTMP + 1))
        if self.nscal:
            a.I("v_mul_f32 v%d, v%d, v%d" % (P, P, vTMP))
            a.I("v_mul_f32 v%d, v%d, v%d" % (P + 1, P + 1, vTMP))
            a.I("v_sub_f32 v%d, 0, v%d" % ({vV: vNEG, vW: vNEG + 1, vG: vNEG + 2}[P], P + 1))
        else:
            a.I("v_pk_mul_f32 %s, %s, %s op_sel_hi:[1,0]" % (vp(P), vp(P), vp(vTMP)))


def exp_bf16(a, dst, x, t0, t1):
    a.I("v_mul_f32 v%d, s%d, v%d" % (t0, sLHI, x))
    a.I("v_fma_f32 v%d, v%d, s%d, -v%d" % (t1, x, sLHI, t0))
    a.I("v_exp_f32 v%d, v%d" % (t0, t0))
    a.I("v_fmac_f32 v%d, s%d, v%d" % (t1, sLLO, x))
    a.I("v_mul_f32 v%d, s%d, v%d" % (t1, sLN2, t1))
    a.I("v_fmac_f32 v%d, v%d, v%d" % (t0, t0, t1))
    a.I("v_cvt_pk_bf16_f32 v%d, v%d, v%d" % (t0, t0, t0))
    a.I("v_lshlrev_b32 v%d, 16, v%d" % (dst, t0))


def kgen_batch(beta):
    b = Asm()
    nscal = cfg.get("scal", [0, 0])[beta]
    kg = KG(b, nscal)
    kg.ntail = cfg.get("stail", [0, 0])[beta]
    assert nscal or not kg.ntail

    def unpack(dst, src):
        if beta == 0:
            b.I("v_lshlrev_b32 v%d, 16, v%d" % (dst, src))
        else:
            b.I("v_and_b32 v%d, 0xffff0000, v%d" % (dst, src))

    unpack(vTMP + 2, vP + 0)
    unpack(vZ + 1, vP + 1)
    unpack(vC, vP + 2)
    unpack(vC + 1, vP + 3)
    exp_bf16(b, vZ, vTMP + 2, vTMP + 3, vTMP + 4)
    sc = nscal > 0

    def pkmul(D, X, Y, bc):
        if not sc:
            b.I("v_pk_mul_f32 %s, %s, %s%s" % (vp(D), vp(X), Y[0], " op_sel_hi:[1,0]" if bc else ""))
        else:
            b.I("v_mul_f32 v%d, %s, v%d" % (D, Y[1], X))
            b.I("v_mul_f32 v%d, %s, v%d" % (D + 1, Y[1] if bc else Y[2], X + 1))
    pkmul(vC, vC, (vp(v2DT), "v%d" % v2DT), True)
    pkmul(vZ, vZ, (vp(vAB), "v%d" % vAB, "v%d" % (vAB + 1)), False)
    kg.out(0, vC, True)
    pkmul(vT2, vZ, (sp(s256), "s%d" % s256), True)
    kg.anchor(vG, vT2)
    pkmul(vT2, vZ, (sp(s8), "s%d" % s8), True)
    kg.anchor(vW, vT2)
    kg.anchor(vV, vZ)

    def other(r, p, p2):
        return (p2 if r == p else p) if sc else p
    src = vC
    for row in (8, 12, 16, 20, 18, 22, 19, 23):
        d = other(src, vQ, vQ2)
        kg.cmul(d, src, vG)
        kg.out(row, d, True)
        src = d
    src = vC
    for r in range(1, 8):
        d = other(src, vXc, vX2)
        kg.cmul(d, src, vV)
        kg.out(r, d, True)
        src = d
        if r == 2:
            kg.cmul(vQ, src, vG)
            kg.out(9, vQ, True)
        if r == 4:
            qq = src
            for row in (10, 13, 17):
                d2 = other(qq, vQ, vQ2)
                kg.cmul(d2, qq, vG)
                kg.out(row, d2, True)
                qq = d2
        if r == 6:
            kg.cmul(vQ, src, vG)
            kg.out(11, vQ, True)
    partA = [it.text for it in b.items]
    b = Asm()
    kg.a = b
    kg.out(31, vW, False)
    src = vW
    for j in range(2, 32):
        d = other(src, vXc, vX2)
        kg.cmul(d, src, vW)
        kg.out(32 - j, d, False)
        src = d
    return partA, [it.text for it in b.items]


vAB_ = 26
vUR, vUW, vUT = 4, 5, 6
vUH = 60
vH3 = 160
sPL, sPH = 82, 83
vTR = 144


def gen_kgen_stream(a):
    q = LdsQueue(a)
    A0, B0 = kgen_batch(0)
    A1, B1 = kgen_batch(1)
    OPA, OPB = vOP, vOP + 32
    st = {"vm": 0, "vmidx": {}}
    rb = {}

    def read(kind, s_):
        def f():
            if cfg.get("kx_noreads"):
                rb[s_] = -1
            elif kind == "A":
                q.op("ds_read_b128 %s, v%d offset:%d" % (v4(OPA + 4 * s_), vAA, 32 * s_))
            else:
                rb[s_] = q.op("ds_read_b128 %s, v%d offset:%d" % (v4(OPB + 4 * s_), vAB_, 32 * s_))
        return f

    def mfma(s_, first):
        def f():
            if cfg.get("kx_nomfma"):
                return
            q.wait_for(rb[s_])
            c = "0" if (first and s_ == 0) else "v[%d:%d]" % (vACC, vACC + 15)
            a.I("v_mfma_f32_32x32x16_bf16 v[%d:%d], %s, %s, %s" % (vACC, vACC + 15, v4(OPA + 4 * s_), v4(OPB + 4 * s_), c))
        return f

    def uload(j):
        def f():
            if cfg.get("tperm"):
                if j == 0:
                    a.I("s_mov_b64 exec, 1")
                    for h in range(3):
                        a.I("buffer_load_dwordx2 %s, v7, %s, 0 offen offset:%d" % (vp(vH3 + 2 * h), s4(SRD_IN), 896 * h))
                    a.I("s_mov_b64 exec, -1")
                    st["vm"] += 3
                if cfg.get("urot"):
                    lab = "L_ur%d" % j
                    for k in range(4):
                        jj = (j + k) & 3
                        if k < 3:
                            a.I("s_cmp_lg_u32 s%d, %d" % (sCH, k))
                            a.I("s_cbranch_scc1 %s_%d" % (lab, k + 1))
                        a.I("buffer_load_dwordx2 %s, v%d, %s, 0 offen offset:%d" % (vp(vU + 2 * jj), vOFFU, s4(SRD_IN), 896 * jj))
                        if k < 3:
                            a.I("s_branch %s_e" % lab)
                            a.label("%s_%d" % (lab, k + 1))
                    a.label(lab + "_e")
                else:
                    a.I("buffer_load_dwordx2 %s, v%d, %s, 0 offen offset:%d" % (vp(vU + 2 * j), vOFFU, s4(SRD_IN), 896 * j))
                st["vm"] += 1
                st["vmidx"][j] = st["vm"]
                return
            if j == 0:
                a.I("s_mov_b64 exec, 7")
                a.I("buffer_load_dwordx2 %s, v7, %s, 0 offen" % (vp(vUH), s4(SRD_IN)))
                a.I("s_mov_b64 exec, -1")
                st["vm"] += 1
            a.I("buffer_load_dwordx2 %s, v%d, %s, s%d offen" % (vp(vU + 2 * j), vOFFU, s4(SRD_IN), sSO + j))
            st["vm"] += 1
            st["vmidx"][j] = st["vm"]
        return f

    def tbuild(js):
        steps = []
        tr = {}
        if cfg.get("tperm"):
            def row(r):
                return vU + 2 * r if r >= 0 else vH3 + 2 * (r + 3)

            def halo():
                a.I("s_waitcnt vmcnt(%d)" % (st["vm"] - st["vmidx"][3]))
                for r in (1, 2, 3):
                    for p in range(2):
                        a.I("v_mov_b32_dpp v%d, v%d wave_shr:1 row_mask:0xf bank_mask:0xf" % (row(r - 4) + p, row(r) + p))
            steps.append(halo)
            n_ = 0
            for c in range(4):
                for ch in range(4):
                    def one(c=c, ch=ch, n_=n_):
                        p, sel = ch >> 1, sPH if ch & 1 else sPL
                        r = vTR + 2 * (n_ % 4)
                        a.I("v_perm_b32 v%d, v%d, v%d, s%d" % (r, row(1 - c) + p, row(-c) + p, sel))
                        a.I("v_perm_b32 v%d, v%d, v%d, s%d" % (r + 1, row(3 - c) + p, row(2 - c) + p, sel))
                        q.op("ds_write_b64 v%d, %s offset:%d" % (vUT, vp(r), ch * TS + c * CS))
                    steps.append(one)
                    n_ += 1
            return steps
        for j in js:
            def raw(j=j):
                a.I("s_waitcnt vmcnt(%d)" % (st["vm"] - st["vmidx"][j]))
                if j == 0:
                    a.I("s_mov_b64 exec, 7")
                    q.op("ds_write_b64 v%d, %s" % (vUR, vp(vUH)))
                    a.I("s_mov_b64 exec, -1")
                q.op("ds_write_b64 v%d, %s offset:%d" % (vUR, vp(vU + 2 * j), 24 + 512 * j))
            steps.append(raw)
        slots = [(j, c) for j in js for c in range(4)]
        D = cfg.get("tdepth", 6)
        assert D < 8
        for n_ in range(len(slots) + D):
            if n_ < len(slots):
                def rd(n_=n_):
                    j, c = slots[n_]
                    tr[n_] = q.op("ds_read_b64_tr_b16 %s, v%d offset:%d" % (vp(vTR + 2 * (n_ % 8)), vUW, 512 * j + 8 * (3 - c)))
                steps.append(rd)
            if n_ >= D:
                def wr(n_=n_ - D):
                    j, c = slots[n_]
                    q.wait_for(tr[n_])
                    q.op("ds_write_b64 v%d, %s offset:%d" % (vUT, vp(vTR + 2 * (n_ % 8)), c * CS + 128 * j))
                steps.append(wr)
        return steps

    nA0, nB0, nA1, nB1 = len(A0), len(B0), len(A1), len(B1)
    tot = nA0 + nB0 + nA1 + nB1
    ins = {}

    def at(pos, f):
        ins.setdefault(pos, []).append(f)
    sp_ = cfg.get("kspread", 2)
    if cfg.get("kbar", 0) & 1:
        at(nA0 + nB0 - cfg.get("kbarpos", 0), lambda: a.I("s_barrier"))
    for s_ in range(8):
        at(nA0 + 1 + 3 * s_, read("A", s_))
        at(nA0 + nB0 + sp_ * s_, read("B", s_))
        at(nA0 + nB0 + nA1 + 1 + 3 * s_, read("A", s_))
    first_conf = [i for i, t in enumerate(B0) if t.endswith("offset:%d" % (23 * ROWB))][0]
    assert 1 + 3 * 7 <= first_conf
    if cfg.get("kstamps"):
        at(nA0, lambda: stamp(a, 10))
        at(nA0 + nB0, lambda: stamp(a, 11))
        at(nA0 + nB0 + nA1, lambda: stamp(a, 12))
    m0 = nA0 + nB0 + cfg.get("km0", 20)
    kmd = cfg.get("kmd", 9)
    for s_ in range(8):
        at(m0 + s_ * kmd, mfma(s_, True))
    assert m0 + 7 * kmd < nA1 + nA0 + nB0
    early = cfg.get("tearly", [])
    if not cfg.get("nou"):
        for j in range(4):
            at(int(tot * cfg["ul"][j]), uload(j))
        if early:
            steps = tbuild(early)
            p = int(tot * cfg.get("tpos", 0.62))
            for n_, f in enumerate(steps):
                at(p + n_ * cfg.get("tstep", 3), f)
    if cfg.get("apf", 0) & 4:
        def qpf():
            a.I("global_load_dword v%d, v27, %s %s" % (vDUMMY, sp(Q), cfg["nt_pf"]))
            st["vm"] += 1
        at(int(tot * cfg.get("aq", 0.8)), qpf)
    kp = cfg.get("kprio", 0)
    if kp:
        a.I("s_cmp_eq_u32 s%d, 0" % sHB)
        a.I("s_cbranch_scc1 L_kp0")
        a.I("s_setprio 1")
        a.label("L_kp0")
        at(int(tot * cfg.get("kpx", 0.5)), lambda: a.I("s_setprio 0"))
    for i, t in enumerate(A0 + B0 + A1 + B1):
        for f in ins.get(i, []):
            f()
        if t.startswith("ds_"):
            if not cfg.get("kx_nowrites"):
                q.op(t)
        else:
            a.I(t)
    if cfg.get("kstamps"):
        stamp(a, 13)
    if cfg.get("kbar", 0) & 2:
        a.I("s_barrier")
    for s_ in range(8):
        read("B", s_)()
    rest = [j for j in range(4) if j not in early]

    def final(with_t):
        steps = tbuild(rest) if (with_t and not cfg.get("nou")) else []
        per = -(-len(steps) // 9) if steps else 0
        k = 0
        for s_ in range(8):
            for f in steps[k:k + per]:
                f()
            k += per
            mfma(s_, False)()
        for f in steps[k:]:
            f()

    def only_t():
        for n_, f in enumerate([] if cfg.get("nou") else tbuild(rest)):
            if n_ == cfg.get("tprio", 14):
                a.I("s_setprio %d" % (1 if cfg.get("xprio") else 3))
            f()
    return q, final, only_t


def gen_A(a):
    a.label("L_A")
    a.I("s_lshl_b32 s3, s%d, 9" % sC)
    a.I("s_lshl_b32 s%d, s%d, 8" % (sT0, sHB))
    a.I("s_add_u32 s3, s3, s%d" % sT0)
    a.I("v_lshl_add_u32 v4, v1, 2, s3")
    a.I("s_lshl_b32 s%d, s%d, 7" % (sT0, sSUB))
    a.I("s_lshl_b32 s%d, s%d, 4" % (sT1, sW))
    a.I("s_add_u32 s%d, s%d, s%d" % (sT0, sT0, sT1))
    a.I("s_mul_i32 s%d, s%d, 896" % (sT0, sT0))
    a.I("s_lshl_b32 s%d, s%d, 7" % (sT1, sX))
    a.I("s_add_u32 s%d, s%d, s%d" % (sT0, sT0, sT1))
    a.I("v_and_b32 v5, 15, v1")
    a.I("v_mul_u32_u24 v5, 896, v5")
    a.I("v_add_u32 v5, s%d, v5" % sT0)
    a.I("s_lshr_b32 s3, s%d, 1" % sC)
    a.I("s_lshl_b32 s3, s3, 2")
    a.I("s_waitcnt lgkmcnt(0)")
    for i, p in enumerate((LAR, AIM, CR, CI)):
        a.I("global_load_dword v%d, v4, %s %s" % (vP + i, sp(p), cfg["nt_in"]))
    a.I("s_load_dword s%d, %s, s3" % (sT2, sp(LDT)))
    a.I("s_load_dword s%d, %s, s3" % (sT3, sp(DSK)))
    if cfg.get("upf_late"):
        a.I("v_mov_b32 v27, v5")
    else:
        a.I("global_load_dword v%d, v5, %s %s" % (vDUMMY, sp(U), cfg["nt_pf"]))
    stamp(a, 0)
    srd(a, SRD_IN, U, IN_BYTES)
    srd(a, SRD_OUT, OUT, OUT_BYTES)
    for j in range(4):
        a.I("s_mov_b32 s%d, %d" % (sSO + j, j * 64 * 896))
    a.I("s_lshl_b32 s3, s%d, 3" % sGRP)
    a.I("s_mul_i32 s%d, s%d, %d" % (sT0, sW, 256 * 896))
    a.I("s_add_u32 s3, s3, s%d" % sT0)
    a.I("v_mul_u32_u24 v%d, %d, v1" % (vOFFU, 3584 if cfg.get("tperm") else 896))
    a.I("v_add_u32 v%d, s3, v%d" % (vOFFU, vOFFU))
    a.I("s_mov_b32 s%d, 0x05040100" % sPL)
    a.I("s_mov_b32 s%d, 0x07060302" % sPH)
    a.I("v_add_u32 v7, %d, v%d" % (-2688, vOFFU))
    a.I("s_mov_b32 s%d, 0x3fb8aa3b" % sLHI)
    a.I("s_mov_b32 s%d, 0x32a57060" % sLLO)
    a.I("s_mov_b32 s%d, 0x3f317218" % sLN2)
    a.I("s_mov_b32 s%d, 0x41000000" % s8)
    a.I("s_mov_b32 s%d, 0x43800000" % s256)
    a.I("s_mov_b32 s%d, 0" % sHM)
    a.I("s_mov_b32 s%d, -1" % (sHM + 1))
    a.I("s_mov_b32 s%d, 0xaaaaaaaa" % sODD)
    a.I("s_mov_b32 s%d, 0xaaaaaaaa" % (sODD + 1))
    a.I("s_lshl_b32 s3, s%d, 8" % sW)
    a.I("s_mov_b32 m0, s3")
    a.I("v_and_b32 v2, 31, v1")
    a.I("v_mul_u32_u24 v3, %d, v2" % ROWB)
    a.I("v_lshrrev_b32 v4, 5, v1")
    a.I("v_lshl_add_u32 v4, v4, 4, s3")
    a.I("v_add_u32 v%d, v3, v4" % vAA)
    a.I("v_mov_b32 v5, %d" % (32 * ROWB))
    a.I("v_sub_u32 v3, v5, v3")
    a.I("v_add_u32 v%d, v3, v4" % vAB_)
    a.I("v_lshl_add_u32 v2, v1, 2, s3")
    a.I("v_add_u32 v2, v5, v2")
    a.I("v_mov_b32 v%d, 0x3f80" % vO)
    a.I("ds_write_b32 v2, v%d" % vO)
    zero_quad(a, vZQ)
    zero_counters(a, vZQ, 2)
    zero_T_pads(a, vZQ, 2, 3)
    if cfg.get("upf_late") == 1:
        a.I("global_load_dword v%d, v27, %s %s" % (vDUMMY, sp(U), cfg["nt_pf"]))
    napf = 0
    if cfg.get("apf"):
        a.I("s_lshl_b32 s3, s%d, 14" % sGRP)
        a.I("s_lshl_b32 s%d, s%d, 11" % (sT0, sW))
        a.I("s_add_u32 s3, s3, s%d" % sT0)
        a.I("v_and_b32 v63, 15, v1")
        a.I("v_lshl_add_u32 v63, v63, 7, s3")
        if cfg["apf"] & 1:
            a.I("global_load_dword v%d, v63, %s %s" % (vDUMMY, sp(WS), cfg["nt_pf"]))
            napf += 1
        if cfg["apf"] & 2:
            a.I("global_load_dword v%d, v63, %s %s" % (vDUMMY, sp(SSK), cfg["nt_pf"]))
            napf += 1
    a.I("s_mul_i32 s3, s%d, %d" % (sW, RAWS))
    a.I("s_add_u32 s3, s3, %d" % RAW_OFF)
    a.I("v_lshl_add_u32 v%d, v1, 3, s3" % vUR)
    a.I("v_and_b32 v2, 3, v1")
    a.I("v_bfe_u32 v3, v1, 2, 2")
    a.I("v_lshrrev_b32 v62, 4, v1")
    a.I("v_lshl_add_u32 v%d, v2, 2, v3" % vUW)
    a.I("v_lshl_add_u32 v%d, v62, 4, v%d" % (vUW, vUW))
    a.I("v_lshl_add_u32 v%d, v%d, 3, s3" % (vUW, vUW))
    a.I("v_lshl_add_u32 v3, v62, 2, v3")
    a.I("v_mul_u32_u24 v2, %d, v2" % TS)
    a.I("v_lshl_add_u32 v2, v3, 3, v2")
    a.I("s_lshl_b32 s3, s%d, 9" % sW)
    a.I("s_add_u32 s3, s3, %d" % (T_OFF + 32))
    a.I("v_add_u32 v%d, s3, v2" % vUT)
    if cfg.get("tperm"):
        a.I("v_lshl_add_u32 v%d, v1, 3, s3" % vUT)
    a.I("s_and_b32 s3, s%d, 1" % sC)
    a.I("s_lshl_b32 s3, s3, 4")
    a.I("s_waitcnt lgkmcnt(0)")
    a.I("s_lshr_b32 s%d, s%d, s3" % (sT2, sT2))
    a.I("s_lshl_b32 s%d, s%d, 16" % (sT2, sT2))
    a.I("s_lshr_b32 s%d, s%d, s3" % (sT3, sT3))
    a.I("s_lshl_b32 s%d, s%d, 16" % (sT3, sT3))
    a.I("v_mov_b32 v%d, s%d" % (vTMP + 2, sT2))
    exp_bf16(a, vTMP + 5, vTMP + 2, vTMP + 3, vTMP + 4)
    a.I("v_mul_f32 v%d, 0xbfb8aa3b, v%d" % (vAB, vTMP + 5))
    a.I("v_mul_f32 v%d, 0.15915494, v%d" % (vAB + 1, vTMP + 5))
    a.I("v_add_f32 v%d, v%d, v%d" % (v2DT, vTMP + 5, vTMP + 5))
    a.I("s_waitcnt vmcnt(%d)" % ((0 if cfg.get("upf_late") == 2 else 1) + napf))
    stamp(a, 1)
    if cfg.get("upf_late") == 2:
        a.I("global_load_dword v%d, v27, %s %s" % (vDUMMY, sp(U), cfg["nt_pf"]))
    q, final, only_t = gen_kgen_stream(a)
    a.I("s_mul_i32 s3, s%d, 3072" % sCH)
    a.I("s_add_u32 s3, s3, %d" % RED_OFF)
    a.I("v_lshl_add_u32 v2, v1, 4, s3")
    a.I("s_cmp_eq_u32 s%d, 0" % sHB)
    a.I("s_cbranch_scc1 L_A_lo")
    saved = (q.n, q.done)
    split = cfg.get("tsplit", 1)
    final(not split)
    stamp(a, 2)
    for k in range(3):
        q.op("ds_write_b128 v2, %s offset:%d" % (v4(vACC + 4 * k), 1024 * k))
    q.drain()
    a.I("s_barrier")
    stamp(a, 3)
    if split:
        only_t()
    a.I("s_lshl_b32 s3, s%d, 2" % sCH)
    a.I("s_add_u32 s3, s3, %d" % GATE_OFF)
    a.I("v_mov_b32 v2, s3")
    a.I("v_mov_b32 v3, 1")
    a.I("s_mov_b64 exec, 1")
    a.I("ds_write_b32 v2, v3")
    a.I("s_mov_b64 exec, -1")
    stamp(a, 4)
    if cfg["dump"]:
        a.I("s_barrier")
        dump_lds(a)
    a.I("s_branch L_HELP")
    a.label("L_A_lo")
    q.n, q.done = saved
    final(True)
    stamp(a, 2)
    a.I("s_mul_i32 s3, s%d, %d" % (sCH, RS))
    a.I("s_add_u32 s3, s3, %d" % (R_OFF + 4080 - 2 * 1792 + 1024))
    a.I("v_lshlrev_b32 v4, 4, v1")
    a.I("v_sub_u32 v4, s3, v4")
    a.I("v_and_b32 v5, 31, v1")
    a.I("v_lshlrev_b32 v5, 4, v5")
    a.I("v_lshrrev_b32 v6, 5, v1")
    a.I("v_lshl_add_u32 v5, v6, 3, v5")
    a.I("s_add_u32 s3, s3, %d" % (2 * 1792 + 8 - 1024))
    a.I("v_sub_u32 v5, s3, v5")
    a.I("v_cmp_eq_u32 vcc, 0, v1")
    a.I("v_mov_b32 v6, s%d" % sT3)
    a.I("v_cndmask_b32 v6, 0, v6, vcc")
    conv_addr(a, tmp=(8, 9, 10, 11))
    if cfg.get("xprio"):
        a.I("s_setprio 2")
    a.I("s_waitcnt lgkmcnt(0)")
    a.I("s_barrier")
    stamp(a, 3)
    P = vOP
    for k in range(3):
        a.I("ds_read_b128 %s, v2 offset:%d" % (v4(P + 4 * k), 1024 * k))
    npre = 0
    if cfg.get("hoist"):
        for t in conv_pre_ops("A" if cfg.get("A") else ""):
            a.I(t)
            npre += 1
    zero_R_pad(a, vZQ, 3)
    A_ = vACC
    a.I("v_add_f32 v%d, v%d, v6" % (A_, A_))
    for k in range(3):
        a.I("s_waitcnt lgkmcnt(%d)" % min(15, 3 - k + npre))
        for h in range(2):
            r = 4 * k + 2 * h
            a.I("v_pk_add_f32 %s, %s, %s" % (vp(A_ + r), vp(A_ + r), vp(P + r)))
    N4, N8, N10, N11 = vOP + 12, vOP + 13, vOP + 14, vOP + 15
    X = vOP + 16
    O = vOP + 24
    dpp = "row_mask:0xf bank_mask:0xf"
    a.I("v_cvt_pk_bf16_f32 v%d, v%d, v%d" % (O, A_ + 3, A_ + 2))
    a.I("v_cvt_pk_bf16_f32 v%d, v%d, v%d" % (O + 1, A_ + 1, A_ + 0))
    a.I("ds_write_b64 v5, %s" % vp(O))
    a.I("v_mov_b32_dpp v%d, v%d wave_rol:1 %s" % (N4, A_ + 8, dpp))
    a.I("v_mov_b32_dpp v%d, v%d wave_rol:1 %s" % (N8, A_ + 10, dpp))
    a.I("v_mov_b32_dpp v%d, v%d wave_rol:1 %s" % (N10, A_ + 11, dpp))
    a.I("v_mov_b32_dpp v%d, v%d wave_rol:1 %s" % (N11, A_ + 11, dpp))
    a.I("v_mov_b32_dpp v%d, v%d wave_shl:1 %s" % (N4, A_ + 4, dpp))
    a.I("v_mov_b32_dpp v%d, v%d wave_shl:1 %s" % (N8, A_ + 8, dpp))
    a.I("v_mov_b32_dpp v%d, v%d wave_shl:1 %s" % (N10, A_ + 10, dpp))
    hm, od = sp(sHM), sp(sODD)
    a.I("v_cndmask_b32 v%d, v%d, v%d, %s" % (X + 0, A_ + 7, N4, hm))
    a.I("v_cndmask_b32 v%d, v%d, v%d, %s" % (X + 1, A_ + 6, A_ + 5, hm))
    a.I("v_cndmask_b32 v%d, v%d, v%d, %s" % (X + 2, A_ + 5, A_ + 4, hm))
    a.I("v_cvt_pk_bf16_f32 v%d, v%d, v%d" % (O + 4, N4, X + 0))
    a.I("v_cvt_pk_bf16_f32 v%d, v%d, v%d" % (O + 5, X + 1, X + 1))
    a.I("v_cvt_pk_bf16_f32 v%d, v%d, v%d" % (O + 6, X + 1, X + 2))
    a.I("v_cvt_pk_bf16_f32 v%d, v%d, v%d" % (O + 7, A_ + 4, A_ + 4))
    a.I("ds_write_b128 v4, %s offset:%d" % (v4(O + 4), 2 * (1280 - 256)))
    a.I("v_cndmask_b32 v%d, v%d, v%d, %s" % (X + 3, A_ + 9, N8, hm))
    a.I("v_cndmask_b32 v%d, v%d, v%d, %s" % (X + 4, A_ + 8, N8, od))
    a.I("v_cndmask_b32 v%d, v%d, v%d, %s" % (X + 4, A_ + 9, X + 4, hm))
    a.I("v_cndmask_b32 v%d, v%d, v%d, %s" % (X + 5, A_ + 9, A_ + 8, hm))
    a.I("v_cvt_pk_bf16_f32 v%d, v%d, v%d" % (O + 8, N8, N8))
    a.I("v_cvt_pk_bf16_f32 v%d, v%d, v%d" % (O + 9, X + 3, X + 4))
    a.I("v_cvt_pk_bf16_f32 v%d, v%d, v%d" % (O + 10, X + 5, A_ + 8))
    a.I("v_cvt_pk_bf16_f32 v%d, v%d, v%d" % (O + 11, A_ + 8, A_ + 8))
    a.I("ds_write_b128 v4, %s offset:%d" % (v4(O + 8), 2 * (1280 - 768)))
    for (src, nx, o, base) in ((A_ + 10, N10, O + 12, 1280), (A_ + 11, N11, O + 16, 1792)):
        a.I("v_cndmask_b32 v%d, v%d, v%d, %s" % (X + 6, src, nx, od))
        a.I("v_cvt_pk_bf16_f32 v%d, v%d, v%d" % (o, nx, nx))
        a.I("v_cvt_pk_bf16_f32 v%d, v%d, v%d" % (o + 1, nx, X + 6))
        a.I("v_cvt_pk_bf16_f32 v%d, v%d, v%d" % (o + 2, src, src))
        a.I("v_cvt_pk_bf16_f32 v%d, v%d, v%d" % (o + 3, src, src))
        if base == 1792:
            a.I("v_add_u32 v7, -1024, v4")
            a.I("s_mov_b32 exec_hi, 0")
            a.I("ds_write_b128 v7, %s" % v4(o))
        else:
            a.I("ds_write_b128 v4, %s" % v4(o))
    a.I("s_mov_b32 exec_hi, -1")
    stamp(a, 4)
    if cfg["dump"]:
        a.I("s_waitcnt lgkmcnt(0)")
        a.I("s_barrier")
        dump_lds(a)
    a.I("s_branch L_CONV" + ("A" if cfg.get("A") else ""))


vCA, vCB, vCY, vCF, vONE, vGATE, vTHR = 25, 26, 27, 28, 29, 30, 31
ACC = 32
POOL0 = 64
NPOOL = 47
vCV = 4


def conv_addr(a, tmp=(2, 3, 4, 5)):
    a2, a3, a4, a5 = tmp
    a.I("v_and_b32 v{a2}, 15, v1".format(a2=a2, a3=a3, a4=a4, a5=a5))
    a.I("v_lshrrev_b32 v{a3}, 4, v1".format(a2=a2, a3=a3, a4=a4, a5=a5))
    a.I("v_sub_u32 v{a4}, 15, v{a2}".format(a2=a2, a3=a3, a4=a4, a5=a5))
    a.I("v_and_b32 v{a5}, 3, v{a4}".format(a2=a2, a3=a3, a4=a4, a5=a5))
    a.I("v_mul_u32_u24 v{a5}, %d, v{a5}".format(a2=a2, a3=a3, a4=a4, a5=a5) % CS)
    a.I("v_lshrrev_b32 v{a4}, 2, v{a4}".format(a2=a2, a3=a3, a4=a4, a5=a5))
    a.I("v_lshlrev_b32 v{a4}, 3, v{a4}".format(a2=a2, a3=a3, a4=a4, a5=a5))
    a.I("v_sub_u32 v{a5}, v{a5}, v{a4}".format(a2=a2, a3=a3, a4=a4, a5=a5))
    a.I("v_lshl_add_u32 v{a5}, v{a3}, 4, v{a5}".format(a2=a2, a3=a3, a4=a4, a5=a5))
    a.I("s_mul_i32 s3, s%d, %d".format(a2=a2, a3=a3, a4=a4, a5=a5) % (sCH, TS))
    a.I("s_add_u32 s3, s3, %d".format(a2=a2, a3=a3, a4=a4, a5=a5) % (T_OFF + 32))
    a.I("v_add_u32 v%d, s3, v{a5}".format(a2=a2, a3=a3, a4=a4, a5=a5) % vCA)
    a.I("v_lshlrev_b32 v{a4}, 5, v{a2}".format(a2=a2, a3=a3, a4=a4, a5=a5))
    a.I("v_lshlrev_b32 v{a5}, 4, v{a3}".format(a2=a2, a3=a3, a4=a4, a5=a5))
    a.I("v_sub_u32 v{a5}, v{a5}, v{a4}".format(a2=a2, a3=a3, a4=a4, a5=a5))
    a.I("s_mul_i32 s3, s%d, %d".format(a2=a2, a3=a3, a4=a4, a5=a5) % (sCH, RS))
    a.I("s_add_u32 s3, s3, %d".format(a2=a2, a3=a3, a4=a4, a5=a5) % (R_OFF + 480))
    a.I("v_add_u32 v%d, s3, v{a5}".format(a2=a2, a3=a3, a4=a4, a5=a5) % vCB)
    a.I("v_mul_u32_u24 v{a5}, 144, v{a3}".format(a2=a2, a3=a3, a4=a4, a5=a5))
    a.I("v_lshl_add_u32 v{a5}, v{a2}, 3, v{a5}".format(a2=a2, a3=a3, a4=a4, a5=a5))
    a.I("s_mul_i32 s3, s%d, %d".format(a2=a2, a3=a3, a4=a4, a5=a5) % (sCH, YS))
    a.I("s_add_u32 s3, s3, %d".format(a2=a2, a3=a3, a4=a4, a5=a5) % Y_OFF)
    a.I("v_add_u32 v%d, s3, v{a5}".format(a2=a2, a3=a3, a4=a4, a5=a5) % vCY)
    a.I("s_lshl_b32 s3, s%d, 2".format(a2=a2, a3=a3, a4=a4, a5=a5) % sCH)
    a.I("s_add_u32 s3, s3, %d".format(a2=a2, a3=a3, a4=a4, a5=a5) % CNT_OFF)
    a.I("v_mov_b32 v%d, s3".format(a2=a2, a3=a3, a4=a4, a5=a5) % vCF)
    a.I("v_mov_b32 v%d, 1".format(a2=a2, a3=a3, a4=a4, a5=a5) % vONE)
    a.I("v_and_b32 v{a2}, 3, v1".format(a2=a2, a3=a3, a4=a4, a5=a5))
    a.I("v_lshlrev_b32 v{a2}, 2, v{a2}".format(a2=a2, a3=a3, a4=a4, a5=a5))
    a.I("v_add_u32 v%d, %d, v{a2}".format(a2=a2, a3=a3, a4=a4, a5=a5) % (vGATE, GATE_OFF))
    a.I("s_xor_b32 s3, s%d, 1" % sISB)
    a.I("v_mov_b32 v%d, s3" % vTHR)


def conv_order():
    merge = cfg["merge"]
    order = []
    for ph, (tlo, thi, dlo, dhi) in enumerate(cfg["phases"]):
        mg = merge[ph]
        top = thi - 1
        rhos = list(range(8))
        if cfg.get("reuse") and ph & 1:
            rhos.reverse()
        for rho in rhos[:8 - mg]:
            order += [(ph, rho, i, d) for i in range(top + 1) for d in range(dhi - 1, dlo - 1, -1) if tlo <= i + d < thi]
        for t in range(tlo, thi):
            for rho in rhos[8 - mg:]:
                order += [(ph, rho, t - d, d) for d in range(min(dhi - 1, t), dlo - 1, -1)]
    assert len(order) == 288 and len(set((r, i, d) for _, r, i, d in order)) == 288
    return order


def hgroups():
    return cfg.get("hgroups") or [[t] for t in range(8)]


def conv_pre_ops(sfx=""):
    return cfg["_pre" + sfx]


class With:
    def __enter__(self):
        self.old = dict(cfg)
        cfg.update(cfg.get("A") or {})

    def __exit__(self, *e):
        keep = {k: v for k, v in cfg.items() if k.startswith("_")}
        cfg.clear()
        cfg.update(self.old)
        cfg.update(keep)


def gen_conv(a, sfx=""):
    a.label("L_CONV" + sfx)
    if cfg.get("twice"):
        a.I("s_mov_b32 s%d, 0" % sT4)
        a.label("L_CONV2")
    a.I("s_setprio %d" % cfg.get("prio", 0))
    q = LdsQueue(a)
    lag, margin, look = cfg["lag"], cfg["margin"], cfg["look"]
    order = conv_order()
    N = len(order)
    first, last = {}, {}
    seq = []
    if cfg.get("reuse"):
        lastrho = {ph: rho for (ph, rho, i, d) in order}
        used = set((ph, k_, rho, x) for (ph, rho, i, d) in order for k_, x in (("A", i), ("B", d)))

        def key(ph, k_, rho, x):
            if ph > 0 and rho == lastrho[ph - 1] and (ph - 1, k_, rho, x) in used:
                return key(ph - 1, k_, rho, x)
            return (ph, k_, rho, x)
    else:
        def key(ph, k_, rho, x):
            return (ph, k_, rho, x)
    for g, (ph, rho, i, d) in enumerate(order):
        for o in (key(ph, "A", rho, i), key(ph, "B", rho, d)):
            if o not in first:
                first[o] = g
                seq.append(o)
            last[o] = g
    tile_last = {}
    for g, (ph, rho, i, d) in enumerate(order):
        tile_last[i + d] = g
    loads = []
    for o in seq:
        n = 2 if o[1] == "A" else 1
        for h in range(n):
            loads.append((o, h, h == n - 1))
    npool = cfg.get("npool", NPOOL)
    free = list(range(npool - 1, -1, -1))
    quad, loaded = {}, {}
    st = {"lp": 0, "dbl": 0, "maxlive": 0}

    def can_load():
        if st["lp"] >= len(loads):
            return False
        o, h, _ = loads[st["lp"]]
        return h > 0 or len(free) > 0

    def do_load():
        if gate_ops():
            return
        o, h, lastp = loads[st["lp"]]
        st["lp"] += 1
        if h == 0:
            quad[o] = POOL0 + 4 * free.pop(0)
            st["maxlive"] = max(st["maxlive"], npool - len(free))
        r = quad[o]
        ph, kind, rho, idx = o
        if kind == "A":
            t = "ds_read_b64 %s, v%d offset:%d" % (vp(r + 2 * h), vCA, 64 * rho + 512 * idx + 8 * h)
        else:
            t = "ds_read_b128 %s, v%d offset:%d" % (v4(r), vCB, 64 * rho + 512 * (7 - idx))
        if cfg.get("noloads") and st["lp"] > 40:
            ix = 0
        else:
            ix = q.op(t)
        if lastp:
            loaded[o] = ix

    gate_at = min(k for k, (o, h, _) in enumerate(loads) if o[1] == "A" and o[3] >= 4)
    gate_pre = max(0, gate_at - 8)
    gst = {}

    def gate_ops():
        nonlocal gate_at, gate_pre
        if not cfg.get("gate"):
            return False
        if st["lp"] == gate_pre and "rd" not in gst:
            gst["rd"] = q.op("ds_read_b32 v12, v%d" % vGATE)
            return True
        if st["lp"] == gate_at and "ok" not in gst:
            gst["ok"] = 1
            q.wait_for(gst["rd"])
            a.I("v_cmp_lt_u32 vcc, v12, v%d" % vTHR)
            a.I("s_nop 1")
            a.I("s_cbranch_vccz L_gate_ok" + sfx)
            a.label("L_gate_spin" + sfx)
            a.I("s_sleep 1")
            a.I("ds_read_b32 v12, v%d" % vGATE)
            a.I("s_waitcnt lgkmcnt(0)")
            a.I("v_cmp_lt_u32 vcc, v12, v%d" % vTHR)
            a.I("s_nop 1")
            a.I("s_cbranch_vccnz L_gate_spin" + sfx)
            a.label("L_gate_ok" + sfx)
            stamp(a, 8)
        return False

    def next_first():
        return first[loads[st["lp"]][0]] if st["lp"] < len(loads) else 1 << 30

    extras = []
    quiet = {}
    for n_, t in enumerate(sorted(tile_last, key=lambda t: tile_last[t])):
        r = vCV + 2 * (n_ % 4)
        g0 = tile_last[t] + 4

        def f1(t=t, r=r):
            a.I("v_cvt_pk_bf16_f32 v%d, v%d, v%d" % (r, ACC + 4 * t, ACC + 4 * t + 1))
            a.I("v_cvt_pk_bf16_f32 v%d, v%d, v%d" % (r + 1, ACC + 4 * t + 2, ACC + 4 * t + 3))

        def f2(t=t, r=r):
            q.op("ds_write_b64 v%d, %s offset:%d" % (vCY, vp(r), 576 * t))

        def f3(t=t):
            a.I("s_mov_b64 exec, 1")
            q.op("ds_add_u32 v%d, v%d" % (vCF, vONE))
            a.I("s_mov_b64 exec, -1")
            if t == cfg["p1"] - 1:
                quiet["from"] = st["g"] + 1
        extras += [(g0, f1), (g0 + 1, f2)]
        if any(t == grp[-1] for grp in hgroups()):
            extras += [(g0 + 2, f3)]
    if cfg.get("hoist"):
        pre = [k for k, (o, h, _) in enumerate(loads) if o[1] == "A" and o[3] < 4 and first[o] <= cfg.get("pre", 2)]
        txt = []
        for k in pre:
            o, h, lastp = loads[k]
            if h == 0:
                quad[o] = POOL0 + 4 * free.pop(0)
            txt.append("ds_read_b64 %s, v%d offset:%d" % (vp(quad[o] + 2 * h), vCA, 64 * o[2] + 512 * o[3] + 8 * h))
            loaded[o] = -1
        assert txt == cfg.get("_pre" + sfx, txt)
        cfg["_pre" + sfx] = txt
        loads[:] = [l for k, l in enumerate(loads) if k not in pre]
        gate_at = min(k for k, (o, h, _) in enumerate(loads) if o[1] == "A" and o[3] >= 4)
        gate_pre = max(0, gate_at - 8)
    while next_first() <= cfg.get("pre", 2):
        do_load()
    started = set()
    for g, (ph, rho, i, d) in enumerate(order):
        oa, ob = key(ph, "A", rho, i), key(ph, "B", rho, d)
        st["g"] = g
        assert oa in loaded and ob in loaded, (g, oa, ob)
        q.wait_for(max(loaded[oa], loaded[ob]), lag)
        t = i + d
        acc = ACC + 4 * t
        c = v4(acc) if t in started else "0"
        started.add(t)
        a.I("v_mfma_f32_16x16x32_bf16 %s, %s, %s, %s" % (v4(acc), v4(quad[oa]), v4(quad[ob]), c))
        for o in (oa, ob):
            if last[o] == g:
                free.append((quad[o] - POOL0) // 4)
        n = 0
        if quiet.get("from") is not None and quiet["from"] <= g < quiet["from"] + cfg.get("quiet", 0) and next_first() - g > 1:
            continue
        urgent = can_load() and next_first() - g <= margin
        if extras and extras[0][0] <= g and (not urgent or g - extras[0][0] >= cfg.get("xwait", 0)):
            extras.pop(0)[1]()
            n = 1
        elif can_load() and next_first() - g <= look:
            do_load()
            n = 1
        while can_load() and next_first() - g <= min(margin, cfg.get("hard", 4)):
            do_load()
            n += 1
        if n > 1:
            st["dbl"] += n - 1
            st.setdefault("where", []).append(g)
        if g == tile_last[cfg["p1"] - 1] + 8 and not cfg.get("twice"):
            stamp(a, 5)
    for _, f in extras:
        f()
    print("conv: loads", len(loads), "doubled", st["dbl"], "max live quads", st["maxlive"], "left extras", len(extras), st.get("where"))
    if cfg.get("twice"):
        a.I("s_cmp_eq_u32 s%d, 1" % sT4)
        a.I("s_cbranch_scc1 L_CONV3")
        a.I("s_mov_b32 s%d, 1" % sT4)
        stamp(a, 5)
        a.I("s_branch L_CONV2")
        a.label("L_CONV3")
    stamp(a, 6)
    stamp_flush(a)
    a.I("s_endpgm")


vHQ = 168
sQO, sOO = 64, 8
vHY = 32
vHT = 48
vHQU = 184
vHR, vHO, vHI, vHC = 4, 5, 6, 7


def help_rows(a):
    a.I("s_lshl_b32 s3, s%d, 6" % sCH)
    a.I("v_add_u32 v2, s3, v1")
    a.I("s_lshl_b32 s3, s%d, 3" % sGRP)
    a.I("v_mul_u32_u24 v%d, 896, v2" % vHI)
    a.I("v_add_u32 v%d, s3, v%d" % (vHI, vHI))
    a.I("s_mul_i32 s%d, s%d, 896" % (sT0, sISB))
    a.I("s_add_u32 s3, s3, s%d" % sT0)
    a.I("v_mul_u32_u24 v%d, 1792, v2" % vHO)
    a.I("v_add_u32 v%d, s3, v%d" % (vHO, vHO))
    for t in range(8):
        a.I("s_mov_b32 s%d, %d" % (sQO + t, t * 256 * 896))
        a.I("s_mov_b32 s%d, %d" % (sOO + t, t * 256 * 1792))


def help_qloads(a, lo, hi):
    if cfg.get("noq"):
        return
    for t in range(lo, hi):
        a.I("buffer_load_dwordx2 %s, v%d, %s, s%d offen" % (vp(vHQ + 2 * t), vHI, s4(SRD_IN), sQO + t) + (" sc1" if cfg.get("qreg") else ""))


def gen_help(a):
    a.label("L_HELP")
    help_rows(a)
    a.label("L_HELP2")
    if cfg.get("nohelp"):
        a.I("s_endpgm")
    if cfg.get("hprio", 0):
        a.I("s_setprio %d" % cfg["hprio"])
    a.I("v_bfe_u32 v2, v1, 2, 2")
    a.I("v_mul_u32_u24 v2, %d, v2" % YS)
    a.I("v_and_b32 v3, 3, v1")
    a.I("v_mul_u32_u24 v3, 144, v3")
    a.I("v_add_u32 v2, v2, v3")
    a.I("v_lshrrev_b32 v3, 4, v1")
    a.I("v_lshl_add_u32 v2, v3, 3, v2")
    a.I("s_lshl_b32 s3, s%d, 5" % sCH)
    a.I("s_add_u32 s3, s3, %d" % Y_OFF)
    a.I("v_add_u32 v%d, s3, v2" % vHR)
    a.I("v_and_b32 v2, 3, v1")
    a.I("v_lshlrev_b32 v2, 2, v2")
    a.I("v_add_u32 v%d, %d, v2" % (vHC, CNT_OFF))
    a.I("s_cmp_eq_u32 s%d, 0" % sISB)
    a.I("s_cbranch_scc1 L_HA")
    for isb in (1, 0):
        if not isb:
            a.label("L_HA")
            if cfg.get("A"):
                cfg.update(cfg["A"])
        nst = 0
        groups = hgroups()
        for gi, grp in enumerate(groups):
            lab = "L_hp%d_%d" % (isb, gi)
            if isb:
                for t in grp:
                    a.I("s_waitcnt vmcnt(%d)" % (7 - t + nst if not cfg.get("noq") else 63))
                    for h in range(2):
                        qq, T = vHQ + 2 * t + h, vHQU + 4 * t + 2 * h
                        a.I("v_lshlrev_b32 v%d, 16, v%d" % (T, qq))
                        a.I("v_and_b32 v%d, 0xffff0000, v%d" % (T + 1, qq))
            if cfg.get("hlong") and grp[0] in (0, cfg["p1"]):
                n_ = cfg["hlong"][2 * isb + (0 if grp[0] == 0 else 1)]
                while n_ > 0:
                    a.I("s_sleep %d" % min(n_, 127))
                    n_ -= 127
            a.label(lab)
            a.I("ds_read_b32 v8, v%d" % vHC)
            a.I("s_waitcnt lgkmcnt(0)")
            a.I("v_cmp_ge_u32 vcc, %d, v8" % gi)
            a.I("s_nop 1")
            a.I("s_cbranch_vccz %s_go" % lab)
            a.I("s_sleep %d" % cfg.get("hsleep", 1))
            a.I("s_branch %s" % lab)
            a.label(lab + "_go")
            for t in grp:
                a.I("ds_read_b64_tr_b16 %s, v%d offset:%d" % (vp(vHY + 2 * t), vHR, 576 * t))
            if cfg.get("hstamps"):
                stamp(a, 10 + 2 * grp[0])
            elif cfg["p1"] - 1 in grp:
                stamp(a, 5)
            elif 7 in grp:
                stamp(a, 6)
            for n_, t in enumerate(grp):
                a.I("s_waitcnt lgkmcnt(%d)" % (len(grp) - 1 - n_))
                if isb:
                    for h in range(2):
                        y, T, QU = vHY + 2 * t + h, vHT + 4 * (t & 1) + 2 * h, vHQU + 4 * t + 2 * h
                        a.I("v_lshlrev_b32 v%d, 16, v%d" % (T, y))
                        a.I("v_and_b32 v%d, 0xffff0000, v%d" % (T + 1, y))
                        a.I("v_mul_f32 v%d, v%d, v%d" % (T, T, QU))
                        a.I("v_mul_f32 v%d, v%d, v%d" % (T + 1, T + 1, QU + 1))
                        a.I("v_cvt_pk_bf16_f32 v%d, v%d, v%d" % (y, T, T + 1))
                a.I("buffer_store_dwordx2 %s, v%d, %s, s%d offen %s" % (vp(vHY + 2 * t), vHO, s4(SRD_OUT), sOO + t, cfg["nt_out"]))
                nst += 1
            if cfg.get("hstamps"):
                stamp(a, 11 + 2 * grp[-1])
        if cfg["stamps"]:
            a.I("s_waitcnt vmcnt(0)")
            stamp(a, 7)
            stamp_flush(a)
        a.I("s_endpgm")


sWR = 16
sWU = 72


def build_T_from_global(a, vS):
    dpp = "row_mask:0xf bank_mask:0xf"
    for p in range(2):
        a.I("v_mov_b32_dpp v%d, v%d wave_shr:1 %s" % (vS + p, vS + 4 + p, dpp))
        a.I("v_mov_b32_dpp v%d, v%d wave_ror:1 %s" % (vS + 6 + p, vS + 4 + p, dpp))
    for p in range(2):
        a.I("v_mov_b32_dpp v%d, v%d wave_shr:1 %s" % (vS + 6 + p, vS + 10 + p, dpp))
    a.I("s_cmp_eq_u32 s%d, 0" % sHB)
    a.I("s_cselect_b32 s%d, s%d, 0" % (sT3, sT3))
    a.I("v_cmp_eq_u32 vcc, 0, v1")
    a.I("v_mov_b32 v2, s%d" % sT3)
    a.I("v_cndmask_b32 v2, 0, v2, vcc")
    a.I("v_lshlrev_b32 v3, 16, v%d" % (vS + 2))
    a.I("v_add_f32 v3, v3, v2")
    a.I("v_cvt_pk_bf16_f32 v3, v3, v3")
    a.I("s_mov_b32 s3, 0xffff")
    a.I("v_bfi_b32 v%d, s3, v3, v%d" % (vS + 2, vS + 2))
    a.I("s_mul_i32 s3, s%d, %d" % (sCH, TS))
    a.I("s_lshl_b32 s%d, s%d, 11" % (sT0, sHB))
    a.I("s_add_u32 s3, s3, s%d" % sT0)
    a.I("s_add_u32 s3, s3, %d" % (T_OFF + 32))
    a.I("v_lshl_add_u32 v2, v1, 4, s3")
    W = vS + 12
    for u in range(2):
        d = lambda k: vS + 6 * u + 2 + k
        a.I("ds_write_b128 v2, %s offset:%d" % (v4(d(0)), 1024 * u))
        o = W + 12 * u
        for k in range(4):
            a.I("v_alignbit_b32 v%d, v%d, v%d, 16" % (o + k, d(k), d(k - 1)))
        a.I("ds_write_b128 v2, %s offset:%d" % (v4(o), CS + 1024 * u))
        for k in range(4):
            a.I("v_mov_b32 v%d, v%d" % (o + 4 + k, d(k - 1)))
        a.I("ds_write_b128 v2, %s offset:%d" % (v4(o + 4), 2 * CS + 1024 * u))
        for k in range(4):
            a.I("v_alignbit_b32 v%d, v%d, v%d, 16" % (o + 8 + k, d(k - 1), d(k - 2)))
        a.I("ds_write_b128 v2, %s offset:%d" % (v4(o + 8), 3 * CS + 1024 * u))


def load_T_global(a, vS):
    a.I("s_lshl_b32 s3, s%d, 12" % sC)
    a.I("s_add_u32 s%d, s%d, s3" % (SRD_SK, SSK))
    a.I("s_addc_u32 s%d, s%d, 0" % (SRD_SK + 1, SSK + 1))
    a.I("s_mov_b32 s%d, 4096" % (SRD_SK + 2))
    a.I("s_mov_b32 s%d, 0x20000" % (SRD_SK + 3))
    a.I("s_lshl_b32 s3, s%d, 11" % sHB)
    a.I("v_lshl_add_u32 v2, v1, 4, s3")
    a.I("v_add_u32 v3, -8, v2")
    a.I("buffer_load_dwordx4 %s, v2, %s, 0 offen %s" % (v4(vS + 2), s4(SRD_SK), cfg["nt_in"]))
    a.I("buffer_load_dwordx4 %s, v2, %s, 0 offen offset:1024 %s" % (v4(vS + 8), s4(SRD_SK), cfg["nt_in"]))
    a.I("s_mov_b32 exec_lo, 1")
    a.I("s_mov_b32 exec_hi, 0")
    a.I("buffer_load_dwordx2 %s, v3, %s, 0 offen %s" % (vp(vS), s4(SRD_SK), cfg["nt_in"]))
    a.I("s_mov_b64 exec, -1")


def unpack_weights_uniform(a):
    for c in range(4):
        p, e = c >> 1, c & 1
        for t in range(4):
            src = sWR + 2 * c + (t >> 1)
            dst = sWU + 8 * p + 2 * t + e
            if t & 1:
                a.I("s_and_b32 s%d, s%d, 0xffff0000" % (dst, src))
            else:
                a.I("s_lshl_b32 s%d, s%d, 16" % (dst, src))


def kv_compute(a, vK, vVv, vR):
    KU = 100
    VU = 116
    RES = 124
    O = 132
    for p in range(2):
        for r in range(7):
            a.I("v_lshlrev_b32 v%d, 16, v%d" % (KU + 2 * r, vK + 2 * r + p))
            a.I("v_and_b32 v%d, 0xffff0000, v%d" % (KU + 2 * r + 1, vK + 2 * r + p))
        for r in range(4):
            R_ = RES + 2 * r
            a.I("v_pk_mul_f32 %s, %s, %s" % (vp(R_), vp(KU + 2 * r), sp(sWU + 8 * p + 6)))
            for t in (2, 1, 0):
                a.I("v_pk_fma_f32 %s, %s, %s, %s" % (vp(R_), vp(KU + 2 * (r + 3 - t)), sp(sWU + 8 * p + 2 * t), vp(R_)))
        if p == 0:
            a.I("s_waitcnt vmcnt(%d)" % cfg.get("_vwait", 0))
        for r in range(4):
            a.I("v_lshlrev_b32 v%d, 16, v%d" % (VU + 2 * r, vVv + 2 * r + p))
            a.I("v_and_b32 v%d, 0xffff0000, v%d" % (VU + 2 * r + 1, vVv + 2 * r + p))
            a.I("v_pk_mul_f32 %s, %s, %s" % (vp(RES + 2 * r), vp(RES + 2 * r), vp(VU + 2 * r)))
        for e in range(2):
            o = O + 4 * p + 2 * e
            a.I("v_cvt_pk_bf16_f32 v%d, v%d, v%d" % (o, RES + 6 + e, RES + 4 + e))
            a.I("v_cvt_pk_bf16_f32 v%d, v%d, v%d" % (o + 1, RES + 2 + e, RES + e))
            a.I("ds_write_b64 v%d, %s offset:%d" % (vR, vp(o), (2 * p + e) * RS))


def kv_loads(a, vK, vVv, vO, vOH):
    a.I("s_mov_b64 s[%d:%d], exec" % (sT0, sT1))
    a.I("s_mov_b32 exec_lo, 1")
    a.I("s_mov_b32 exec_hi, 0")
    for j in range(3):
        a.I("buffer_load_dwordx2 %s, v%d, %s, 0 offen offset:%d" % (vp(vK + 2 * j), vOH, s4(SRD_K), 896 * j))
    a.I("s_mov_b64 exec, s[%d:%d]" % (sT0, sT1))
    for j in range(4):
        a.I("buffer_load_dwordx2 %s, v%d, %s, 0 offen offset:%d" % (vp(vK + 6 + 2 * j), vO, s4(SRD_K), 896 * j))
    for j in range(4):
        a.I("buffer_load_dwordx2 %s, v%d, %s, 0 offen offset:%d" % (vp(vVv + 2 * j), vO, s4(SRD_V), 896 * j))


def kv_halo(a, vK):
    for j in range(3):
        for p in range(2):
            a.I("v_mov_b32_dpp v%d, v%d wave_shr:1 row_mask:0xf bank_mask:0xf" % (vK + 2 * j + p, vK + 8 + 2 * j + p))


SHUF_OFF = 0
OKS_OFF = RAW_OFF + 17 * 1088
sXCC, sPOLL = 95, 93


STG_K = RAW_OFF
STG_V = Y_OFF + 4 * YS
assert STG_V + 16 * 1088 <= T_OFF and 8 * 2560 <= STG_V and OKS_OFF + 2048 <= CNT_OFF


def gen_B(a):
    a.label("L_B")
    vS = 64
    KK, VV, WR_, WP = 16, 28, 36, 40
    KU, VU, RES, G, IN = 100, 122, 126, 144, 152
    vTo, vTo2, vTh, vSW, vSR, vST, vIL, vRW, vPA, vPV = 48, 49, 50, 51, 52, 53, 54, 55, 60, 61
    SRD_W = 72
    s64K, s8K, s128K, sQB = 76, 77, 78, 79
    s4K, s12K = 80, 81

    def qe_signal():
        a.I("s_lshl_b32 s3, s%d, 2" % sCH)
        a.I("s_add_u32 s3, s3, %d" % GATE_OFF)
        a.I("v_mov_b32 v2, s3")
        a.I("v_mov_b32 v3, 1")
        a.I("s_mov_b64 exec, 1")
        a.I("ds_write_b32 v2, v3")
        a.I("s_mov_b64 exec, -1")
    QIN = 2097152
    pin = cfg["nt_in"]
    a.I("s_lshl_b32 s3, s%d, 7" % sSUB)
    a.I("s_lshl_b32 s%d, s%d, 4" % (sT0, sW))
    a.I("s_add_u32 s3, s3, s%d" % sT0)
    a.I("s_mul_i32 s3, s3, 896")
    a.I("s_lshl_b32 s%d, s%d, 7" % (sT0, sX))
    a.I("s_add_u32 s3, s3, s%d" % sT0)
    a.I("v_lshrrev_b32 v6, 3, v1")
    a.I("v_mul_u32_u24 v6, 896, v6")
    a.I("v_and_b32 v7, 7, v1")
    a.I("v_lshl_add_u32 v6, v7, 4, v6")
    a.I("v_add_u32 v%d, s3, v6" % vTo)
    a.I("v_add_u32 v%d, 7168, v%d" % (vTo2, vTo))
    a.I("v_add_u32 v%d, %d, v%d" % (vTh, -7168, vTo))
    qreg = cfg.get("qreg")
    if qreg:
        a.I("v_mov_b32 v12, v%d" % vTo)
        a.I("v_mov_b32 v13, v%d" % vTo2)
    a.I("s_mul_i32 s%d, s%d, 2176" % (sT4, sW))
    a.I("s_add_u32 s%d, s%d, %d" % (sT4, sT4, STG_K + 1088))
    a.I("v_lshrrev_b32 v3, 4, v1")
    a.I("v_and_b32 v2, 15, v1")
    a.I("s_and_b32 s%d, s%d, 1" % (sT0, sW))
    a.I("s_lshl_b32 s%d, s%d, 4" % (sT0, sT0))
    a.I("v_add_u32 v4, s%d, v2" % sT0)
    a.I("s_lshl_b32 s%d, s%d, 9" % (sT1, sX))
    a.I("v_lshl_add_u32 v5, v4, 4, s%d" % sT1)
    a.I("s_waitcnt lgkmcnt(0)")
    srd(a, SRD_K, K, IN_BYTES)
    srd(a, SRD_V, V, IN_BYTES)
    a.I("s_mov_b32 m0, s%d" % sT4)
    a.I("buffer_load_dwordx4 v%d, %s, 0 offen %s lds" % (vTo, s4(SRD_K), pin))
    a.I("s_sub_u32 m0, s%d, %d" % (sT4, STG_K + 1088 - STG_V))
    a.I("buffer_load_dwordx4 v%d, %s, 0 offen %s lds" % (vTo, s4(SRD_V), pin))
    a.I("s_add_u32 m0, s%d, 1088" % sT4)
    a.I("buffer_load_dwordx4 v%d, %s, 0 offen %s lds" % (vTo2, s4(SRD_K), pin))
    a.I("s_sub_u32 m0, s%d, %d" % (sT4, STG_K - STG_V))
    a.I("buffer_load_dwordx4 v%d, %s, 0 offen %s lds" % (vTo2, s4(SRD_V), pin))
    a.I("s_cmp_lg_u32 s%d, 0" % sW)
    a.I("s_cbranch_scc1 L_B_nh")
    a.I("s_mov_b32 m0, %d" % STG_K)
    a.I("s_mov_b32 exec_lo, 0")
    a.I("s_mov_b32 exec_hi, 0xffffff00")
    a.I("buffer_load_dwordx4 v%d, %s, 0 offen %s lds" % (vTh, s4(SRD_K), pin))
    a.I("s_mov_b64 exec, -1")
    a.label("L_B_nh")
    a.I("global_load_dwordx4 %s, v5, %s" % (v4(WR_), sp(SHK)))
    ssm_first = 0
    a.I("s_lshr_b32 s%d, s%d, 1" % (sT2, sW))
    a.I("s_lshl_b32 s3, s%d, 4" % sSUB)
    a.I("s_lshl_b32 s%d, s%d, 2" % (sT0, sT2))
    a.I("s_add_u32 s3, s3, s%d" % sT0)
    a.I("v_add_u32 v6, s%d, v3" % sT0)
    a.I("v_mul_u32_u24 v6, 1088, v6")
    a.I("v_lshl_add_u32 v6, v4, 2, v6")
    a.I("v_add_u32 v%d, %d, v6" % (vTo, STG_K))
    a.I("v_add_u32 v%d, %d, v6" % (vTo2, STG_V))
    a.I("s_lshr_b32 s%d, s%d, 1" % (sT0, sC))
    a.I("s_lshl_b32 s%d, s%d, 2" % (sT0, sT0))
    a.I("s_load_dword s%d, %s, s%d" % (sT3, sp(SSD), sT0))
    a.I("s_getreg_b32 s%d, hwreg(HW_REG_XCC_ID, 0, 4)" % sXCC)
    a.I("s_add_u32 s%d, s%d, 1" % (sXCC, sXCC))
    a.I("s_mul_i32 s%d, s%d, 2560" % (sT0, sW))
    a.I("s_add_u32 s%d, s%d, %d" % (sT0, sT0, SHUF_OFF))
    a.I("v_mul_u32_u24 v6, 160, v2")
    a.I("v_sub_u32 v7, 3, v3")
    a.I("v_lshl_add_u32 v6, v7, 4, v6")
    a.I("v_add_u32 v%d, s%d, v6" % (vSW, sT0))
    a.I("v_lshrrev_b32 v6, 2, v1")
    a.I("v_and_b32 v7, 3, v1")
    a.I("v_mul_u32_u24 v8, 80, v6")
    a.I("v_lshl_add_u32 v8, v7, 4, v8")
    a.I("v_add_u32 v%d, s%d, v8" % (vSR, sT0))
    a.I("s_sub_u32 s3, 252, s3")
    a.I("s_lshl_b32 s3, s3, 4")
    a.I("s_lshl_b32 s%d, s%d, 18" % (sT0, sX))
    a.I("s_add_u32 s3, s3, s%d" % sT0)
    a.I("s_and_b32 s%d, s%d, 1" % (sT0, sW))
    a.I("s_lshl_b32 s%d, s%d, 17" % (sT0, sT0))
    a.I("s_add_u32 s3, s3, s%d" % sT0)
    a.I("v_lshlrev_b32 v6, 12, v6")
    a.I("v_lshl_add_u32 v6, v7, 4, v6")
    a.I("v_add_u32 v%d, s3, v6" % vST)
    a.I("s_lshl_b32 s3, s%d, 14" % sGRP)
    a.I("v_lshl_add_u32 v%d, v0, 4, s3" % vIL)
    a.I("s_lshl_b32 s%d, s%d, 11" % (sT0, sW))
    a.I("s_add_u32 s3, s3, s%d" % sT0)
    a.I("v_lshl_add_u32 v9, v2, 7, s3")
    a.I("s_lshl_b32 s3, s%d, 5" % sX)
    a.I("v_mov_b32 v10, s3")
    a.I("s_lshl_b32 s%d, s%d, 7" % (sT0, sSUB))
    a.I("s_lshl_b32 s%d, s%d, 4" % (sT1, sW))
    a.I("s_add_u32 s%d, s%d, s%d" % (sT0, sT0, sT1))
    a.I("s_mul_i32 s%d, s%d, 896" % (sT0, sT0))
    a.I("s_lshl_b32 s%d, s%d, 7" % (sT1, sX))
    a.I("s_add_u32 s%d, s%d, s%d" % (sT0, sT0, sT1))
    a.I("v_mul_u32_u24 v11, 896, v2")
    a.I("v_add_u32 v11, s%d, v11" % sT0)
    late = cfg.get("late", 0)

    def late_group():
        n = 1
        if not cfg.get("noinpf") and not cfg.get("apf", 0) & 1:
            a.I("global_load_dword v%d, v9, %s %s" % (vDUMMY, sp(WS), cfg["nt_pf"]))
            n += 1
        a.I("global_load_dword v%d, v10, %s" % (vDUMMY, sp(DBG)))
        load_T_global(a, vS)
        n += 3
        if cfg.get("qpf", 0) == 0:
            a.I("global_load_dword v%d, v11, %s %s" % (vDUMMY, sp(Q), cfg["nt_pf"]))
            n += 1
        if qreg:
            a.I("s_mul_i32 s3, s%d, %d" % (sCH, TS))
            a.I("s_lshl_b32 s%d, s%d, 11" % (sT0, sHB))
            a.I("s_add_u32 s3, s3, s%d" % sT0)
            a.I("s_add_u32 s%d, s3, %d" % (sQB, T_OFF + 32))
            a.I("s_mov_b32 m0, s%d" % sQB)
            a.I("buffer_load_dwordx4 v12, %s, 0 offen %s lds" % (s4(SRD_IN), pin))
            a.I("s_add_u32 m0, s%d, %d" % (sQB, CS))
            a.I("buffer_load_dwordx4 v13, %s, 0 offen %s lds" % (s4(SRD_IN), pin))
            n += 2
        return n
    srd(a, SRD_IN, Q, IN_BYTES)
    nlate = 0
    if not late:
        if cfg.get("b0", 1) == 1:
            a.I("s_barrier")
        nlate = late_group()
    else:
        a.I("v_mov_b32 v62, v9")
        a.I("v_mov_b32 v63, v10")
    stamp(a, 0)
    srd(a, SRD_OUT, OUT, OUT_BYTES)
    srd(a, SRD_W, WS, QIN + IN_BYTES)
    a.I("s_mov_b32 s%d, 65536" % s64K)
    a.I("s_mov_b32 s%d, 8192" % s8K)
    a.I("s_mov_b32 s%d, 4096" % s4K)
    a.I("s_mov_b32 s%d, 12288" % s12K)
    if qreg:
        a.I("s_mov_b32 s%d, 131072" % s128K)
    zero_quad(a, 56)
    zero_counters(a, 56, 4)
    zero_T_pads(a, 56, 9, 10)
    a.I("v_and_b32 v2, 255, v0")
    a.I("v_lshlrev_b32 v2, 4, v2")
    a.I("s_mul_i32 s3, s%d, %d" % (sHB, RS))
    a.I("s_add_u32 s3, s3, %d" % R_OFF)
    a.I("v_add_u32 v%d, s3, v2" % vRW)
    a.I("s_lshl_b32 s3, s%d, 5" % sX)
    a.I("s_add_u32 s3, s3, 15")
    a.I("s_lshl_b32 s%d, s%d, 2" % (sT0, sCH))
    a.I("s_sub_u32 s3, s3, s%d" % sT0)
    a.I("v_lshrrev_b32 v3, 4, v1")
    a.I("v_sub_u32 v%d, s3, v3" % vPA)
    a.I("s_and_b32 s3, s%d, 1" % sC)
    a.I("s_lshl_b32 s3, s3, 4")
    a.I("s_waitcnt lgkmcnt(0)")
    a.I("s_lshr_b32 s%d, s%d, s3" % (sT3, sT3))
    a.I("s_lshl_b32 s%d, s%d, 16" % (sT3, sT3))
    a.I("s_waitcnt vmcnt(%d)" % nlate)
    a.I("s_barrier")
    stamp(a, 1)
    if late:
        a.I("v_mov_b32 v9, v62")
        a.I("v_mov_b32 v10, v63")
        late_group()
    q = LdsQueue(a)
    rd = {}
    for j in range(3):
        rd["h"] = q.op("ds_read_b32 v%d, v%d offset:%d" % (KK + j, vTo, 640 + 128 * j))
    for j in range(8):
        q.op("ds_read_b32 v%d, v%d offset:%d" % (KK + 3 + j, vTo, 1088 + 128 * j))
        rd[j] = q.op("ds_read_b32 v%d, v%d offset:%d" % (VV + j, vTo2, 128 * j))
        if j == 5:
            break
    a.I("v_lshlrev_b32 v%d, 16, v%d" % (WP + 0, WR_ + 0))
    a.I("v_lshlrev_b32 v%d, 16, v%d" % (WP + 1, WR_ + 2))
    a.I("v_and_b32 v%d, 0xffff0000, v%d" % (WP + 2, WR_ + 0))
    a.I("v_and_b32 v%d, 0xffff0000, v%d" % (WP + 3, WR_ + 2))
    a.I("v_lshlrev_b32 v%d, 16, v%d" % (WP + 4, WR_ + 1))
    a.I("v_lshlrev_b32 v%d, 16, v%d" % (WP + 5, WR_ + 3))
    a.I("v_and_b32 v%d, 0xffff0000, v%d" % (WP + 6, WR_ + 1))
    a.I("v_and_b32 v%d, 0xffff0000, v%d" % (WP + 7, WR_ + 3))

    def unp(dst, src):
        a.I("v_lshlrev_b32 v%d, 16, v%d" % (dst, src))
        a.I("v_and_b32 v%d, 0xffff0000, v%d" % (dst + 1, src))
    q.wait_for(rd["h"])
    for j in range(3):
        unp(KU + 2 * j, KK + j)
    for j in (6, 7):
        q.op("ds_read_b32 v%d, v%d offset:%d" % (KK + 3 + j, vTo, 1088 + 128 * j))
        rd[j] = q.op("ds_read_b32 v%d, v%d offset:%d" % (VV + j, vTo2, 128 * j))
    for r in range(8):
        if r % 2 == 0:
            q.wait_for(rd[r + 1])
        R_ = RES + 2 * r
        unp(KU + 2 * (r + 3), KK + 3 + r)
        a.I("v_pk_mul_f32 %s, %s, %s" % (vp(R_), vp(KU + 2 * r), vp(WP + 6)))
        vu = VU + 2 * (r & 1)
        unp(vu, VV + r)
        for t in (2, 1, 0):
            a.I("v_pk_fma_f32 %s, %s, %s, %s" % (vp(R_), vp(KU + 2 * (r + 3 - t)), vp(WP + 2 * t), vp(R_)))
        a.I("v_pk_mul_f32 %s, %s, %s" % (vp(R_), vp(R_), vp(vu)))
        if r & 1:
            for e in range(2):
                a.I("v_cvt_pk_bf16_f32 v%d, v%d, v%d" % (G + 4 * e + 3 - (r >> 1), R_ + e, R_ - 2 + e))
    a.I("ds_write_b128 v%d, %s" % (vSW, v4(G)))
    a.I("ds_write_b128 v%d, %s offset:80" % (vSW, v4(G + 4)))
    a.I("ds_read_b128 %s, v%d" % (v4(IN), vSR))
    a.I("ds_read_b128 %s, v%d offset:1280" % (v4(IN + 4), vSR))
    a.I("s_waitcnt lgkmcnt(1)")
    a.I("buffer_store_dwordx4 %s, v%d, %s, 0 offen" % (v4(IN), vST, s4(SRD_W)))
    a.I("s_waitcnt lgkmcnt(0)")
    a.I("buffer_store_dwordx4 %s, v%d, %s, s%d offen" % (v4(IN + 4), vST, s4(SRD_W), s64K))
    stamp(a, 2)
    if not ssm_first:
        if qreg:
            a.I("v_and_b32 v2, 3, v1")
            a.I("v_lshlrev_b32 v2, 8, v2")
            a.I("v_bfe_u32 v3, v1, 2, 1")
            a.I("v_mul_u32_u24 v3, %d, v3" % CS)
            a.I("v_add_u32 v2, v2, v3")
            a.I("v_lshrrev_b32 v3, 3, v1")
            a.I("v_lshl_add_u32 v2, v3, 3, v2")
            a.I("v_add_u32 v12, s%d, v2" % sQB)
            a.I("s_lshl_b32 s3, s%d, 18" % sX)
            a.I("s_lshl_b32 s%d, s%d, 10" % (sT0, sSUB))
            a.I("s_add_u32 s3, s3, s%d" % sT0)
            a.I("s_lshl_b32 s%d, s%d, 7" % (sT0, sW))
            a.I("s_add_u32 s3, s3, s%d" % sT0)
            a.I("s_add_u32 s3, s3, %d" % QIN)
            a.I("v_lshlrev_b32 v3, 14, v3")
            a.I("v_and_b32 v2, 7, v1")
            a.I("v_lshl_add_u32 v3, v2, 4, v3")
            a.I("v_add_u32 v13, s3, v3")
            a.I("s_waitcnt vmcnt(2)")
            for h in range(2):
                for e in range(2):
                    a.I("ds_read_b64 %s, v12 offset:%d" % (vp(160 + 4 * h + 2 * e), 128 * e + 64 * h))
            a.I("s_waitcnt lgkmcnt(2)")
            a.I("buffer_store_dwordx4 v[160:163], v13, %s, 0 offen" % s4(SRD_W))
            a.I("s_waitcnt lgkmcnt(0)")
            a.I("buffer_store_dwordx4 v[164:167], v13, %s, s%d offen" % (s4(SRD_W), s128K))
        else:
            a.I("s_waitcnt vmcnt(%d)" % (2 + (1 if cfg.get("qpf", 0) == 0 else 0)))
        build_T_from_global(a, vS)
    a.I("s_waitcnt vmcnt(0)")
    a.I("s_barrier")
    a.I("s_cmp_lg_u32 s%d, 0" % sW)
    a.I("s_cbranch_scc1 L_B_nf")
    a.I("s_lshl_b32 s3, s%d, 5" % sX)
    a.I("s_add_u32 s3, s3, s%d" % sSUB)
    a.I("v_mov_b32 v2, s3")
    a.I("v_mov_b32 v3, s%d" % sXCC)
    a.I("global_store_byte v2, v3, %s" % sp(DBG))
    a.label("L_B_nf")
    stamp(a, 3)
    zero_R_pad(a, 56, 2)
    a.I("s_cmp_eq_u32 s%d, 0" % sHB)
    a.I("s_cbranch_scc0 L_B_j1")
    conv_addr(a)
    if cfg.get("hoist"):
        for t in conv_pre_ops():
            a.I(t)
    a.I("s_branch L_B_j2")
    a.label("L_B_j1")
    help_rows(a)
    if cfg.get("qe"):
        a.I("v_and_b32 v2, 3, v1")
        a.I("v_lshlrev_b32 v2, 2, v2")
        a.I("v_add_u32 v2, %d, v2" % GATE_OFF)
        a.label("L_B_qw")
        a.I("ds_read_b32 v3, v2")
        a.I("s_waitcnt lgkmcnt(0)")
        a.I("v_cmp_eq_u32 vcc, 0, v3")
        a.I("s_nop 1")
        a.I("s_cbranch_vccz L_B_qg")
        a.I("s_sleep 1")
        a.I("s_branch L_B_qw")
        a.label("L_B_qg")
        help_qloads(a, 0, cfg["qe"])
        a.I("v_mov_b32 v2, 0")
        a.I("s_branch L_B_join")
    a.label("L_B_j2")
    if cfg.get("qpf", 0) == 1:
        a.I("global_load_dword v%d, v11, %s %s" % (vDUMMY, sp(Q), cfg["nt_pf"]))
    a.I("s_movk_i32 s%d, %d" % (sPOLL, cfg.get("polls", 64)))
    a.label("L_B_poll")
    a.I("global_load_ubyte v%d, v%d, %s sc1" % (vPV, vPA, sp(DBG)))
    a.I("s_waitcnt vmcnt(0)")
    a.I("v_cmp_ne_u32 vcc, s%d, v%d" % (sXCC, vPV))
    a.I("s_nop 1")
    a.I("s_cbranch_vccz L_B_got")
    a.I("s_sub_u32 s%d, s%d, 1" % (sPOLL, sPOLL))
    a.I("s_cmp_lg_u32 s%d, 0" % sPOLL)
    a.I("s_cbranch_scc1 L_B_poll")
    if cfg.get("qe"):
        qe_signal()
    a.I("v_mov_b32 v2, 1")
    a.I("s_branch L_B_join")
    a.label("L_B_got")
    stamp(a, 8)
    a.I("buffer_load_dwordx4 %s, v%d, %s, 0 offen sc1" % (v4(IN), vIL, s4(SRD_W)))
    a.I("buffer_load_dwordx4 %s, v%d, %s, s%d offen sc1" % (v4(IN + 4), vIL, s4(SRD_W), s8K))
    if cfg.get("qe"):
        a.I("buffer_load_dwordx4 %s, v%d, %s, s%d offen sc1" % (v4(IN + 8), vIL, s4(SRD_W), s4K))
        a.I("buffer_load_dwordx4 %s, v%d, %s, s%d offen sc1" % (v4(IN + 12), vIL, s4(SRD_W), s12K))
        qe_signal()
        a.I("v_mov_b32 v2, %d" % cfg.get("forcefb", 0))
        for j, (r, ch) in enumerate(((IN, 0), (IN + 4, 2), (IN + 8, 1), (IN + 12, 3))):
            a.I("s_waitcnt vmcnt(%d)" % (3 - j))
            a.I("ds_write_b128 v%d, %s offset:%d" % (vRW, v4(r), ch * RS))
        a.I("s_branch L_B_join")
    a.I("v_mov_b32 v2, %d" % cfg.get("forcefb", 0))
    nq_ = 0
    if cfg.get("qpf", 0) == 2:
        a.I("global_load_dword v%d, v11, %s %s" % (vDUMMY, sp(Q), cfg["nt_pf"]))
        nq_ = 1
    a.I("s_waitcnt vmcnt(%d)" % (1 + nq_))
    a.I("ds_write_b128 v%d, %s" % (vRW, v4(IN)))
    a.I("s_waitcnt vmcnt(%d)" % nq_)
    a.I("ds_write_b128 v%d, %s offset:%d" % (vRW, v4(IN + 4), 2 * RS))
    a.label("L_B_join")
    a.I("s_lshl_b32 s3, s%d, 8" % sW)
    a.I("s_add_u32 s3, s3, %d" % OKS_OFF)
    a.I("v_lshl_add_u32 v3, v1, 2, s3")
    a.I("ds_write_b32 v3, v2")
    a.I("v_and_b32 v3, 7, v1")
    a.I("v_lshlrev_b32 v3, 8, v3")
    a.I("v_add_u32 v3, %d, v3" % OKS_OFF)
    a.I("s_waitcnt lgkmcnt(0)")
    a.I("s_barrier")
    a.I("ds_read_b32 v2, v3")
    a.I("s_waitcnt lgkmcnt(0)")
    a.I("v_cmp_ne_u32 vcc, 0, v2")
    a.I("s_nop 1")
    a.I("s_cbranch_vccnz L_B_fb")
    if qreg:
        a.I("s_cmp_eq_u32 s%d, 0" % sHB)
        a.I("s_cbranch_scc1 L_B_go")
        srd(a, SRD_IN, WS, QIN + IN_BYTES)
        a.I("s_lshl_b32 s3, s%d, 14" % sGRP)
        a.I("s_lshl_b32 s%d, s%d, 9" % (sT0, sCH))
        a.I("s_add_u32 s3, s3, s%d" % sT0)
        a.I("s_add_u32 s3, s3, %d" % QIN)
        a.I("v_lshl_add_u32 v%d, v1, 3, s3" % vHI)
        for t in range(8):
            a.I("s_mov_b32 s%d, %d" % (sQO + t, 2048 * t))
    a.label("L_B_go")
    stamp(a, 4)
    if cfg["dump"]:
        dump_lds(a)
    a.I("s_cmp_eq_u32 s%d, 0" % sHB)
    a.I("s_cbranch_scc1 L_CONV")
    help_qloads(a, cfg.get("qe", 0), 8)
    a.I("s_branch L_HELP2")
    a.label("L_B_fb")
    vK, vVv, vO, vOH, vR = 144, 158, 40, 41, 42
    a.I("s_lshl_b32 s3, s%d, 5" % sGRP)
    a.I("s_load_dwordx8 s[%d:%d], %s, s3" % (16, 23, sp(SHK)))
    a.I("s_lshl_b32 s3, s%d, 3" % sGRP)
    a.I("v_mul_u32_u24 v24, 3584, v0")
    a.I("v_add_u32 v%d, s3, v24" % vO)
    a.I("v_add_u32 v%d, %d, v%d" % (vOH, -2688, vO))
    a.I("v_cmp_eq_u32 vcc, 0, v0")
    a.I("v_bfrev_b32 v2, 1")
    a.I("v_cndmask_b32 v%d, v%d, v2, vcc" % (vOH, vOH))
    a.I("v_lshlrev_b32 v3, 3, v0")
    a.I("v_sub_u32 v%d, %d, v3" % (vR, R_OFF + 4088))
    kv_loads(a, vK, vVv, vO, vOH)
    a.I("s_waitcnt lgkmcnt(0)")
    unpack_weights_uniform(a)
    a.I("s_waitcnt vmcnt(4)")
    kv_halo(a, vK)
    cfg["_vwait"] = 0
    kv_compute(a, vK, vVv, vR)
    a.I("s_waitcnt lgkmcnt(0)")
    a.I("s_barrier")
    a.I("s_branch L_B_go")


HEADER = open("cdna_kernels/%s.s.ref" % NAME).read().split("; Override launch geometry")[0]


def build():
    if cfg.get("hoist"):
        gen_conv(Asm())
        if cfg.get("A"):
            with With():
                gen_conv(Asm(), "A")
    a = Asm()
    gen_entry(a)
    gen_A(a)
    gen_B(a)
    gen_conv(a)
    if cfg.get("A"):
        with With():
            gen_conv(a, "A")
    gen_help(a)
    if cfg.get("dirty"):
        a.label("L_idle")
        a.I("s_waitcnt lgkmcnt(0)")
        a.I("s_lshr_b32 s3, s2, 3")
        a.I("s_mul_i32 s3, s3, %d" % (cfg["dirty"] * 8192))
        a.I("s_add_u32 s3, s3, 0x2000000")
        a.I("v_lshl_add_u32 v1, v0, 4, s3")
        for j in range(cfg["dirty"]):
            a.I("global_store_dwordx4 v1, v[4:7], %s" % sp(WS))
            a.I("v_add_u32 v1, 8192, v1")
    a.label("L_end")
    a.I("s_endpgm")
    a.label("L_codeend")
    body = a.finalize()
    txt = HEADER
    txt += "; @launch grid=(256,1,1) block=(512,1,1) lds=%d\n" % LDS_SIZE
    txt += '.amdgcn_target "amdgcn-amd-amdhsa--gfx950"\n.text\n.globl %s_kernel\n.p2align 8\n.type %s_kernel,@function\n%s_kernel:\n' % (NAME, NAME, NAME)
    txt += body
    txt += """.section .rodata,"a"
.p2align 6
.amdhsa_kernel %s_kernel
  .amdhsa_next_free_vgpr %d
  .amdhsa_next_free_sgpr 102
  .amdhsa_accum_offset %d
  .amdhsa_group_segment_fixed_size 0
  .amdhsa_kernarg_size 128
  .amdhsa_user_sgpr_count 2
  .amdhsa_user_sgpr_kernarg_segment_ptr 1
  .amdhsa_system_sgpr_workgroup_id_x 1
  .amdhsa_float_denorm_mode_32 3
.end_amdhsa_kernel
""" % (NAME, NVGPR, NVGPR)
    return txt, a


if __name__ == "__main__":
    out = sys.argv[1]
    for kv in sys.argv[2:]:
        k, v = kv.split("=", 1)
        try:
            v = json.loads(v)
        except Exception:
            pass
        cfg[k] = v
    txt, a = build()
    open(out, "w").write(txt)
    print("instructions:", a.count(), "auto nops:", a.nops)
```

```python
import re

TRANS = ("v_exp_f32", "v_log_f32", "v_rcp_f32", "v_rsq_f32", "v_sqrt_f32", "v_sin_f32", "v_cos_f32")
NO_DST = ("buffer_store", "global_store", "ds_write", "ds_add", "s_cmp", "s_waitcnt", "s_barrier", "s_branch",
          "s_cbranch", "s_setprio", "s_nop", "s_sleep", "s_endpgm", "s_bitcmp", "buffer_wbl2", "buffer_inv",
          "global_atomic", "buffer_atomic")

_reg = re.compile(r"^(-|abs\()?([vsa])(\d+)\)?$")
_rng = re.compile(r"^(-)?([vsa])\[(\d+):(\d+)\]$")


def regs_of(op):
    op = op.strip()
    m = _reg.match(op)
    if m:
        return {(m.group(2), int(m.group(3)))}
    m = _rng.match(op)
    if m:
        return {(m.group(2), i) for i in range(int(m.group(3)), int(m.group(4)) + 1)}
    if op == "vcc":
        return {("s", 106), ("s", 107)}
    if op == "vcc_lo":
        return {("s", 106)}
    if op == "vcc_hi":
        return {("s", 107)}
    if op == "exec":
        return {("s", 126), ("s", 127)}
    if op == "exec_lo":
        return {("s", 126)}
    if op == "exec_hi":
        return {("s", 127)}
    if op == "m0":
        return {("s", 124)}
    return set()


class Instr:
    def __init__(self, text):
        self.text = text
        t = text.split(";")[0].strip()
        parts = t.split(None, 1)
        self.mn = parts[0]
        rest = parts[1] if len(parts) > 1 else ""
        ops = []
        depth = 0
        cur = ""
        for ch in rest:
            if ch in "[(":
                depth += 1
            if ch in "])":
                depth -= 1
            if ch == "," and depth == 0:
                ops.append(cur.strip())
                cur = ""
            else:
                cur += ch
        if cur.strip():
            ops.append(cur.strip())
        self.mods = ""
        if ops:
            last = ops[-1].split(None, 1)
            ops[-1] = last[0]
            self.mods = last[1] if len(last) > 1 else ""
        self.ops = ops
        mn = self.mn
        self.is_mfma = mn.startswith("v_mfma")
        self.is_valu = mn.startswith("v_") and not self.is_mfma
        self.is_trans = mn.startswith(TRANS)
        self.is_dpp = "_dpp" in mn
        self.is_ds = mn.startswith("ds_")
        self.is_vmem = mn.startswith(("buffer_", "global_"))
        self.is_salu = mn.startswith("s_")
        self.passes = 0
        if self.is_mfma:
            self.passes = 8 if "32x32x16" in mn else 4
        self.dst = set()
        self.src = set()
        self.srcC = set()
        if mn.startswith(NO_DST) or (mn.startswith("buffer_load") and " lds" in " " + self.mods):
            for o in ops:
                self.src |= regs_of(o)
            if mn.startswith(("global_atomic", "buffer_atomic")) and "sc0" in self.mods:
                self.dst = regs_of(ops[0])
        elif ops:
            self.dst = regs_of(ops[0])
            for o in ops[1:]:
                self.src |= regs_of(o)
            if mn.startswith(("v_fmac", "v_writelane")) or self.is_dpp:
                self.src |= self.dst
            if self.is_mfma:
                self.srcC = regs_of(ops[3])
                self.srcAB = regs_of(ops[1]) | regs_of(ops[2])
            if mn.startswith(("v_add_co", "v_addc_co", "v_sub_co")):
                self.dst |= regs_of(ops[1])
        if mn.startswith("v_cndmask") and len(ops) == 3:
            self.src |= regs_of("vcc")
        if "addtid" in mn:
            self.src |= regs_of("m0")
        self.states = 1
        if mn == "s_nop":
            self.states = int(ops[0], 0) + 1
        self.wide_store = self.is_vmem and "store" in mn and ("x3" in mn or "x4" in mn)


def need(p, c):
    n = 0
    pv = {r for r in p.dst if r[0] in "va"}
    ps = {r for r in p.dst if r[0] == "s"}
    if p.is_valu:
        if pv & c.src:
            if c.mn.startswith(("v_readfirstlane", "v_readlane")):
                n = max(n, 1)
            if c.is_dpp or c.mn.startswith("v_permlane"):
                n = max(n, 2)
            if c.is_mfma:
                n = max(n, 2)
            if p.is_trans and not c.is_trans:
                n = max(n, 1)
        if ps & c.src:
            if c.is_valu or c.is_mfma:
                n = max(n, 2)
                if c.mn.startswith(("v_readlane", "v_writelane")):
                    n = max(n, 4)
            if c.is_vmem:
                n = max(n, 5)
            if c.is_salu:
                n = max(n, 1)
    if p.mn.startswith("v_dot") and pv & (c.src | c.dst):
        same_c = c.mn == p.mn and len(c.ops) == 4 and pv & regs_of(c.ops[3]) and not pv & (regs_of(c.ops[1]) | regs_of(c.ops[2]))
        if not same_c:
            n = max(n, 3)
    if p.is_mfma:
        big = 12 if p.passes == 8 else 8
        if c.is_mfma:
            if pv & c.srcAB:
                n = max(n, big)
            if pv & c.srcC:
                if not (pv == c.srcC and p.passes == c.passes):
                    n = max(n, big - 2)
            elif pv & c.dst:
                n = max(n, big - 2)
        else:
            if pv & (c.src | c.dst):
                n = max(n, big)
            if c.is_valu and (p.srcC & c.dst):
                n = max(n, 7 if p.passes == 8 else 3)
    if p.is_salu and ("s", 124) in ps and ("addtid" in c.mn or (c.is_vmem and " lds" in " " + c.mods)):
        n = max(n, 1)
    if p.wide_store:
        data = regs_of(p.ops[0]) if p.mn.startswith("buffer") else regs_of(p.ops[1])
        if data & c.dst:
            n = max(n, 2)
    return n


class Asm:
    def __init__(self):
        self.items = []

    def I(self, text):
        for line in text.split("\n"):
            line = line.strip()
            if line:
                self.items.append(Instr(line))

    def label(self, name):
        self.items.append(name + ":")

    def comment(self, text):
        self.items.append("; " + text)

    def raw(self, text):
        self.items.append(text)

    def finalize(self):
        out = []
        hist = []
        nops = 0
        for it in self.items:
            if isinstance(it, str):
                out.append(it)
                continue
            dist = 0
            req = 0
            for p in reversed(hist):
                r = need(p, it)
                if r - dist > req:
                    req = r - dist
                dist += p.states
                if dist >= 13:
                    break
            if req > 0:
                nop = Instr("s_nop %d" % (req - 1))
                out.append("    " + nop.text)
                hist.append(nop)
                nops += 1
            out.append("    " + it.text)
            hist.append(it)
            if len(hist) > 32:
                hist.pop(0)
        self.nops = nops
        return "\n".join(out) + "\n"

    def count(self):
        return sum(1 for it in self.items if not isinstance(it, str))


class LdsQueue:
    def __init__(self, asm):
        self.a = asm
        self.n = 0
        self.done = 0

    def op(self, text):
        self.a.I(text)
        self.n += 1
        return self.n - 1

    def wait_for(self, idx, lag=None):
        if idx < self.done:
            return
        N = self.n - idx - 1
        if lag is not None:
            N = min(N, lag)
        N = min(N, 15)
        self.a.I("s_waitcnt lgkmcnt(%d)" % N)
        self.done = self.n - N

    def drain(self):
        if self.done < self.n:
            self.a.I("s_waitcnt lgkmcnt(0)")
        self.done = self.n
```

```python
import sys
import json
from asmgen import Asm, LdsQueue

NAME = "concat_heads__ssm_conv_s4d__ssm_conv_h3__prompt"

cfg = dict(
    stamps=0,
    dump=None,
    nt_in="nt",
    nt_pf="",
    nt_out="",
    codepf=2,
    lag=10,
    margin=10,
    look=70,
    phases=[[0, 4, 0, 8], [4, 8, 0, 8]],
    merge=[0, 3],
    hlong=None,
    hsl=[3, 4, 1, 1, 1],
    p1=4,
    trkv=1, ipf=1, qe=4, reuse=1, hoist=1, hgroups=[[0, 1, 2, 3], [4], [5], [6], [7]],
    gate=1, upf_late=1, kpx=0.6, tprio=0, xprio=1, scal=[0, 3], km0=24, kmd=5, kspread=1,
    apf=4, qpf=3, prio=0, hprio=3, hsleep=1, b0=1, kprio=1,
    ul=[0.2, 0.35, 0.5, 0.65],
    uc=[0.55, 0.7, 0.85, 1.0],
    pre=10,
    hard=9,
)

ROWB = 2064
CS = 4160
TS = 4 * CS + 32
RS = 4576
YS = 4672
R_OFF = 0
Y_OFF = 4 * RS
T_OFF = 33 * ROWB
RAW_OFF = T_OFF + 4 * TS
RAWS = 2080
RED_OFF = RAW_OFF + 8 * RAWS
CNT_OFF = RED_OFF + 4 * 3072
GATE_OFF = CNT_OFF + 16
LDS_SIZE = CNT_OFF + 32
assert LDS_SIZE <= 163840 and Y_OFF + 4 * YS <= T_OFF
IN_BYTES = 2048 * 896
OUT_BYTES = 2048 * 1792

sX, sSUB, sGRP, sW = 4, 5, 6, 7
U, LAR, AIM, CR, CI, LDT, DSK, Q = 8, 10, 12, 14, 16, 18, 20, 22
K, V, SHK, SSK, SSD, OUT, DBG, WS = 24, 26, 28, 30, 32, 34, 36, 38
sPC = 40
sT0, sT1 = 42, 43
SRD_OUT, SRD_IN, SRD_K, SRD_V, SRD_SK = 44, 48, 52, 56, 60
sCH, sHB, sC, sT2, sT3, sT4, sISB = 88, 89, 90, 91, 92, 93, 94
sST = 96
vSTAMP = 254
vDUMMY = 255
NVGPR = 256


def sp(n):
    return "s[%d:%d]" % (n, n + 1)


def s4(n):
    return "s[%d:%d]" % (n, n + 3)


def vp(n):
    assert n % 2 == 0
    return "v[%d:%d]" % (n, n + 1)


def v4(n):
    assert n % 2 == 0
    return "v[%d:%d]" % (n, n + 3)


def stamp(a, idx):
    if cfg["stamps"] and (cfg.get("only") is None or idx in cfg["only"]):
        a.I("s_memrealtime %s" % sp(sST))
        a.I("s_memtime %s" % sp(sST + 2))
        a.I("s_waitcnt lgkmcnt(0)")
        a.I("v_writelane_b32 v%d, s%d, %d" % (vSTAMP, sST, idx))
        a.I("v_writelane_b32 v%d, s%d, %d" % (vSTAMP, sST + 2, idx + 32))


def stamp_flush(a):
    if cfg["stamps"]:
        a.I("s_lshl_b32 s%d, s2, 11" % sT0)
        a.I("s_lshl_b32 s%d, s%d, 8" % (sT1, sW))
        a.I("s_add_u32 s%d, s%d, s%d" % (sT0, sT0, sT1))
        a.I("s_add_u32 s%d, s%d, 0x1000000" % (sT0, sT0))
        a.I("v_lshl_add_u32 v2, v1, 2, s%d" % sT0)
        if cfg["stamps"] == 3:
            lab = "L_amp%d" % len(a.items)
            a.I("s_lshl_b32 s%d, s%d, 8" % (sT1, sW))
            a.I("s_or_b32 s%d, s2, s%d" % (sT0, sT1))
            a.I("s_cmp_eq_u32 s%d, %d" % (sT0, 0x400 + cfg["amp_wg"]))
            a.I("s_cbranch_scc0 %s" % lab)
            a.I("v_readlane_b32 s%d, v%d, %d" % (sT0, vSTAMP, cfg["amp_from"]))
            a.I("v_readlane_b32 s%d, v%d, %d" % (sT1, vSTAMP, cfg["amp_to"]))
            a.I("s_nop 4")
            a.I("s_sub_u32 s%d, s%d, s%d" % (sT0, sT1, sT0))
            a.I("s_mul_i32 s%d, s%d, 10" % (sT0, sT0))
            a.I("s_memrealtime %s" % sp(sST))
            a.I("s_waitcnt lgkmcnt(0)")
            a.I("s_mov_b32 s%d, s%d" % (sT1, sST))
            a.label(lab + "l")
            a.I("s_sleep 2")
            a.I("s_memrealtime %s" % sp(sST))
            a.I("s_waitcnt lgkmcnt(0)")
            a.I("s_sub_u32 s3, s%d, s%d" % (sST, sT1))
            a.I("s_cmp_lt_u32 s3, s%d" % sT0)
            a.I("s_cbranch_scc1 %sl" % lab)
            a.label(lab)
        elif cfg["stamps"] == 2:
            lab = "L_nodbg%d" % len(a.items)
            a.I("s_and_b32 s%d, s2, 0xfffffff7" % sT0)
            a.I("s_lshl_b32 s%d, s%d, 8" % (sT1, sW))
            a.I("s_or_b32 s%d, s%d, s%d" % (sT0, sT0, sT1))
            a.I("s_cmp_eq_u32 s%d, 0x400" % sT0)
            a.I("s_cbranch_scc0 %s" % lab)
            a.I("s_lshl_b32 s%d, s2, 2" % sT0)
            a.I("v_lshl_add_u32 v2, v1, 2, s%d" % sT0)
            a.I("s_mov_b32 exec_lo, 0xff")
            a.I("s_mov_b32 exec_hi, 0")
            a.I("global_store_dword v2, v%d, %s" % (vSTAMP, sp(DBG)))
            a.label(lab)
        else:
            a.I("global_store_dword v2, v%d, %s" % (vSTAMP, sp(WS)))


def srd(a, dst, ptr, nbytes):
    a.I("s_mov_b32 s%d, s%d" % (dst, ptr))
    a.I("s_mov_b32 s%d, s%d" % (dst + 1, ptr + 1))
    a.I("s_mov_b32 s%d, %d" % (dst + 2, nbytes))
    a.I("s_mov_b32 s%d, 0x20000" % (dst + 3))


def dump_lds(a):
    a.I("s_mul_i32 s%d, s2, 163840" % sT0)
    a.I("v_lshlrev_b32 v2, 4, v0")
    a.I("v_add_u32 v3, s%d, v2" % sT0)
    for j in range(LDS_SIZE // 8192 + 1):
        a.I("ds_read_b128 v[4:7], v2")
        a.I("s_waitcnt lgkmcnt(0)")
        a.I("global_store_dwordx4 v3, v[4:7], %s" % sp(WS))
        a.I("s_waitcnt vmcnt(0)")
        a.I("v_add_u32 v2, 8192, v2")
        a.I("v_add_u32 v3, 8192, v3")
    a.I("s_barrier")


def gen_entry(a):
    a.I("s_load_dwordx16 s[8:23], s[0:1], 0")
    a.I("s_load_dwordx16 s[24:39], s[0:1], 64")
    a.I("s_cmp_ge_u32 s2, 256")
    a.I("s_cbranch_scc1 L_end")
    a.I("s_and_b32 s%d, s2, 7" % sX)
    if cfg.get("idle", 7) != 7:
        a.I("s_and_b32 s%d, s2, 7" % sX)
        a.I("s_sub_u32 s%d, s%d, %d" % (sX, sX, cfg["idle"] + 1))
        a.I("s_and_b32 s%d, s%d, 7" % (sX, sX))
    a.I("s_cmp_eq_u32 s%d, 7" % sX)
    a.I("s_cbranch_scc1 %s" % ("L_idle" if cfg.get("dirty") else "L_end"))
    if cfg["codepf"]:
        a.I("s_getpc_b64 %s" % sp(sPC))
        a.label("L_pc")
        if cfg["codepf"] == 1:
            a.I("v_lshlrev_b32 v2, 7, v0")
        else:
            a.I("s_and_b32 s3, s2, 0xf8")
            a.I("v_and_b32 v2, 7, v0")
            a.I("v_add_u32 v2, s3, v2")
            a.I("v_lshlrev_b32 v2, 7, v2")
        a.I("v_min_u32 v2, L_codeend-L_pc-4, v2")
        a.I("global_load_dword v%d, v2, %s" % (vDUMMY, sp(sPC)))
    if cfg["stamps"]:
        a.I("v_mov_b32 v%d, 0" % vSTAMP)
        a.I("s_memrealtime %s" % sp(sST))
        a.I("s_waitcnt lgkmcnt(0)")
        a.I("v_writelane_b32 v%d, s%d, 9" % (vSTAMP, sST))
        a.I("s_getreg_b32 s3, hwreg(HW_REG_XCC_ID, 0, 4)")
        a.I("v_writelane_b32 v%d, s3, 31" % vSTAMP)
    a.I("v_lshrrev_b32 v2, 6, v0")
    a.I("v_and_b32 v1, 63, v0")
    a.I("v_readfirstlane_b32 s%d, v2" % sW)
    a.I("s_lshr_b32 s3, s2, 3")
    if cfg.get("afirst"):
        a.I("s_and_b32 s%d, s3, 15" % sSUB)
        a.I("s_lshr_b32 s3, s3, 4")
    else:
        a.I("s_lshr_b32 s%d, s3, 1" % sSUB)
    a.I("s_lshl_b32 s%d, s%d, 4" % (sGRP, sX))
    a.I("s_add_u32 s%d, s%d, s%d" % (sGRP, sGRP, sSUB))
    a.I("s_and_b32 s%d, s3, 1" % sISB)
    if cfg.get("afirst") == 2:
        a.I("s_xor_b32 s%d, s%d, 1" % (sISB, sISB))
    a.I("s_and_b32 s%d, s%d, 3" % (sCH, sW))
    a.I("s_lshr_b32 s%d, s%d, 2" % (sHB, sW))
    a.I("s_lshl_b32 s%d, s%d, 2" % (sC, sGRP))
    a.I("s_add_u32 s%d, s%d, s%d" % (sC, sC, sCH))
    a.I("s_cmp_eq_u32 s%d, 1" % sISB)
    a.I("s_cbranch_scc1 L_B")


def zero_quad(a, q):
    for i in range(4):
        a.I("v_mov_b32 v%d, 0" % (q + i))


def zero_R_pad(a, zq, tmp):
    a.I("s_mul_i32 s%d, s%d, %d" % (sT0, sCH, RS))
    a.I("s_add_u32 s%d, s%d, %d" % (sT0, sT0, R_OFF + 4096))
    a.I("v_min_u32 v%d, 29, v1" % tmp)
    a.I("v_lshl_add_u32 v%d, v%d, 4, s%d" % (tmp, tmp, sT0))
    a.I("ds_write_b128 v%d, %s" % (tmp, v4(zq)))


def zero_RAW_front(a, zq, tmp):
    a.I("v_and_b32 v%d, 1, v1" % tmp)
    a.I("v_lshlrev_b32 v%d, 4, v%d" % (tmp, tmp))
    a.I("v_add_u32 v%d, %d, v%d" % (tmp, RAW_OFF, tmp))
    a.I("ds_write_b128 v%d, %s" % (tmp, v4(zq)))


def zero_counters(a, zq, tmp):
    a.I("v_lshlrev_b32 v%d, 4, v1" % tmp)
    a.I("v_add_u32 v%d, %d, v%d" % (tmp, CNT_OFF, tmp))
    a.I("s_mov_b64 exec, 3")
    a.I("ds_write_b128 v%d, %s" % (tmp, v4(zq)))
    a.I("s_mov_b64 exec, -1")


def zero_T_pads(a, zq, t0, t1):
    a.I("v_bfe_u32 v%d, v1, 3, 2" % t0)
    a.I("v_mul_u32_u24 v%d, %d, v%d" % (t0, TS, t0))
    a.I("v_bfe_u32 v%d, v1, 1, 2" % t1)
    a.I("v_mul_u32_u24 v%d, %d, v%d" % (t1, CS, t1))
    a.I("v_add_u32 v%d, v%d, v%d" % (t0, t0, t1))
    a.I("v_and_b32 v%d, 1, v1" % t1)
    a.I("v_lshl_add_u32 v%d, v%d, 4, v%d" % (t0, t1, t0))
    a.I("v_add_u32 v%d, %d, v%d" % (t0, T_OFF, t0))
    a.I("ds_write_b128 v%d, %s" % (t0, v4(zq)))


vU = 8
vP = 16
vAB = 20
v2DT = 22
vOFFU = 24
vAA = 166
vUPF = 168
vE0, vE1, vE2, vE3 = 174, 175, 176, 177
vZ, vC, vV, vW, vG, vXc, vQ, vT, vT2 = 170, 172, 32, 34, 36, 38, 40, 42, 44
vTMP = 46
vO = 52
vZQ = 56
vNEG = 152
vX2, vQ2 = 156, 158
vACC = 64
vOP = 80
sLHI, sLLO, sLN2 = 64, 65, 66
s8, s256 = 68, 70
sHM, sODD = 72, 74
sSO = 76
sM0 = 80


class KG:
    def __init__(self, a, nscal=0):
        self.a = a
        self.k = 0
        self.n = 0
        self.nscal = nscal
        self.ntail = 0

    def cmul(self, D, X, Y, T=vT):
        a = self.a
        self.n += 1
        if self.n <= self.nscal or self.n > 50 - self.ntail:
            assert D != X
            ny = {vV: vNEG, vW: vNEG + 1, vG: vNEG + 2}[Y]
            a.I("v_mul_f32 v%d, v%d, v%d" % (D, X + 1, ny))
            a.I("v_mul_f32 v%d, v%d, v%d" % (D + 1, X + 1, Y))
            a.I("v_fmac_f32 v%d, v%d, v%d" % (D, X, Y))
            a.I("v_fmac_f32 v%d, v%d, v%d" % (D + 1, X, Y + 1))
            return
        a.I("v_pk_mul_f32 %s, %s, %s op_sel:[1,1] op_sel_hi:[1,0] neg_lo:[1,0]" % (vp(T), vp(X), vp(Y)))
        a.I("v_pk_fma_f32 %s, %s, %s, %s op_sel_hi:[0,1,1]" % (vp(D), vp(X), vp(Y), vp(T)))

    def out(self, row, X, neg):
        a = self.a
        r = vO + (self.k & 3)
        self.k += 1
        a.I("v_cvt_pk_bf16_f32 v%d, v%d, %sv%d" % (r, X, "-" if neg else "", X + 1))
        a.I("ds_write_addtid_b32 v%d offset:%d" % (r, row * ROWB))

    def anchor(self, P, Zs):
        a = self.a
        a.I("v_fract_f32 v%d, v%d" % (vTMP + 1, Zs + 1))
        a.I("v_exp_f32 v%d, v%d" % (vTMP, Zs))
        a.I("v_cos_f32 v%d, v%d" % (P, vTMP + 1))
        a.I("v_sin_f32 v%d, v%d" % (P + 1, vTMP + 1))
        if self.nscal:
            a.I("v_mul_f32 v%d, v%d, v%d" % (P, P, vTMP))
            a.I("v_mul_f32 v%d, v%d, v%d" % (P + 1, P + 1, vTMP))
            a.I("v_sub_f32 v%d, 0, v%d" % ({vV: vNEG, vW: vNEG + 1, vG: vNEG + 2}[P], P + 1))
        else:
            a.I("v_pk_mul_f32 %s, %s, %s op_sel_hi:[1,0]" % (vp(P), vp(P), vp(vTMP)))


def exp_bf16(a, dst, x, t0, t1):
    a.I("v_mul_f32 v%d, s%d, v%d" % (t0, sLHI, x))
    a.I("v_fma_f32 v%d, v%d, s%d, -v%d" % (t1, x, sLHI, t0))
    a.I("v_exp_f32 v%d, v%d" % (t0, t0))
    a.I("v_fmac_f32 v%d, s%d, v%d" % (t1, sLLO, x))
    a.I("v_mul_f32 v%d, s%d, v%d" % (t1, sLN2, t1))
    a.I("v_fmac_f32 v%d, v%d, v%d" % (t0, t0, t1))
    a.I("v_cvt_pk_bf16_f32 v%d, v%d, v%d" % (t0, t0, t0))
    a.I("v_lshlrev_b32 v%d, 16, v%d" % (dst, t0))


def kgen_batch(beta):
    b = Asm()
    nscal = cfg.get("scal", [0, 0])[beta]
    kg = KG(b, nscal)
    kg.ntail = cfg.get("stail", [0, 0])[beta]
    assert nscal or not kg.ntail

    def unpack(dst, src):
        if beta == 0:
            b.I("v_lshlrev_b32 v%d, 16, v%d" % (dst, src))
        else:
            b.I("v_and_b32 v%d, 0xffff0000, v%d" % (dst, src))

    unpack(vTMP + 2, vP + 0)
    unpack(vZ + 1, vP + 1)
    unpack(vC, vP + 2)
    unpack(vC + 1, vP + 3)
    exp_bf16(b, vZ, vTMP + 2, vTMP + 3, vTMP + 4)
    sc = nscal > 0

    def pkmul(D, X, Y, bc):
        if not sc:
            b.I("v_pk_mul_f32 %s, %s, %s%s" % (vp(D), vp(X), Y[0], " op_sel_hi:[1,0]" if bc else ""))
        else:
            b.I("v_mul_f32 v%d, %s, v%d" % (D, Y[1], X))
            b.I("v_mul_f32 v%d, %s, v%d" % (D + 1, Y[1] if bc else Y[2], X + 1))
    pkmul(vC, vC, (vp(v2DT), "v%d" % v2DT), True)
    pkmul(vZ, vZ, (vp(vAB), "v%d" % vAB, "v%d" % (vAB + 1)), False)
    kg.out(0, vC, True)
    pkmul(vT2, vZ, (sp(s256), "s%d" % s256), True)
    kg.anchor(vG, vT2)
    pkmul(vT2, vZ, (sp(s8), "s%d" % s8), True)
    kg.anchor(vW, vT2)
    kg.anchor(vV, vZ)

    def other(r, p, p2):
        return (p2 if r == p else p) if sc else p
    src = vC
    for row in (8, 12, 16, 20, 18, 22, 19, 23):
        d = other(src, vQ, vQ2)
        kg.cmul(d, src, vG)
        kg.out(row, d, True)
        src = d
    src = vC
    for r in range(1, 8):
        d = other(src, vXc, vX2)
        kg.cmul(d, src, vV)
        kg.out(r, d, True)
        src = d
        if r == 2:
            kg.cmul(vQ, src, vG)
            kg.out(9, vQ, True)
        if r == 4:
            qq = src
            for row in (10, 13, 17):
                d2 = other(qq, vQ, vQ2)
                kg.cmul(d2, qq, vG)
                kg.out(row, d2, True)
                qq = d2
        if r == 6:
            kg.cmul(vQ, src, vG)
            kg.out(11, vQ, True)
    partA = [it.text for it in b.items]
    b = Asm()
    kg.a = b
    kg.out(31, vW, False)
    src = vW
    for j in range(2, 32):
        d = other(src, vXc, vX2)
        kg.cmul(d, src, vW)
        kg.out(32 - j, d, False)
        src = d
    return partA, [it.text for it in b.items]


vAB_ = 167
vUR, vUW, vUT = 4, 5, 6
vUH = 60
vH3 = 160
sPL, sPH = 82, 83
vTR = 180


def gen_kgen_stream(a):
    q = LdsQueue(a)
    A0, B0 = kgen_batch(0)
    A1, B1 = kgen_batch(1)
    OPA, OPB = vOP, vOP + 32
    st = {"vm": 0, "vmidx": {}}
    rb = {}

    def read(kind, s_):
        def f():
            if cfg.get("kx_noreads"):
                rb[s_] = -1
            elif kind == "A":
                q.op("ds_read_b128 %s, v%d offset:%d" % (v4(OPA + 4 * s_), vAA, 32 * s_))
            else:
                rb[s_] = q.op("ds_read_b128 %s, v%d offset:%d" % (v4(OPB + 4 * s_), vAB_, 32 * s_))
        return f

    def mfma(s_, first):
        def f():
            if cfg.get("kx_nomfma"):
                return
            q.wait_for(rb[s_])
            c = "0" if (first and s_ == 0) else "v[%d:%d]" % (vACC, vACC + 15)
            a.I("v_mfma_f32_32x32x16_bf16 v[%d:%d], %s, %s, %s" % (vACC, vACC + 15, v4(OPA + 4 * s_), v4(OPB + 4 * s_), c))
        return f

    def uload(j):
        def f():
            if cfg.get("tperm"):
                if j == 0:
                    a.I("s_mov_b64 exec, 1")
                    for h in range(3):
                        a.I("buffer_load_dwordx2 %s, v7, %s, 0 offen offset:%d" % (vp(vH3 + 2 * h), s4(SRD_IN), 896 * h))
                    a.I("s_mov_b64 exec, -1")
                    st["vm"] += 3
                if cfg.get("urot"):
                    lab = "L_ur%d" % j
                    for k in range(4):
                        jj = (j + k) & 3
                        if k < 3:
                            a.I("s_cmp_lg_u32 s%d, %d" % (sCH, k))
                            a.I("s_cbranch_scc1 %s_%d" % (lab, k + 1))
                        a.I("buffer_load_dwordx2 %s, v%d, %s, 0 offen offset:%d" % (vp(vU + 2 * jj), vOFFU, s4(SRD_IN), 896 * jj))
                        if k < 3:
                            a.I("s_branch %s_e" % lab)
                            a.label("%s_%d" % (lab, k + 1))
                    a.label(lab + "_e")
                else:
                    a.I("buffer_load_dwordx2 %s, v%d, %s, 0 offen offset:%d" % (vp(vU + 2 * j), vOFFU, s4(SRD_IN), 896 * j))
                st["vm"] += 1
                st["vmidx"][j] = st["vm"]
                return
            if j == 0:
                a.I("s_mov_b64 exec, 7")
                a.I("buffer_load_dwordx2 %s, v7, %s, 0 offen" % (vp(vUH), s4(SRD_IN)))
                a.I("s_mov_b64 exec, -1")
                st["vm"] += 1
            a.I("buffer_load_dwordx2 %s, v%d, %s, s%d offen" % (vp(vU + 2 * j), vOFFU, s4(SRD_IN), sSO + j))
            st["vm"] += 1
            st["vmidx"][j] = st["vm"]
        return f

    def tbuild(js):
        steps = []
        tr = {}
        if cfg.get("tperm"):
            def row(r):
                return vU + 2 * r if r >= 0 else vH3 + 2 * (r + 3)

            def halo():
                a.I("s_waitcnt vmcnt(%d)" % (st["vm"] - st["vmidx"][3]))
                for r in (1, 2, 3):
                    for p in range(2):
                        a.I("v_mov_b32_dpp v%d, v%d wave_shr:1 row_mask:0xf bank_mask:0xf" % (row(r - 4) + p, row(r) + p))
            steps.append(halo)
            n_ = 0
            for c in range(4):
                for ch in range(4):
                    def one(c=c, ch=ch, n_=n_):
                        p, sel = ch >> 1, sPH if ch & 1 else sPL
                        r = vTR + 2 * (n_ % 4)
                        a.I("v_perm_b32 v%d, v%d, v%d, s%d" % (r, row(1 - c) + p, row(-c) + p, sel))
                        a.I("v_perm_b32 v%d, v%d, v%d, s%d" % (r + 1, row(3 - c) + p, row(2 - c) + p, sel))
                        q.op("ds_write_b64 v%d, %s offset:%d" % (vUT, vp(r), ch * TS + c * CS))
                    steps.append(one)
                    n_ += 1
            return steps
        for j in js:
            def raw(j=j):
                a.I("s_waitcnt vmcnt(%d)" % (st["vm"] - st["vmidx"][j]))
                if j == 0:
                    a.I("s_mov_b64 exec, 7")
                    q.op("ds_write_b64 v%d, %s" % (vUR, vp(vUH)))
                    a.I("s_mov_b64 exec, -1")
                q.op("ds_write_b64 v%d, %s offset:%d" % (vUR, vp(vU + 2 * j), 24 + 512 * j))
            steps.append(raw)
        slots = [(j, c) for j in js for c in range(4)]
        D = cfg.get("tdepth", 6)
        assert D < 8
        for n_ in range(len(slots) + D):
            if n_ < len(slots):
                def rd(n_=n_):
                    j, c = slots[n_]
                    tr[n_] = q.op("ds_read_b64_tr_b16 %s, v%d offset:%d" % (vp(vTR + 2 * (n_ % 8)), vUW, 512 * j + 8 * (3 - c)))
                steps.append(rd)
            if n_ >= D:
                def wr(n_=n_ - D):
                    j, c = slots[n_]
                    q.wait_for(tr[n_])
                    q.op("ds_write_b64 v%d, %s offset:%d" % (vUT, vp(vTR + 2 * (n_ % 8)), c * CS + 128 * j))
                steps.append(wr)
        return steps

    nA0, nB0, nA1, nB1 = len(A0), len(B0), len(A1), len(B1)
    tot = nA0 + nB0 + nA1 + nB1
    ins = {}

    def at(pos, f):
        ins.setdefault(pos, []).append(f)
    sp_ = cfg.get("kspread", 2)
    if cfg.get("kbar", 0) & 1:
        at(nA0 + nB0 - cfg.get("kbarpos", 0), lambda: a.I("s_barrier"))
    for s_ in range(8):
        at(nA0 + 1 + 3 * s_, read("A", s_))
        at(nA0 + nB0 + sp_ * s_, read("B", s_))
        at(nA0 + nB0 + nA1 + 1 + 3 * s_, read("A", s_))
    first_conf = [i for i, t in enumerate(B0) if t.endswith("offset:%d" % (23 * ROWB))][0]
    assert 1 + 3 * 7 <= first_conf
    if cfg.get("kstamps"):
        at(nA0, lambda: stamp(a, 10))
        at(nA0 + nB0, lambda: stamp(a, 11))
        at(nA0 + nB0 + nA1, lambda: stamp(a, 12))
    m0 = nA0 + nB0 + cfg.get("km0", 20)
    kmd = cfg.get("kmd", 9)
    for s_ in range(8):
        at(m0 + s_ * kmd, mfma(s_, True))
    assert m0 + 7 * kmd < nA1 + nA0 + nB0
    early = cfg.get("tearly", [])
    if not cfg.get("nou"):
        for j in range(4):
            at(int(tot * cfg["ul"][j]), uload(j))
        if early:
            steps = tbuild(early)
            p = int(tot * cfg.get("tpos", 0.62))
            for n_, f in enumerate(steps):
                at(p + n_ * cfg.get("tstep", 3), f)
    if cfg.get("apf", 0) & 4:
        def qpf():
            a.I("global_load_dword v%d, v%d, %s %s" % (vDUMMY, vUPF, sp(Q), cfg["nt_pf"]))
            st["vm"] += 1
        at(min(tot - 1, int(tot * cfg.get("aq", 0.9))), qpf)
    kp = cfg.get("kprio", 0)
    if kp:
        a.I("s_cmp_eq_u32 s%d, 0" % sHB)
        a.I("s_cbranch_scc1 L_kp0")
        a.I("s_setprio 1")
        a.label("L_kp0")
        at(int(tot * cfg.get("kpx", 0.5)), lambda: a.I("s_setprio 0"))
    for i, t in enumerate(A0 + B0 + A1 + B1):
        for f in ins.get(i, []):
            f()
        if t.startswith("ds_"):
            if not cfg.get("kx_nowrites"):
                q.op(t)
        else:
            a.I(t)
    if cfg.get("kstamps"):
        stamp(a, 13)
    if cfg.get("kbar", 0) & 2:
        a.I("s_barrier")
    for s_ in range(8):
        read("B", s_)()
    rest = [j for j in range(4) if j not in early]

    def final(with_t):
        steps = tbuild(rest) if (with_t and not cfg.get("nou")) else []
        per = -(-len(steps) // 9) if steps else 0
        k = 0
        for s_ in range(8):
            for f in steps[k:k + per]:
                f()
            k += per
            mfma(s_, False)()
        for f in steps[k:]:
            f()

    def only_t():
        for n_, f in enumerate([] if cfg.get("nou") else tbuild(rest)):
            if n_ == cfg.get("tprio", 14):
                a.I("s_setprio %d" % (1 if cfg.get("xprio") else 3))
            f()
    return q, final, only_t


def gen_A(a):
    a.label("L_A")
    a.I("s_lshl_b32 s3, s%d, 9" % sC)
    a.I("s_lshl_b32 s%d, s%d, 8" % (sT0, sHB))
    a.I("s_add_u32 s3, s3, s%d" % sT0)
    a.I("v_lshl_add_u32 v4, v1, 2, s3")
    a.I("s_lshl_b32 s%d, s%d, 7" % (sT0, sSUB))
    a.I("s_lshl_b32 s%d, s%d, 4" % (sT1, sW))
    a.I("s_add_u32 s%d, s%d, s%d" % (sT0, sT0, sT1))
    a.I("s_mul_i32 s%d, s%d, 896" % (sT0, sT0))
    a.I("s_lshl_b32 s%d, s%d, 7" % (sT1, sX))
    a.I("s_add_u32 s%d, s%d, s%d" % (sT0, sT0, sT1))
    a.I("v_and_b32 v5, 15, v1")
    a.I("v_mul_u32_u24 v5, 896, v5")
    a.I("v_add_u32 v5, s%d, v5" % sT0)
    a.I("s_lshr_b32 s3, s%d, 1" % sC)
    a.I("s_lshl_b32 s3, s3, 2")
    a.I("s_waitcnt lgkmcnt(0)")
    for i, p in enumerate((LAR, AIM, CR, CI)):
        a.I("global_load_dword v%d, v4, %s %s" % (vP + i, sp(p), cfg["nt_in"]))
    a.I("s_load_dword s%d, %s, s3" % (sT2, sp(LDT)))
    a.I("s_load_dword s%d, %s, s3" % (sT3, sp(DSK)))
    if cfg.get("upf_late"):
        a.I("v_mov_b32 v%d, v5" % vUPF)
    else:
        a.I("global_load_dword v%d, v5, %s %s" % (vDUMMY, sp(U), cfg["nt_pf"]))
    stamp(a, 0)
    srd(a, SRD_IN, U, IN_BYTES)
    srd(a, SRD_OUT, OUT, OUT_BYTES)
    for j in range(4):
        a.I("s_mov_b32 s%d, %d" % (sSO + j, j * 64 * 896))
    a.I("s_lshl_b32 s3, s%d, 3" % sGRP)
    a.I("s_mul_i32 s%d, s%d, %d" % (sT0, sW, 256 * 896))
    a.I("s_add_u32 s3, s3, s%d" % sT0)
    a.I("v_mul_u32_u24 v%d, %d, v1" % (vOFFU, 3584 if cfg.get("tperm") else 896))
    a.I("v_add_u32 v%d, s3, v%d" % (vOFFU, vOFFU))
    a.I("s_mov_b32 s%d, 0x05040100" % sPL)
    a.I("s_mov_b32 s%d, 0x07060302" % sPH)
    a.I("v_add_u32 v7, %d, v%d" % (-2688, vOFFU))
    a.I("s_mov_b32 s%d, 0x3fb8aa3b" % sLHI)
    a.I("s_mov_b32 s%d, 0x32a57060" % sLLO)
    a.I("s_mov_b32 s%d, 0x3f317218" % sLN2)
    a.I("s_mov_b32 s%d, 0x41000000" % s8)
    a.I("s_mov_b32 s%d, 0x43800000" % s256)
    a.I("s_mov_b32 s%d, 0" % sHM)
    a.I("s_mov_b32 s%d, -1" % (sHM + 1))
    a.I("s_mov_b32 s%d, 0xaaaaaaaa" % sODD)
    a.I("s_mov_b32 s%d, 0xaaaaaaaa" % (sODD + 1))
    a.I("s_lshl_b32 s3, s%d, 8" % sW)
    a.I("s_mov_b32 m0, s3")
    a.I("v_and_b32 v2, 31, v1")
    a.I("v_mul_u32_u24 v3, %d, v2" % ROWB)
    a.I("v_lshrrev_b32 v4, 5, v1")
    a.I("v_lshl_add_u32 v4, v4, 4, s3")
    a.I("v_add_u32 v%d, v3, v4" % vAA)
    a.I("v_mov_b32 v5, %d" % (32 * ROWB))
    a.I("v_sub_u32 v3, v5, v3")
    a.I("v_add_u32 v%d, v3, v4" % vAB_)
    a.I("v_lshl_add_u32 v2, v1, 2, s3")
    a.I("v_add_u32 v2, v5, v2")
    a.I("v_mov_b32 v%d, 0x3f80" % vO)
    a.I("ds_write_b32 v2, v%d" % vO)
    zero_quad(a, vZQ)
    zero_counters(a, vZQ, 2)
    zero_T_pads(a, vZQ, 2, 3)
    if cfg.get("upf_late") == 1:
        a.I("global_load_dword v%d, v%d, %s %s" % (vDUMMY, vUPF, sp(U), cfg["nt_pf"]))
    napf = 0
    if cfg.get("apf"):
        a.I("s_lshl_b32 s3, s%d, 14" % sGRP)
        a.I("s_lshl_b32 s%d, s%d, 11" % (sT0, sW))
        a.I("s_add_u32 s3, s3, s%d" % sT0)
        a.I("v_and_b32 v63, 15, v1")
        a.I("v_lshl_add_u32 v63, v63, 7, s3")
        if cfg["apf"] & 1:
            a.I("global_load_dword v%d, v63, %s %s" % (vDUMMY, sp(WS), cfg["nt_pf"]))
            napf += 1
        if cfg["apf"] & 2:
            a.I("global_load_dword v%d, v63, %s %s" % (vDUMMY, sp(SSK), cfg["nt_pf"]))
            napf += 1
    a.I("s_mul_i32 s3, s%d, %d" % (sW, RAWS))
    a.I("s_add_u32 s3, s3, %d" % RAW_OFF)
    a.I("v_lshl_add_u32 v%d, v1, 3, s3" % vUR)
    a.I("v_and_b32 v2, 3, v1")
    a.I("v_bfe_u32 v3, v1, 2, 2")
    a.I("v_lshrrev_b32 v62, 4, v1")
    a.I("v_lshl_add_u32 v%d, v2, 2, v3" % vUW)
    a.I("v_lshl_add_u32 v%d, v62, 4, v%d" % (vUW, vUW))
    a.I("v_lshl_add_u32 v%d, v%d, 3, s3" % (vUW, vUW))
    a.I("v_lshl_add_u32 v3, v62, 2, v3")
    a.I("v_mul_u32_u24 v2, %d, v2" % TS)
    a.I("v_lshl_add_u32 v2, v3, 3, v2")
    a.I("s_lshl_b32 s3, s%d, 9" % sW)
    a.I("s_add_u32 s3, s3, %d" % (T_OFF + 32))
    a.I("v_add_u32 v%d, s3, v2" % vUT)
    if cfg.get("tperm"):
        a.I("v_lshl_add_u32 v%d, v1, 3, s3" % vUT)
    a.I("s_mul_i32 s3, s%d, %d" % (sCH, RS))
    a.I("s_add_u32 s3, s3, %d" % (R_OFF + 4080 - 2 * 1792 + 1024))
    a.I("v_lshlrev_b32 v2, 4, v1")
    a.I("v_sub_u32 v%d, s3, v2" % vE0)
    a.I("v_and_b32 v2, 31, v1")
    a.I("v_lshlrev_b32 v2, 4, v2")
    a.I("v_lshrrev_b32 v3, 5, v1")
    a.I("v_lshl_add_u32 v2, v3, 3, v2")
    a.I("s_add_u32 s3, s3, %d" % (2 * 1792 + 8 - 1024))
    a.I("v_sub_u32 v%d, s3, v2" % vE1)
    a.I("s_mul_i32 s3, s%d, 3072" % sCH)
    a.I("s_add_u32 s3, s3, %d" % RED_OFF)
    a.I("v_lshl_add_u32 v%d, v1, 4, s3" % vE3)
    conv_addr(a, tmp=(2, 3, 62, 63))
    a.I("s_and_b32 s3, s%d, 1" % sC)
    a.I("s_lshl_b32 s3, s3, 4")
    a.I("s_waitcnt lgkmcnt(0)")
    a.I("s_lshr_b32 s%d, s%d, s3" % (sT2, sT2))
    a.I("s_lshl_b32 s%d, s%d, 16" % (sT2, sT2))
    a.I("s_lshr_b32 s%d, s%d, s3" % (sT3, sT3))
    a.I("s_lshl_b32 s%d, s%d, 16" % (sT3, sT3))
    a.I("v_cmp_eq_u32 vcc, 0, v1")
    a.I("v_mov_b32 v%d, s%d" % (vE2, sT3))
    a.I("v_cndmask_b32 v%d, 0, v%d, vcc" % (vE2, vE2))
    a.I("v_mov_b32 v%d, s%d" % (vTMP + 2, sT2))
    exp_bf16(a, vTMP + 5, vTMP + 2, vTMP + 3, vTMP + 4)
    a.I("v_mul_f32 v%d, 0xbfb8aa3b, v%d" % (vAB, vTMP + 5))
    a.I("v_mul_f32 v%d, 0.15915494, v%d" % (vAB + 1, vTMP + 5))
    a.I("v_add_f32 v%d, v%d, v%d" % (v2DT, vTMP + 5, vTMP + 5))
    a.I("s_waitcnt vmcnt(%d)" % ((0 if cfg.get("upf_late") == 2 else 1) + napf))
    stamp(a, 1)
    if cfg.get("upf_late") == 2:
        a.I("global_load_dword v%d, v%d, %s %s" % (vDUMMY, vUPF, sp(U), cfg["nt_pf"]))
    q, final, only_t = gen_kgen_stream(a)
    a.I("s_cmp_eq_u32 s%d, 0" % sHB)
    a.I("s_cbranch_scc1 L_A_lo")
    saved = (q.n, q.done)
    split = cfg.get("tsplit", 1)
    final(not split)
    stamp(a, 2)
    for k in range(3):
        q.op("ds_write_b128 v%d, %s offset:%d" % (vE3, v4(vACC + 4 * k), 1024 * k))
    q.drain()
    a.I("s_barrier")
    stamp(a, 3)
    if split:
        only_t()
    a.I("s_lshl_b32 s3, s%d, 2" % sCH)
    a.I("s_add_u32 s3, s3, %d" % GATE_OFF)
    a.I("v_mov_b32 v2, s3")
    a.I("v_mov_b32 v3, 1")
    a.I("s_mov_b64 exec, 1")
    a.I("ds_write_b32 v2, v3")
    a.I("s_mov_b64 exec, -1")
    stamp(a, 4)
    if cfg["dump"]:
        a.I("s_barrier")
        dump_lds(a)
    a.I("s_branch L_HELP")
    a.label("L_A_lo")
    q.n, q.done = saved
    final(True)
    stamp(a, 2)
    if cfg.get("xprio"):
        a.I("s_setprio 2")
    a.I("s_waitcnt lgkmcnt(0)")
    a.I("s_barrier")
    stamp(a, 3)
    P = vOP
    for k in range(3):
        a.I("ds_read_b128 %s, v%d offset:%d" % (v4(P + 4 * k), vE3, 1024 * k))
    npre = 0
    if cfg.get("hoist"):
        for t in conv_pre_ops("A" if cfg.get("A") else ""):
            a.I(t)
            npre += 1
    zero_R_pad(a, vZQ, 3)
    A_ = vACC
    a.I("v_add_f32 v%d, v%d, v%d" % (A_, A_, vE2))
    for k in range(3):
        a.I("s_waitcnt lgkmcnt(%d)" % min(15, 3 - k + npre))
        for h in range(2):
            r = 4 * k + 2 * h
            a.I("v_pk_add_f32 %s, %s, %s" % (vp(A_ + r), vp(A_ + r), vp(P + r)))
    N4, N8, N10, N11 = vOP + 12, vOP + 13, vOP + 14, vOP + 15
    X = vOP + 16
    O = vOP + 24
    dpp = "row_mask:0xf bank_mask:0xf"
    a.I("v_cvt_pk_bf16_f32 v%d, v%d, v%d" % (O, A_ + 3, A_ + 2))
    a.I("v_cvt_pk_bf16_f32 v%d, v%d, v%d" % (O + 1, A_ + 1, A_ + 0))
    a.I("ds_write_b64 v%d, %s" % (vE1, vp(O)))
    a.I("v_mov_b32_dpp v%d, v%d wave_rol:1 %s" % (N4, A_ + 8, dpp))
    a.I("v_mov_b32_dpp v%d, v%d wave_rol:1 %s" % (N8, A_ + 10, dpp))
    a.I("v_mov_b32_dpp v%d, v%d wave_rol:1 %s" % (N10, A_ + 11, dpp))
    a.I("v_mov_b32_dpp v%d, v%d wave_rol:1 %s" % (N11, A_ + 11, dpp))
    a.I("v_mov_b32_dpp v%d, v%d wave_shl:1 %s" % (N4, A_ + 4, dpp))
    a.I("v_mov_b32_dpp v%d, v%d wave_shl:1 %s" % (N8, A_ + 8, dpp))
    a.I("v_mov_b32_dpp v%d, v%d wave_shl:1 %s" % (N10, A_ + 10, dpp))
    hm, od = sp(sHM), sp(sODD)
    a.I("v_cndmask_b32 v%d, v%d, v%d, %s" % (X + 0, A_ + 7, N4, hm))
    a.I("v_cndmask_b32 v%d, v%d, v%d, %s" % (X + 1, A_ + 6, A_ + 5, hm))
    a.I("v_cndmask_b32 v%d, v%d, v%d, %s" % (X + 2, A_ + 5, A_ + 4, hm))
    a.I("v_cvt_pk_bf16_f32 v%d, v%d, v%d" % (O + 4, N4, X + 0))
    a.I("v_cvt_pk_bf16_f32 v%d, v%d, v%d" % (O + 5, X + 1, X + 1))
    a.I("v_cvt_pk_bf16_f32 v%d, v%d, v%d" % (O + 6, X + 1, X + 2))
    a.I("v_cvt_pk_bf16_f32 v%d, v%d, v%d" % (O + 7, A_ + 4, A_ + 4))
    a.I("ds_write_b128 v%d, %s offset:%d" % (vE0, v4(O + 4), 2 * (1280 - 256)))
    a.I("v_cndmask_b32 v%d, v%d, v%d, %s" % (X + 3, A_ + 9, N8, hm))
    a.I("v_cndmask_b32 v%d, v%d, v%d, %s" % (X + 4, A_ + 8, N8, od))
    a.I("v_cndmask_b32 v%d, v%d, v%d, %s" % (X + 4, A_ + 9, X + 4, hm))
    a.I("v_cndmask_b32 v%d, v%d, v%d, %s" % (X + 5, A_ + 9, A_ + 8, hm))
    a.I("v_cvt_pk_bf16_f32 v%d, v%d, v%d" % (O + 8, N8, N8))
    a.I("v_cvt_pk_bf16_f32 v%d, v%d, v%d" % (O + 9, X + 3, X + 4))
    a.I("v_cvt_pk_bf16_f32 v%d, v%d, v%d" % (O + 10, X + 5, A_ + 8))
    a.I("v_cvt_pk_bf16_f32 v%d, v%d, v%d" % (O + 11, A_ + 8, A_ + 8))
    a.I("ds_write_b128 v%d, %s offset:%d" % (vE0, v4(O + 8), 2 * (1280 - 768)))
    for (src, nx, o, base) in ((A_ + 10, N10, O + 12, 1280), (A_ + 11, N11, O + 16, 1792)):
        a.I("v_cndmask_b32 v%d, v%d, v%d, %s" % (X + 6, src, nx, od))
        a.I("v_cvt_pk_bf16_f32 v%d, v%d, v%d" % (o, nx, nx))
        a.I("v_cvt_pk_bf16_f32 v%d, v%d, v%d" % (o + 1, nx, X + 6))
        a.I("v_cvt_pk_bf16_f32 v%d, v%d, v%d" % (o + 2, src, src))
        a.I("v_cvt_pk_bf16_f32 v%d, v%d, v%d" % (o + 3, src, src))
        if base == 1792:
            a.I("v_add_u32 v7, -1024, v%d" % vE0)
            a.I("s_mov_b32 exec_hi, 0")
            a.I("ds_write_b128 v7, %s" % v4(o))
        else:
            a.I("ds_write_b128 v%d, %s" % (vE0, v4(o)))
    a.I("s_mov_b32 exec_hi, -1")
    stamp(a, 4)
    if cfg["dump"]:
        a.I("s_waitcnt lgkmcnt(0)")
        a.I("s_barrier")
        dump_lds(a)
    a.I("s_branch L_CONV" + ("A" if cfg.get("A") else ""))


vCA, vCB, vCY, vCF, vONE, vGATE, vTHR = 25, 26, 27, 28, 29, 30, 31
ACC = 32
POOL0 = 64
NPOOL = 47
vCV = 4


def conv_addr(a, tmp=(2, 3, 4, 5)):
    a2, a3, a4, a5 = tmp
    a.I("v_and_b32 v{a2}, 15, v1".format(a2=a2, a3=a3, a4=a4, a5=a5))
    a.I("v_lshrrev_b32 v{a3}, 4, v1".format(a2=a2, a3=a3, a4=a4, a5=a5))
    a.I("v_sub_u32 v{a4}, 15, v{a2}".format(a2=a2, a3=a3, a4=a4, a5=a5))
    a.I("v_and_b32 v{a5}, 3, v{a4}".format(a2=a2, a3=a3, a4=a4, a5=a5))
    a.I("v_mul_u32_u24 v{a5}, %d, v{a5}".format(a2=a2, a3=a3, a4=a4, a5=a5) % CS)
    a.I("v_lshrrev_b32 v{a4}, 2, v{a4}".format(a2=a2, a3=a3, a4=a4, a5=a5))
    a.I("v_lshlrev_b32 v{a4}, 3, v{a4}".format(a2=a2, a3=a3, a4=a4, a5=a5))
    a.I("v_sub_u32 v{a5}, v{a5}, v{a4}".format(a2=a2, a3=a3, a4=a4, a5=a5))
    a.I("v_lshl_add_u32 v{a5}, v{a3}, 4, v{a5}".format(a2=a2, a3=a3, a4=a4, a5=a5))
    a.I("s_mul_i32 s3, s%d, %d".format(a2=a2, a3=a3, a4=a4, a5=a5) % (sCH, TS))
    a.I("s_add_u32 s3, s3, %d".format(a2=a2, a3=a3, a4=a4, a5=a5) % (T_OFF + 32))
    a.I("v_add_u32 v%d, s3, v{a5}".format(a2=a2, a3=a3, a4=a4, a5=a5) % vCA)
    a.I("v_lshlrev_b32 v{a4}, 5, v{a2}".format(a2=a2, a3=a3, a4=a4, a5=a5))
    a.I("v_lshlrev_b32 v{a5}, 4, v{a3}".format(a2=a2, a3=a3, a4=a4, a5=a5))
    a.I("v_sub_u32 v{a5}, v{a5}, v{a4}".format(a2=a2, a3=a3, a4=a4, a5=a5))
    a.I("s_mul_i32 s3, s%d, %d".format(a2=a2, a3=a3, a4=a4, a5=a5) % (sCH, RS))
    a.I("s_add_u32 s3, s3, %d".format(a2=a2, a3=a3, a4=a4, a5=a5) % (R_OFF + 480))
    a.I("v_add_u32 v%d, s3, v{a5}".format(a2=a2, a3=a3, a4=a4, a5=a5) % vCB)
    a.I("v_mul_u32_u24 v{a5}, 144, v{a3}".format(a2=a2, a3=a3, a4=a4, a5=a5))
    a.I("v_lshl_add_u32 v{a5}, v{a2}, 3, v{a5}".format(a2=a2, a3=a3, a4=a4, a5=a5))
    a.I("s_mul_i32 s3, s%d, %d".format(a2=a2, a3=a3, a4=a4, a5=a5) % (sCH, YS))
    a.I("s_add_u32 s3, s3, %d".format(a2=a2, a3=a3, a4=a4, a5=a5) % Y_OFF)
    a.I("v_add_u32 v%d, s3, v{a5}".format(a2=a2, a3=a3, a4=a4, a5=a5) % vCY)
    a.I("s_lshl_b32 s3, s%d, 2".format(a2=a2, a3=a3, a4=a4, a5=a5) % sCH)
    a.I("s_add_u32 s3, s3, %d".format(a2=a2, a3=a3, a4=a4, a5=a5) % CNT_OFF)
    a.I("v_mov_b32 v%d, s3".format(a2=a2, a3=a3, a4=a4, a5=a5) % vCF)
    a.I("v_mov_b32 v%d, 1".format(a2=a2, a3=a3, a4=a4, a5=a5) % vONE)
    a.I("v_and_b32 v{a2}, 3, v1".format(a2=a2, a3=a3, a4=a4, a5=a5))
    a.I("v_lshlrev_b32 v{a2}, 2, v{a2}".format(a2=a2, a3=a3, a4=a4, a5=a5))
    a.I("v_add_u32 v%d, %d, v{a2}".format(a2=a2, a3=a3, a4=a4, a5=a5) % (vGATE, GATE_OFF))
    a.I("s_xor_b32 s3, s%d, 1" % sISB)
    a.I("v_mov_b32 v%d, s3" % vTHR)


def conv_order():
    merge = cfg["merge"]
    order = []
    for ph, (tlo, thi, dlo, dhi) in enumerate(cfg["phases"]):
        mg = merge[ph]
        top = thi - 1
        rhos = list(range(8))
        if cfg.get("reuse") and ph & 1:
            rhos.reverse()
        for rho in rhos[:8 - mg]:
            order += [(ph, rho, i, d) for i in range(top + 1) for d in range(dhi - 1, dlo - 1, -1) if tlo <= i + d < thi]
        for t in range(tlo, thi):
            for rho in rhos[8 - mg:]:
                order += [(ph, rho, t - d, d) for d in range(min(dhi - 1, t), dlo - 1, -1)]
    assert len(order) == 288 and len(set((r, i, d) for _, r, i, d in order)) == 288
    return order


def hgroups():
    return cfg.get("hgroups") or [[t] for t in range(8)]


def conv_pre_ops(sfx=""):
    return cfg["_pre" + sfx]


class With:
    def __enter__(self):
        self.old = dict(cfg)
        cfg.update(cfg.get("A") or {})

    def __exit__(self, *e):
        keep = {k: v for k, v in cfg.items() if k.startswith("_")}
        cfg.clear()
        cfg.update(self.old)
        cfg.update(keep)


def gen_conv(a, sfx=""):
    a.label("L_CONV" + sfx)
    if cfg.get("twice"):
        a.I("s_mov_b32 s%d, 0" % sT4)
        a.label("L_CONV2")
    a.I("s_setprio %d" % cfg.get("prio", 0))
    q = LdsQueue(a)
    lag, margin, look = cfg["lag"], cfg["margin"], cfg["look"]
    order = conv_order()
    N = len(order)
    first, last = {}, {}
    seq = []
    if cfg.get("reuse"):
        lastrho = {ph: rho for (ph, rho, i, d) in order}
        used = set((ph, k_, rho, x) for (ph, rho, i, d) in order for k_, x in (("A", i), ("B", d)))

        def key(ph, k_, rho, x):
            if ph > 0 and rho == lastrho[ph - 1] and (ph - 1, k_, rho, x) in used:
                return key(ph - 1, k_, rho, x)
            return (ph, k_, rho, x)
    else:
        def key(ph, k_, rho, x):
            return (ph, k_, rho, x)
    for g, (ph, rho, i, d) in enumerate(order):
        for o in (key(ph, "A", rho, i), key(ph, "B", rho, d)):
            if o not in first:
                first[o] = g
                seq.append(o)
            last[o] = g
    tile_last = {}
    for g, (ph, rho, i, d) in enumerate(order):
        tile_last[i + d] = g
    loads = []
    for o in seq:
        n = 2 if o[1] == "A" else 1
        for h in range(n):
            loads.append((o, h, h == n - 1))
    npool = cfg.get("npool", NPOOL)
    free = list(range(npool - 1, -1, -1))
    quad, loaded = {}, {}
    st = {"lp": 0, "dbl": 0, "maxlive": 0}

    def can_load():
        if st["lp"] >= len(loads):
            return False
        o, h, _ = loads[st["lp"]]
        return h > 0 or len(free) > 0

    def do_load():
        if gate_ops():
            return
        o, h, lastp = loads[st["lp"]]
        st["lp"] += 1
        if h == 0:
            quad[o] = POOL0 + 4 * free.pop(0)
            st["maxlive"] = max(st["maxlive"], npool - len(free))
        r = quad[o]
        ph, kind, rho, idx = o
        if kind == "A":
            t = "ds_read_b64 %s, v%d offset:%d" % (vp(r + 2 * h), vCA, 64 * rho + 512 * idx + 8 * h)
        else:
            t = "ds_read_b128 %s, v%d offset:%d" % (v4(r), vCB, 64 * rho + 512 * (7 - idx))
        if cfg.get("noloads") and st["lp"] > 40:
            ix = 0
        else:
            ix = q.op(t)
        if lastp:
            loaded[o] = ix

    gate_at = min(k for k, (o, h, _) in enumerate(loads) if o[1] == "A" and o[3] >= 4)
    gate_pre = max(0, gate_at - 8)
    gst = {}

    def gate_ops():
        nonlocal gate_at, gate_pre
        if not cfg.get("gate"):
            return False
        if st["lp"] == gate_pre and "rd" not in gst:
            gst["rd"] = q.op("ds_read_b32 v12, v%d" % vGATE)
            return True
        if st["lp"] == gate_at and "ok" not in gst:
            gst["ok"] = 1
            q.wait_for(gst["rd"])
            a.I("v_cmp_lt_u32 vcc, v12, v%d" % vTHR)
            a.I("s_nop 1")
            a.I("s_cbranch_vccz L_gate_ok" + sfx)
            a.label("L_gate_spin" + sfx)
            a.I("s_sleep 1")
            a.I("ds_read_b32 v12, v%d" % vGATE)
            a.I("s_waitcnt lgkmcnt(0)")
            a.I("v_cmp_lt_u32 vcc, v12, v%d" % vTHR)
            a.I("s_nop 1")
            a.I("s_cbranch_vccnz L_gate_spin" + sfx)
            a.label("L_gate_ok" + sfx)
            stamp(a, 8)
        return False

    def next_first():
        return first[loads[st["lp"]][0]] if st["lp"] < len(loads) else 1 << 30

    extras = []
    quiet = {}
    for n_, t in enumerate(sorted(tile_last, key=lambda t: tile_last[t])):
        r = vCV + 2 * (n_ % 4)
        g0 = tile_last[t] + 4

        def f1(t=t, r=r):
            a.I("v_cvt_pk_bf16_f32 v%d, v%d, v%d" % (r, ACC + 4 * t, ACC + 4 * t + 1))
            a.I("v_cvt_pk_bf16_f32 v%d, v%d, v%d" % (r + 1, ACC + 4 * t + 2, ACC + 4 * t + 3))

        def f2(t=t, r=r):
            q.op("ds_write_b64 v%d, %s offset:%d" % (vCY, vp(r), 576 * t))

        def f3(t=t):
            a.I("s_mov_b64 exec, 1")
            q.op("ds_add_u32 v%d, v%d" % (vCF, vONE))
            a.I("s_mov_b64 exec, -1")
            if t == cfg["p1"] - 1:
                quiet["from"] = st["g"] + 1
        extras += [(g0, f1), (g0 + 1, f2)]
        if any(t == grp[-1] for grp in hgroups()):
            extras += [(g0 + 2, f3)]
    if cfg.get("hoist"):
        pre = [k for k, (o, h, _) in enumerate(loads) if o[1] == "A" and o[3] < 4 and first[o] <= cfg.get("pre", 2)]
        txt = []
        for k in pre:
            o, h, lastp = loads[k]
            if h == 0:
                quad[o] = POOL0 + 4 * free.pop(0)
            txt.append("ds_read_b64 %s, v%d offset:%d" % (vp(quad[o] + 2 * h), vCA, 64 * o[2] + 512 * o[3] + 8 * h))
            loaded[o] = -1
        assert txt == cfg.get("_pre" + sfx, txt)
        cfg["_pre" + sfx] = txt
        loads[:] = [l for k, l in enumerate(loads) if k not in pre]
        gate_at = min(k for k, (o, h, _) in enumerate(loads) if o[1] == "A" and o[3] >= 4)
        gate_pre = max(0, gate_at - 8)
    while next_first() <= cfg.get("pre", 2):
        do_load()
    started = set()
    for g, (ph, rho, i, d) in enumerate(order):
        oa, ob = key(ph, "A", rho, i), key(ph, "B", rho, d)
        st["g"] = g
        assert oa in loaded and ob in loaded, (g, oa, ob)
        q.wait_for(max(loaded[oa], loaded[ob]), lag)
        t = i + d
        acc = ACC + 4 * t
        c = v4(acc) if t in started else "0"
        started.add(t)
        a.I("v_mfma_f32_16x16x32_bf16 %s, %s, %s, %s" % (v4(acc), v4(quad[oa]), v4(quad[ob]), c))
        for o in (oa, ob):
            if last[o] == g:
                free.append((quad[o] - POOL0) // 4)
        n = 0
        if quiet.get("from") is not None and quiet["from"] <= g < quiet["from"] + cfg.get("quiet", 0) and next_first() - g > 1:
            continue
        urgent = can_load() and next_first() - g <= margin
        if extras and extras[0][0] <= g and (not urgent or g - extras[0][0] >= cfg.get("xwait", 0)):
            extras.pop(0)[1]()
            n = 1
        elif can_load() and next_first() - g <= look:
            do_load()
            n = 1
        while can_load() and next_first() - g <= min(margin, cfg.get("hard", 4)):
            do_load()
            n += 1
        if n > 1:
            st["dbl"] += n - 1
            st.setdefault("where", []).append(g)
        if g == tile_last[cfg["p1"] - 1] + 8 and not cfg.get("twice"):
            stamp(a, 5)
    for _, f in extras:
        f()
    print("conv: loads", len(loads), "doubled", st["dbl"], "max live quads", st["maxlive"], "left extras", len(extras), st.get("where"))
    if cfg.get("twice"):
        a.I("s_cmp_eq_u32 s%d, 1" % sT4)
        a.I("s_cbranch_scc1 L_CONV3")
        a.I("s_mov_b32 s%d, 1" % sT4)
        stamp(a, 5)
        a.I("s_branch L_CONV2")
        a.label("L_CONV3")
    stamp(a, 6)
    stamp_flush(a)
    a.I("s_endpgm")


vHQ = 168
sQO, sOO = 64, 8
vHY = 32
vHT = 48
vHQU = 184
vHR, vHO, vHI, vHC = 4, 5, 6, 7


def help_rows(a):
    a.I("s_lshl_b32 s3, s%d, 6" % sCH)
    a.I("v_add_u32 v2, s3, v1")
    a.I("s_lshl_b32 s3, s%d, 3" % sGRP)
    a.I("v_mul_u32_u24 v%d, 896, v2" % vHI)
    a.I("v_add_u32 v%d, s3, v%d" % (vHI, vHI))
    a.I("s_mul_i32 s%d, s%d, 896" % (sT0, sISB))
    a.I("s_add_u32 s3, s3, s%d" % sT0)
    a.I("v_mul_u32_u24 v%d, 1792, v2" % vHO)
    a.I("v_add_u32 v%d, s3, v%d" % (vHO, vHO))
    for t in range(8):
        a.I("s_mov_b32 s%d, %d" % (sQO + t, t * 256 * 896))
        a.I("s_mov_b32 s%d, %d" % (sOO + t, t * 256 * 1792))


def help_qloads(a, lo, hi):
    if cfg.get("noq"):
        return
    for t in range(lo, hi):
        a.I("buffer_load_dwordx2 %s, v%d, %s, s%d offen" % (vp(vHQ + 2 * t), vHI, s4(SRD_IN), sQO + t) + (" sc1" if cfg.get("qreg") else ""))


def gen_help(a):
    a.label("L_HELP")
    help_rows(a)
    a.label("L_HELP2")
    if cfg.get("nohelp"):
        a.I("s_endpgm")
    if cfg.get("hprio", 0):
        a.I("s_setprio %d" % cfg["hprio"])
    a.I("v_bfe_u32 v2, v1, 2, 2")
    a.I("v_mul_u32_u24 v2, %d, v2" % YS)
    a.I("v_and_b32 v3, 3, v1")
    a.I("v_mul_u32_u24 v3, 144, v3")
    a.I("v_add_u32 v2, v2, v3")
    a.I("v_lshrrev_b32 v3, 4, v1")
    a.I("v_lshl_add_u32 v2, v3, 3, v2")
    a.I("s_lshl_b32 s3, s%d, 5" % sCH)
    a.I("s_add_u32 s3, s3, %d" % Y_OFF)
    a.I("v_add_u32 v%d, s3, v2" % vHR)
    a.I("v_and_b32 v2, 3, v1")
    a.I("v_lshlrev_b32 v2, 2, v2")
    a.I("v_add_u32 v%d, %d, v2" % (vHC, CNT_OFF))
    a.I("s_cmp_eq_u32 s%d, 0" % sISB)
    a.I("s_cbranch_scc1 L_HA")
    for isb in (1, 0):
        if not isb:
            a.label("L_HA")
            if cfg.get("A"):
                cfg.update(cfg["A"])
        nst = 0
        groups = hgroups()
        for gi, grp in enumerate(groups):
            lab = "L_hp%d_%d" % (isb, gi)
            if isb:
                for t in grp:
                    a.I("s_waitcnt vmcnt(%d)" % (7 - t + nst if not cfg.get("noq") else 63))
                    for h in range(2):
                        qq, T = vHQ + 2 * t + h, vHQU + 4 * t + 2 * h
                        a.I("v_lshlrev_b32 v%d, 16, v%d" % (T, qq))
                        a.I("v_and_b32 v%d, 0xffff0000, v%d" % (T + 1, qq))
            if cfg.get("hlong") and grp[0] in (0, cfg["p1"]):
                n_ = cfg["hlong"][2 * isb + (0 if grp[0] == 0 else 1)]
                while n_ > 0:
                    a.I("s_sleep %d" % min(n_, 127))
                    n_ -= 127
            a.label(lab)
            a.I("ds_read_b32 v8, v%d" % vHC)
            a.I("s_waitcnt lgkmcnt(0)")
            a.I("v_cmp_ge_u32 vcc, %d, v8" % gi)
            a.I("s_nop 1")
            a.I("s_cbranch_vccz %s_go" % lab)
            a.I("s_sleep %d" % (cfg["hsl"][gi] if cfg.get("hsl") else cfg.get("hsleep", 1)))
            a.I("s_branch %s" % lab)
            a.label(lab + "_go")
            for t in grp:
                a.I("ds_read_b64_tr_b16 %s, v%d offset:%d" % (vp(vHY + 2 * t), vHR, 576 * t))
            if cfg.get("hstamps"):
                stamp(a, 10 + 2 * grp[0])
            elif cfg["p1"] - 1 in grp:
                stamp(a, 5)
            elif 7 in grp:
                stamp(a, 6)
            for n_, t in enumerate(grp):
                a.I("s_waitcnt lgkmcnt(%d)" % (len(grp) - 1 - n_))
                if isb:
                    for h in range(2):
                        y, T, QU = vHY + 2 * t + h, vHT + 4 * (t & 1) + 2 * h, vHQU + 4 * t + 2 * h
                        a.I("v_lshlrev_b32 v%d, 16, v%d" % (T, y))
                        a.I("v_and_b32 v%d, 0xffff0000, v%d" % (T + 1, y))
                        a.I("v_mul_f32 v%d, v%d, v%d" % (T, T, QU))
                        a.I("v_mul_f32 v%d, v%d, v%d" % (T + 1, T + 1, QU + 1))
                        a.I("v_cvt_pk_bf16_f32 v%d, v%d, v%d" % (y, T, T + 1))
                a.I("buffer_store_dwordx2 %s, v%d, %s, s%d offen %s" % (vp(vHY + 2 * t), vHO, s4(SRD_OUT), sOO + t, cfg["nt_out"]))
                nst += 1
            if cfg.get("hstamps"):
                stamp(a, 11 + 2 * grp[-1])
            if cfg.get("wb") and gi == 0 and isb == cfg.get("wbb", 0):
                lab2 = "L_wb%d" % isb
                a.I("s_or_b32 s3, s%d, s%d" % (sSUB, sCH))
                a.I("s_cmp_lg_u32 s3, 0")
                a.I("s_cbranch_scc1 %s" % lab2)
                a.I("s_waitcnt vmcnt(0)")
                a.I("s_sleep %d" % cfg["wb"])
                a.I("buffer_wbl2 sc1")
                a.label(lab2)
        if cfg["stamps"]:
            a.I("s_waitcnt vmcnt(0)")
            stamp(a, 7)
            stamp_flush(a)
        a.I("s_endpgm")


sWR = 16
sWU = 72


def build_T_from_global(a, vS):
    dpp = "row_mask:0xf bank_mask:0xf"
    for p in range(2):
        a.I("v_mov_b32_dpp v%d, v%d wave_shr:1 %s" % (vS + p, vS + 4 + p, dpp))
        a.I("v_mov_b32_dpp v%d, v%d wave_ror:1 %s" % (vS + 6 + p, vS + 4 + p, dpp))
    for p in range(2):
        a.I("v_mov_b32_dpp v%d, v%d wave_shr:1 %s" % (vS + 6 + p, vS + 10 + p, dpp))
    a.I("s_cmp_eq_u32 s%d, 0" % sHB)
    a.I("s_cselect_b32 s%d, s%d, 0" % (sT3, sT3))
    a.I("v_cmp_eq_u32 vcc, 0, v1")
    a.I("v_mov_b32 v2, s%d" % sT3)
    a.I("v_cndmask_b32 v2, 0, v2, vcc")
    a.I("v_lshlrev_b32 v3, 16, v%d" % (vS + 2))
    a.I("v_add_f32 v3, v3, v2")
    a.I("v_cvt_pk_bf16_f32 v3, v3, v3")
    a.I("s_mov_b32 s3, 0xffff")
    a.I("v_bfi_b32 v%d, s3, v3, v%d" % (vS + 2, vS + 2))
    a.I("s_mul_i32 s3, s%d, %d" % (sCH, TS))
    a.I("s_lshl_b32 s%d, s%d, 11" % (sT0, sHB))
    a.I("s_add_u32 s3, s3, s%d" % sT0)
    a.I("s_add_u32 s3, s3, %d" % (T_OFF + 32))
    a.I("v_lshl_add_u32 v2, v1, 4, s3")
    W = vS + 12
    for u in range(2):
        d = lambda k: vS + 6 * u + 2 + k
        a.I("ds_write_b128 v2, %s offset:%d" % (v4(d(0)), 1024 * u))
        o = W + 12 * u
        for k in range(4):
            a.I("v_alignbit_b32 v%d, v%d, v%d, 16" % (o + k, d(k), d(k - 1)))
        a.I("ds_write_b128 v2, %s offset:%d" % (v4(o), CS + 1024 * u))
        for k in range(4):
            a.I("v_mov_b32 v%d, v%d" % (o + 4 + k, d(k - 1)))
        a.I("ds_write_b128 v2, %s offset:%d" % (v4(o + 4), 2 * CS + 1024 * u))
        for k in range(4):
            a.I("v_alignbit_b32 v%d, v%d, v%d, 16" % (o + 8 + k, d(k - 1), d(k - 2)))
        a.I("ds_write_b128 v2, %s offset:%d" % (v4(o + 8), 3 * CS + 1024 * u))


def load_T_global(a, vS):
    a.I("s_lshl_b32 s3, s%d, 12" % sC)
    a.I("s_add_u32 s%d, s%d, s3" % (SRD_SK, SSK))
    a.I("s_addc_u32 s%d, s%d, 0" % (SRD_SK + 1, SSK + 1))
    a.I("s_mov_b32 s%d, 4096" % (SRD_SK + 2))
    a.I("s_mov_b32 s%d, 0x20000" % (SRD_SK + 3))
    a.I("s_lshl_b32 s3, s%d, 11" % sHB)
    a.I("v_lshl_add_u32 v2, v1, 4, s3")
    a.I("v_add_u32 v3, -8, v2")
    a.I("buffer_load_dwordx4 %s, v2, %s, 0 offen %s" % (v4(vS + 2), s4(SRD_SK), cfg["nt_in"]))
    a.I("buffer_load_dwordx4 %s, v2, %s, 0 offen offset:1024 %s" % (v4(vS + 8), s4(SRD_SK), cfg["nt_in"]))
    a.I("s_mov_b32 exec_lo, 1")
    a.I("s_mov_b32 exec_hi, 0")
    a.I("buffer_load_dwordx2 %s, v3, %s, 0 offen %s" % (vp(vS), s4(SRD_SK), cfg["nt_in"]))
    a.I("s_mov_b64 exec, -1")


def unpack_weights_uniform(a):
    for c in range(4):
        p, e = c >> 1, c & 1
        for t in range(4):
            src = sWR + 2 * c + (t >> 1)
            dst = sWU + 8 * p + 2 * t + e
            if t & 1:
                a.I("s_and_b32 s%d, s%d, 0xffff0000" % (dst, src))
            else:
                a.I("s_lshl_b32 s%d, s%d, 16" % (dst, src))


def kv_compute(a, vK, vVv, vR):
    KU = 100
    VU = 116
    RES = 124
    O = 132
    for p in range(2):
        for r in range(7):
            a.I("v_lshlrev_b32 v%d, 16, v%d" % (KU + 2 * r, vK + 2 * r + p))
            a.I("v_and_b32 v%d, 0xffff0000, v%d" % (KU + 2 * r + 1, vK + 2 * r + p))
        for r in range(4):
            R_ = RES + 2 * r
            a.I("v_pk_mul_f32 %s, %s, %s" % (vp(R_), vp(KU + 2 * r), sp(sWU + 8 * p + 6)))
            for t in (2, 1, 0):
                a.I("v_pk_fma_f32 %s, %s, %s, %s" % (vp(R_), vp(KU + 2 * (r + 3 - t)), sp(sWU + 8 * p + 2 * t), vp(R_)))
        if p == 0:
            a.I("s_waitcnt vmcnt(%d)" % cfg.get("_vwait", 0))
        for r in range(4):
            a.I("v_lshlrev_b32 v%d, 16, v%d" % (VU + 2 * r, vVv + 2 * r + p))
            a.I("v_and_b32 v%d, 0xffff0000, v%d" % (VU + 2 * r + 1, vVv + 2 * r + p))
            a.I("v_pk_mul_f32 %s, %s, %s" % (vp(RES + 2 * r), vp(RES + 2 * r), vp(VU + 2 * r)))
        for e in range(2):
            o = O + 4 * p + 2 * e
            a.I("v_cvt_pk_bf16_f32 v%d, v%d, v%d" % (o, RES + 6 + e, RES + 4 + e))
            a.I("v_cvt_pk_bf16_f32 v%d, v%d, v%d" % (o + 1, RES + 2 + e, RES + e))
            a.I("ds_write_b64 v%d, %s offset:%d" % (vR, vp(o), (2 * p + e) * RS))


def kv_loads(a, vK, vVv, vO, vOH):
    a.I("s_mov_b64 s[%d:%d], exec" % (sT0, sT1))
    a.I("s_mov_b32 exec_lo, 1")
    a.I("s_mov_b32 exec_hi, 0")
    for j in range(3):
        a.I("buffer_load_dwordx2 %s, v%d, %s, 0 offen offset:%d" % (vp(vK + 2 * j), vOH, s4(SRD_K), 896 * j))
    a.I("s_mov_b64 exec, s[%d:%d]" % (sT0, sT1))
    for j in range(4):
        a.I("buffer_load_dwordx2 %s, v%d, %s, 0 offen offset:%d" % (vp(vK + 6 + 2 * j), vO, s4(SRD_K), 896 * j))
    for j in range(4):
        a.I("buffer_load_dwordx2 %s, v%d, %s, 0 offen offset:%d" % (vp(vVv + 2 * j), vO, s4(SRD_V), 896 * j))


def kv_halo(a, vK):
    for j in range(3):
        for p in range(2):
            a.I("v_mov_b32_dpp v%d, v%d wave_shr:1 row_mask:0xf bank_mask:0xf" % (vK + 2 * j + p, vK + 8 + 2 * j + p))


SHUF_OFF = 0
OKS_OFF = RAW_OFF + 17 * 1088
sXCC, sPOLL = 95, 93


STG_K = RAW_OFF
STG_V = Y_OFF + 4 * YS
assert STG_V + 16 * 1088 <= T_OFF and 8 * 2560 <= STG_V and OKS_OFF + 2048 <= CNT_OFF


def gen_B(a):
    a.label("L_B")
    vS = 64
    KK, VV, WR_, WP = 16, 28, 36, 40
    KU, VU, RES, G, IN = 100, 122, 126, 144, 152
    vTo, vTo2, vTh, vSW, vSR, vST, vIL, vRW, vPA, vPV = 48, 49, 50, 51, 52, 53, 54, 55, 60, 61
    SRD_W = 72
    s64K, s8K, s128K, sQB = 76, 77, 78, 79
    s4K, s12K = 80, 81

    def qe_signal():
        a.I("s_lshl_b32 s3, s%d, 2" % sCH)
        a.I("s_add_u32 s3, s3, %d" % GATE_OFF)
        a.I("v_mov_b32 v2, s3")
        a.I("v_mov_b32 v3, 1")
        a.I("s_mov_b64 exec, 1")
        a.I("ds_write_b32 v2, v3")
        a.I("s_mov_b64 exec, -1")
    QIN = 2097152
    pin = cfg["nt_in"]
    a.I("s_lshl_b32 s3, s%d, 7" % sSUB)
    a.I("s_lshl_b32 s%d, s%d, 4" % (sT0, sW))
    a.I("s_add_u32 s3, s3, s%d" % sT0)
    a.I("s_mul_i32 s3, s3, 896")
    a.I("s_lshl_b32 s%d, s%d, 7" % (sT0, sX))
    a.I("s_add_u32 s3, s3, s%d" % sT0)
    a.I("v_lshrrev_b32 v6, 3, v1")
    a.I("v_mul_u32_u24 v6, 896, v6")
    a.I("v_and_b32 v7, 7, v1")
    a.I("v_lshl_add_u32 v6, v7, 4, v6")
    a.I("v_add_u32 v%d, s3, v6" % vTo)
    a.I("v_add_u32 v%d, 7168, v%d" % (vTo2, vTo))
    a.I("v_add_u32 v%d, %d, v%d" % (vTh, -7168, vTo))
    qreg = cfg.get("qreg")
    if qreg:
        a.I("v_mov_b32 v12, v%d" % vTo)
        a.I("v_mov_b32 v13, v%d" % vTo2)
    a.I("s_mul_i32 s%d, s%d, 2176" % (sT4, sW))
    a.I("s_add_u32 s%d, s%d, %d" % (sT4, sT4, STG_K + 1088))
    a.I("v_lshrrev_b32 v3, 4, v1")
    a.I("v_and_b32 v2, 15, v1")
    a.I("s_and_b32 s%d, s%d, 1" % (sT0, sW))
    a.I("s_lshl_b32 s%d, s%d, 4" % (sT0, sT0))
    a.I("v_add_u32 v4, s%d, v2" % sT0)
    a.I("s_lshl_b32 s%d, s%d, 9" % (sT1, sX))
    a.I("v_lshl_add_u32 v5, v4, 4, s%d" % sT1)
    a.I("s_waitcnt lgkmcnt(0)")
    srd(a, SRD_K, K, IN_BYTES)
    srd(a, SRD_V, V, IN_BYTES)
    a.I("s_mov_b32 m0, s%d" % sT4)
    a.I("buffer_load_dwordx4 v%d, %s, 0 offen %s lds" % (vTo, s4(SRD_K), pin))
    a.I("s_sub_u32 m0, s%d, %d" % (sT4, STG_K + 1088 - STG_V))
    a.I("buffer_load_dwordx4 v%d, %s, 0 offen %s lds" % (vTo, s4(SRD_V), pin))
    a.I("s_add_u32 m0, s%d, 1088" % sT4)
    a.I("buffer_load_dwordx4 v%d, %s, 0 offen %s lds" % (vTo2, s4(SRD_K), pin))
    a.I("s_sub_u32 m0, s%d, %d" % (sT4, STG_K - STG_V))
    a.I("buffer_load_dwordx4 v%d, %s, 0 offen %s lds" % (vTo2, s4(SRD_V), pin))
    a.I("s_cmp_lg_u32 s%d, 0" % sW)
    a.I("s_cbranch_scc1 L_B_nh")
    a.I("s_mov_b32 m0, %d" % STG_K)
    a.I("s_mov_b32 exec_lo, 0")
    a.I("s_mov_b32 exec_hi, 0xffffff00")
    a.I("buffer_load_dwordx4 v%d, %s, 0 offen %s lds" % (vTh, s4(SRD_K), pin))
    a.I("s_mov_b64 exec, -1")
    a.label("L_B_nh")
    a.I("global_load_dwordx4 %s, v5, %s" % (v4(WR_), sp(SHK)))
    ssm_first = 0
    a.I("s_lshr_b32 s%d, s%d, 1" % (sT2, sW))
    a.I("s_lshl_b32 s3, s%d, 4" % sSUB)
    a.I("s_lshl_b32 s%d, s%d, 2" % (sT0, sT2))
    a.I("s_add_u32 s3, s3, s%d" % sT0)
    a.I("v_add_u32 v6, s%d, v3" % sT0)
    a.I("v_mul_u32_u24 v6, 1088, v6")
    a.I("v_lshl_add_u32 v6, v4, 2, v6")
    a.I("v_add_u32 v%d, %d, v6" % (vTo, STG_K))
    a.I("v_add_u32 v%d, %d, v6" % (vTo2, STG_V))
    a.I("s_lshr_b32 s%d, s%d, 1" % (sT0, sC))
    a.I("s_lshl_b32 s%d, s%d, 2" % (sT0, sT0))
    a.I("s_load_dword s%d, %s, s%d" % (sT3, sp(SSD), sT0))
    a.I("s_getreg_b32 s%d, hwreg(HW_REG_XCC_ID, 0, 4)" % sXCC)
    a.I("s_add_u32 s%d, s%d, 1" % (sXCC, sXCC))
    a.I("s_mul_i32 s%d, s%d, 2560" % (sT0, sW))
    a.I("s_add_u32 s%d, s%d, %d" % (sT0, sT0, SHUF_OFF))
    a.I("v_mul_u32_u24 v6, 160, v2")
    a.I("v_sub_u32 v7, 3, v3")
    a.I("v_lshl_add_u32 v6, v7, 4, v6")
    a.I("v_add_u32 v%d, s%d, v6" % (vSW, sT0))
    a.I("v_lshrrev_b32 v6, 2, v1")
    a.I("v_and_b32 v7, 3, v1")
    a.I("v_mul_u32_u24 v8, 80, v6")
    a.I("v_lshl_add_u32 v8, v7, 4, v8")
    a.I("v_add_u32 v%d, s%d, v8" % (vSR, sT0))
    a.I("s_sub_u32 s3, 252, s3")
    a.I("s_lshl_b32 s3, s3, 4")
    a.I("s_lshl_b32 s%d, s%d, 18" % (sT0, sX))
    a.I("s_add_u32 s3, s3, s%d" % sT0)
    a.I("s_and_b32 s%d, s%d, 1" % (sT0, sW))
    a.I("s_lshl_b32 s%d, s%d, 17" % (sT0, sT0))
    a.I("s_add_u32 s3, s3, s%d" % sT0)
    a.I("v_lshlrev_b32 v6, 12, v6")
    a.I("v_lshl_add_u32 v6, v7, 4, v6")
    a.I("v_add_u32 v%d, s3, v6" % vST)
    a.I("s_lshl_b32 s3, s%d, 14" % sGRP)
    a.I("v_lshl_add_u32 v%d, v0, 4, s3" % vIL)
    a.I("s_lshl_b32 s%d, s%d, 11" % (sT0, sW))
    a.I("s_add_u32 s3, s3, s%d" % sT0)
    a.I("v_lshl_add_u32 v9, v2, 7, s3")
    a.I("s_lshl_b32 s3, s%d, 5" % sX)
    a.I("v_mov_b32 v10, s3")
    a.I("s_lshl_b32 s%d, s%d, 7" % (sT0, sSUB))
    a.I("s_lshl_b32 s%d, s%d, 4" % (sT1, sW))
    a.I("s_add_u32 s%d, s%d, s%d" % (sT0, sT0, sT1))
    a.I("s_mul_i32 s%d, s%d, 896" % (sT0, sT0))
    a.I("s_lshl_b32 s%d, s%d, 7" % (sT1, sX))
    a.I("s_add_u32 s%d, s%d, s%d" % (sT0, sT0, sT1))
    a.I("v_mul_u32_u24 v11, 896, v2")
    a.I("v_add_u32 v11, s%d, v11" % sT0)
    late = cfg.get("late", 0)

    def late_group():
        n = 1
        if not cfg.get("noinpf") and not cfg.get("apf", 0) & 1:
            a.I("global_load_dword v%d, v9, %s %s" % (vDUMMY, sp(WS), cfg["nt_pf"]))
            n += 1
        a.I("global_load_dword v%d, v10, %s" % (vDUMMY, sp(DBG)))
        load_T_global(a, vS)
        n += 3
        if cfg.get("qpf", 0) == 0:
            a.I("global_load_dword v%d, v11, %s %s" % (vDUMMY, sp(Q), cfg["nt_pf"]))
            n += 1
        if qreg:
            a.I("s_mul_i32 s3, s%d, %d" % (sCH, TS))
            a.I("s_lshl_b32 s%d, s%d, 11" % (sT0, sHB))
            a.I("s_add_u32 s3, s3, s%d" % sT0)
            a.I("s_add_u32 s%d, s3, %d" % (sQB, T_OFF + 32))
            a.I("s_mov_b32 m0, s%d" % sQB)
            a.I("buffer_load_dwordx4 v12, %s, 0 offen %s lds" % (s4(SRD_IN), pin))
            a.I("s_add_u32 m0, s%d, %d" % (sQB, CS))
            a.I("buffer_load_dwordx4 v13, %s, 0 offen %s lds" % (s4(SRD_IN), pin))
            n += 2
        return n
    srd(a, SRD_IN, Q, IN_BYTES)
    nlate = 0
    if not late:
        if cfg.get("b0", 1) == 1:
            a.I("s_barrier")
        nlate = late_group()
    else:
        a.I("v_mov_b32 v62, v9")
        a.I("v_mov_b32 v63, v10")
    stamp(a, 0)
    srd(a, SRD_OUT, OUT, OUT_BYTES)
    srd(a, SRD_W, WS, QIN + IN_BYTES)
    a.I("s_mov_b32 s%d, 65536" % s64K)
    a.I("s_mov_b32 s%d, 8192" % s8K)
    a.I("s_mov_b32 s%d, 4096" % s4K)
    a.I("s_mov_b32 s%d, 12288" % s12K)
    if qreg:
        a.I("s_mov_b32 s%d, 131072" % s128K)
    zero_quad(a, 56)
    zero_counters(a, 56, 4)
    zero_T_pads(a, 56, 9, 10)
    a.I("v_and_b32 v2, 255, v0")
    a.I("v_lshlrev_b32 v2, 4, v2")
    a.I("s_mul_i32 s3, s%d, %d" % (sHB, RS))
    a.I("s_add_u32 s3, s3, %d" % R_OFF)
    a.I("v_add_u32 v%d, s3, v2" % vRW)
    a.I("s_lshl_b32 s3, s%d, 5" % sX)
    a.I("s_add_u32 s3, s3, 15")
    a.I("s_lshl_b32 s%d, s%d, 2" % (sT0, sCH))
    a.I("s_sub_u32 s3, s3, s%d" % sT0)
    a.I("v_lshrrev_b32 v3, 4, v1")
    a.I("v_sub_u32 v%d, s3, v3" % vPA)
    a.I("s_and_b32 s3, s%d, 1" % sC)
    a.I("s_lshl_b32 s3, s3, 4")
    a.I("s_waitcnt lgkmcnt(0)")
    a.I("s_lshr_b32 s%d, s%d, s3" % (sT3, sT3))
    a.I("s_lshl_b32 s%d, s%d, 16" % (sT3, sT3))
    def wunpack():
        a.I("v_lshlrev_b32 v%d, 16, v%d" % (WP + 0, WR_ + 0))
        a.I("v_lshlrev_b32 v%d, 16, v%d" % (WP + 1, WR_ + 2))
        a.I("v_and_b32 v%d, 0xffff0000, v%d" % (WP + 2, WR_ + 0))
        a.I("v_and_b32 v%d, 0xffff0000, v%d" % (WP + 3, WR_ + 2))
        a.I("v_lshlrev_b32 v%d, 16, v%d" % (WP + 4, WR_ + 1))
        a.I("v_lshlrev_b32 v%d, 16, v%d" % (WP + 5, WR_ + 3))
        a.I("v_and_b32 v%d, 0xffff0000, v%d" % (WP + 6, WR_ + 1))
        a.I("v_and_b32 v%d, 0xffff0000, v%d" % (WP + 7, WR_ + 3))
    if cfg.get("d16"):
        for r in list(range(KU, KU + 22)) + list(range(168, 184)):
            a.I("v_mov_b32 v%d, 0" % r)
        a.I("s_waitcnt vmcnt(%d)" % nlate)
        wunpack()
        a.I("s_barrier")
        stamp(a, 1)
        if late:
            a.I("v_mov_b32 v9, v62")
            a.I("v_mov_b32 v10, v63")
            late_group()
        q = LdsQueue(a)
        VU8 = 168
        items = []
        for j in range(4):
            items.append(("k", j))
        items.append(("v", 0))
        for r in range(1, 8):
            items += [("k", r + 3), ("v", r)]
        done = {}
        pos = [0]

        def issue(n):
            while n > 0 and pos[0] < len(items):
                kind, j = items[pos[0]]
                pos[0] += 1
                n -= 1
                for e in range(2):
                    if kind == "k":
                        off = 640 + 128 * j if j < 3 else 1088 + 128 * (j - 3)
                        ix = q.op("ds_read_u16_d16_hi v%d, v%d offset:%d" % (KU + 2 * j + e, vTo, off + 2 * e))
                    else:
                        ix = q.op("ds_read_u16_d16_hi v%d, v%d offset:%d" % (VU8 + 2 * j + e, vTo2, 128 * j + 2 * e))
                done[(kind, j)] = ix
        issue(7)
        for r in range(8):
            q.wait_for(max(done[("k", r + 3)], done[("v", r)]))
            R_ = RES + 2 * r
            a.I("v_pk_mul_f32 %s, %s, %s" % (vp(R_), vp(KU + 2 * r), vp(WP + 6)))
            issue(1)
            for t in (2, 1):
                a.I("v_pk_fma_f32 %s, %s, %s, %s" % (vp(R_), vp(KU + 2 * (r + 3 - t)), vp(WP + 2 * t), vp(R_)))
            issue(1)
            a.I("v_pk_fma_f32 %s, %s, %s, %s" % (vp(R_), vp(KU + 2 * (r + 3)), vp(WP), vp(R_)))
            a.I("v_pk_mul_f32 %s, %s, %s" % (vp(R_), vp(R_), vp(VU8 + 2 * r)))
            if r & 1:
                for e in range(2):
                    a.I("v_cvt_pk_bf16_f32 v%d, v%d, v%d" % (G + 4 * e + 3 - (r >> 1), R_ + e, R_ - 2 + e))
    else:
        a.I("s_waitcnt vmcnt(%d)" % nlate)
        a.I("s_barrier")
        stamp(a, 1)
        if late:
            a.I("v_mov_b32 v9, v62")
            a.I("v_mov_b32 v10, v63")
            late_group()
        q = LdsQueue(a)
        rd = {}
        for j in range(3):
            rd["h"] = q.op("ds_read_b32 v%d, v%d offset:%d" % (KK + j, vTo, 640 + 128 * j))
        for j in range(8):
            q.op("ds_read_b32 v%d, v%d offset:%d" % (KK + 3 + j, vTo, 1088 + 128 * j))
            rd[j] = q.op("ds_read_b32 v%d, v%d offset:%d" % (VV + j, vTo2, 128 * j))
            if j == 5:
                break
        a.I("v_lshlrev_b32 v%d, 16, v%d" % (WP + 0, WR_ + 0))
        a.I("v_lshlrev_b32 v%d, 16, v%d" % (WP + 1, WR_ + 2))
        a.I("v_and_b32 v%d, 0xffff0000, v%d" % (WP + 2, WR_ + 0))
        a.I("v_and_b32 v%d, 0xffff0000, v%d" % (WP + 3, WR_ + 2))
        a.I("v_lshlrev_b32 v%d, 16, v%d" % (WP + 4, WR_ + 1))
        a.I("v_lshlrev_b32 v%d, 16, v%d" % (WP + 5, WR_ + 3))
        a.I("v_and_b32 v%d, 0xffff0000, v%d" % (WP + 6, WR_ + 1))
        a.I("v_and_b32 v%d, 0xffff0000, v%d" % (WP + 7, WR_ + 3))

        def unp(dst, src):
            a.I("v_lshlrev_b32 v%d, 16, v%d" % (dst, src))
            a.I("v_and_b32 v%d, 0xffff0000, v%d" % (dst + 1, src))
        q.wait_for(rd["h"])
        for j in range(3):
            unp(KU + 2 * j, KK + j)
        for j in (6, 7):
            q.op("ds_read_b32 v%d, v%d offset:%d" % (KK + 3 + j, vTo, 1088 + 128 * j))
            rd[j] = q.op("ds_read_b32 v%d, v%d offset:%d" % (VV + j, vTo2, 128 * j))
        for r in range(8):
            if r % 2 == 0:
                q.wait_for(rd[r + 1])
            R_ = RES + 2 * r
            unp(KU + 2 * (r + 3), KK + 3 + r)
            a.I("v_pk_mul_f32 %s, %s, %s" % (vp(R_), vp(KU + 2 * r), vp(WP + 6)))
            vu = VU + 2 * (r & 1)
            unp(vu, VV + r)
            for t in (2, 1, 0):
                a.I("v_pk_fma_f32 %s, %s, %s, %s" % (vp(R_), vp(KU + 2 * (r + 3 - t)), vp(WP + 2 * t), vp(R_)))
            a.I("v_pk_mul_f32 %s, %s, %s" % (vp(R_), vp(R_), vp(vu)))
            if r & 1:
                for e in range(2):
                    a.I("v_cvt_pk_bf16_f32 v%d, v%d, v%d" % (G + 4 * e + 3 - (r >> 1), R_ + e, R_ - 2 + e))
    a.I("ds_write_b128 v%d, %s" % (vSW, v4(G)))
    a.I("ds_write_b128 v%d, %s offset:80" % (vSW, v4(G + 4)))
    a.I("ds_read_b128 %s, v%d" % (v4(IN), vSR))
    a.I("ds_read_b128 %s, v%d offset:1280" % (v4(IN + 4), vSR))
    a.I("s_waitcnt lgkmcnt(1)")
    a.I("buffer_store_dwordx4 %s, v%d, %s, 0 offen" % (v4(IN), vST, s4(SRD_W)))
    a.I("s_waitcnt lgkmcnt(0)")
    a.I("buffer_store_dwordx4 %s, v%d, %s, s%d offen" % (v4(IN + 4), vST, s4(SRD_W), s64K))
    stamp(a, 2)
    if not ssm_first:
        if qreg:
            a.I("v_and_b32 v2, 3, v1")
            a.I("v_lshlrev_b32 v2, 8, v2")
            a.I("v_bfe_u32 v3, v1, 2, 1")
            a.I("v_mul_u32_u24 v3, %d, v3" % CS)
            a.I("v_add_u32 v2, v2, v3")
            a.I("v_lshrrev_b32 v3, 3, v1")
            a.I("v_lshl_add_u32 v2, v3, 3, v2")
            a.I("v_add_u32 v12, s%d, v2" % sQB)
            a.I("s_lshl_b32 s3, s%d, 18" % sX)
            a.I("s_lshl_b32 s%d, s%d, 10" % (sT0, sSUB))
            a.I("s_add_u32 s3, s3, s%d" % sT0)
            a.I("s_lshl_b32 s%d, s%d, 7" % (sT0, sW))
            a.I("s_add_u32 s3, s3, s%d" % sT0)
            a.I("s_add_u32 s3, s3, %d" % QIN)
            a.I("v_lshlrev_b32 v3, 14, v3")
            a.I("v_and_b32 v2, 7, v1")
            a.I("v_lshl_add_u32 v3, v2, 4, v3")
            a.I("v_add_u32 v13, s3, v3")
            a.I("s_waitcnt vmcnt(2)")
            for h in range(2):
                for e in range(2):
                    a.I("ds_read_b64 %s, v12 offset:%d" % (vp(160 + 4 * h + 2 * e), 128 * e + 64 * h))
            a.I("s_waitcnt lgkmcnt(2)")
            a.I("buffer_store_dwordx4 v[160:163], v13, %s, 0 offen" % s4(SRD_W))
            a.I("s_waitcnt lgkmcnt(0)")
            a.I("buffer_store_dwordx4 v[164:167], v13, %s, s%d offen" % (s4(SRD_W), s128K))
        else:
            a.I("s_waitcnt vmcnt(%d)" % (2 + (1 if cfg.get("qpf", 0) == 0 else 0)))
        build_T_from_global(a, vS)
    a.I("s_waitcnt vmcnt(0)")
    a.I("s_barrier")
    a.I("s_cmp_lg_u32 s%d, 0" % sW)
    a.I("s_cbranch_scc1 L_B_nf")
    a.I("s_lshl_b32 s3, s%d, 5" % sX)
    a.I("s_add_u32 s3, s3, s%d" % sSUB)
    a.I("v_mov_b32 v2, s3")
    a.I("v_mov_b32 v3, s%d" % sXCC)
    a.I("global_store_byte v2, v3, %s" % sp(DBG))
    a.label("L_B_nf")
    stamp(a, 3)
    zero_R_pad(a, 56, 2)
    a.I("s_cmp_eq_u32 s%d, 0" % sHB)
    a.I("s_cbranch_scc0 L_B_j1")
    conv_addr(a)
    if cfg.get("hoist"):
        for t in conv_pre_ops():
            a.I(t)
    a.I("s_branch L_B_j2")
    a.label("L_B_j1")
    help_rows(a)
    if cfg.get("qe"):
        a.I("v_and_b32 v2, 3, v1")
        a.I("v_lshlrev_b32 v2, 2, v2")
        a.I("v_add_u32 v2, %d, v2" % GATE_OFF)
        a.label("L_B_qw")
        a.I("ds_read_b32 v3, v2")
        a.I("s_waitcnt lgkmcnt(0)")
        a.I("v_cmp_eq_u32 vcc, 0, v3")
        a.I("s_nop 1")
        a.I("s_cbranch_vccz L_B_qg")
        a.I("s_sleep 1")
        a.I("s_branch L_B_qw")
        a.label("L_B_qg")
        help_qloads(a, 0, cfg["qe"])
        a.I("v_mov_b32 v2, 0")
        a.I("s_branch L_B_join")
    a.label("L_B_j2")
    if cfg.get("qpf", 0) == 1:
        a.I("global_load_dword v%d, v11, %s %s" % (vDUMMY, sp(Q), cfg["nt_pf"]))
    a.I("s_movk_i32 s%d, %d" % (sPOLL, cfg.get("polls", 64)))
    a.label("L_B_poll")
    a.I("global_load_ubyte v%d, v%d, %s sc1" % (vPV, vPA, sp(DBG)))
    a.I("s_waitcnt vmcnt(0)")
    a.I("v_cmp_ne_u32 vcc, s%d, v%d" % (sXCC, vPV))
    a.I("s_nop 1")
    a.I("s_cbranch_vccz L_B_got")
    a.I("s_sub_u32 s%d, s%d, 1" % (sPOLL, sPOLL))
    a.I("s_cmp_lg_u32 s%d, 0" % sPOLL)
    a.I("s_cbranch_scc1 L_B_poll")
    if cfg.get("qe"):
        qe_signal()
    a.I("v_mov_b32 v2, 1")
    a.I("s_branch L_B_join")
    a.label("L_B_got")
    stamp(a, 8)
    a.I("buffer_load_dwordx4 %s, v%d, %s, 0 offen sc1" % (v4(IN), vIL, s4(SRD_W)))
    a.I("buffer_load_dwordx4 %s, v%d, %s, s%d offen sc1" % (v4(IN + 4), vIL, s4(SRD_W), s8K))
    if cfg.get("qe"):
        a.I("buffer_load_dwordx4 %s, v%d, %s, s%d offen sc1" % (v4(IN + 8), vIL, s4(SRD_W), s4K))
        a.I("buffer_load_dwordx4 %s, v%d, %s, s%d offen sc1" % (v4(IN + 12), vIL, s4(SRD_W), s12K))
        qe_signal()
        a.I("v_mov_b32 v2, %d" % cfg.get("forcefb", 0))
        for j, (r, ch) in enumerate(((IN, 0), (IN + 4, 2), (IN + 8, 1), (IN + 12, 3))):
            a.I("s_waitcnt vmcnt(%d)" % (3 - j))
            a.I("ds_write_b128 v%d, %s offset:%d" % (vRW, v4(r), ch * RS))
        a.I("s_branch L_B_join")
    a.I("v_mov_b32 v2, %d" % cfg.get("forcefb", 0))
    nq_ = 0
    if cfg.get("qpf", 0) == 2:
        a.I("global_load_dword v%d, v11, %s %s" % (vDUMMY, sp(Q), cfg["nt_pf"]))
        nq_ = 1
    a.I("s_waitcnt vmcnt(%d)" % (1 + nq_))
    a.I("ds_write_b128 v%d, %s" % (vRW, v4(IN)))
    a.I("s_waitcnt vmcnt(%d)" % nq_)
    a.I("ds_write_b128 v%d, %s offset:%d" % (vRW, v4(IN + 4), 2 * RS))
    a.label("L_B_join")
    a.I("s_lshl_b32 s3, s%d, 8" % sW)
    a.I("s_add_u32 s3, s3, %d" % OKS_OFF)
    a.I("v_lshl_add_u32 v3, v1, 2, s3")
    a.I("ds_write_b32 v3, v2")
    a.I("v_and_b32 v3, 7, v1")
    a.I("v_lshlrev_b32 v3, 8, v3")
    a.I("v_add_u32 v3, %d, v3" % OKS_OFF)
    a.I("s_waitcnt lgkmcnt(0)")
    a.I("s_barrier")
    a.I("ds_read_b32 v2, v3")
    a.I("s_waitcnt lgkmcnt(0)")
    a.I("v_cmp_ne_u32 vcc, 0, v2")
    a.I("s_nop 1")
    a.I("s_cbranch_vccnz L_B_fb")
    if qreg:
        a.I("s_cmp_eq_u32 s%d, 0" % sHB)
        a.I("s_cbranch_scc1 L_B_go")
        srd(a, SRD_IN, WS, QIN + IN_BYTES)
        a.I("s_lshl_b32 s3, s%d, 14" % sGRP)
        a.I("s_lshl_b32 s%d, s%d, 9" % (sT0, sCH))
        a.I("s_add_u32 s3, s3, s%d" % sT0)
        a.I("s_add_u32 s3, s3, %d" % QIN)
        a.I("v_lshl_add_u32 v%d, v1, 3, s3" % vHI)
        for t in range(8):
            a.I("s_mov_b32 s%d, %d" % (sQO + t, 2048 * t))
    a.label("L_B_go")
    stamp(a, 4)
    if cfg["dump"]:
        dump_lds(a)
    a.I("s_cmp_eq_u32 s%d, 0" % sHB)
    a.I("s_cbranch_scc1 L_CONV")
    help_qloads(a, cfg.get("qe", 0), 8)
    a.I("s_branch L_HELP2")
    a.label("L_B_fb")
    vK, vVv, vO, vOH, vR = 144, 158, 40, 41, 42
    a.I("s_lshl_b32 s3, s%d, 5" % sGRP)
    a.I("s_load_dwordx8 s[%d:%d], %s, s3" % (16, 23, sp(SHK)))
    a.I("s_lshl_b32 s3, s%d, 3" % sGRP)
    a.I("v_mul_u32_u24 v24, 3584, v0")
    a.I("v_add_u32 v%d, s3, v24" % vO)
    a.I("v_add_u32 v%d, %d, v%d" % (vOH, -2688, vO))
    a.I("v_cmp_eq_u32 vcc, 0, v0")
    a.I("v_bfrev_b32 v2, 1")
    a.I("v_cndmask_b32 v%d, v%d, v2, vcc" % (vOH, vOH))
    a.I("v_lshlrev_b32 v3, 3, v0")
    a.I("v_sub_u32 v%d, %d, v3" % (vR, R_OFF + 4088))
    kv_loads(a, vK, vVv, vO, vOH)
    a.I("s_waitcnt lgkmcnt(0)")
    unpack_weights_uniform(a)
    a.I("s_waitcnt vmcnt(4)")
    kv_halo(a, vK)
    cfg["_vwait"] = 0
    kv_compute(a, vK, vVv, vR)
    a.I("s_waitcnt lgkmcnt(0)")
    a.I("s_barrier")
    a.I("s_branch L_B_go")


def load_T4(a, vS):
    a.I("s_lshl_b32 s3, s%d, 12" % sC)
    a.I("s_add_u32 s%d, s%d, s3" % (SRD_SK, SSK))
    a.I("s_addc_u32 s%d, s%d, 0" % (SRD_SK + 1, SSK + 1))
    a.I("s_mov_b32 s%d, 4096" % (SRD_SK + 2))
    a.I("s_mov_b32 s%d, 0x20000" % (SRD_SK + 3))
    a.I("v_lshlrev_b32 v2, 4, v1")
    for u in range(4):
        a.I("buffer_load_dwordx4 %s, v2, %s, 0 offen offset:%d %s" % (v4(vS + 4 * u), s4(SRD_SK), 1024 * u, cfg["nt_in"]))


def build_T4(a, vS, vW):
    dpp = "row_mask:0xf bank_mask:0xf"
    H = vW
    a.I("v_mov_b32 v%d, 0" % H)
    a.I("v_mov_b32 v%d, 0" % (H + 1))
    for u in range(1, 4):
        for p in range(2):
            a.I("v_mov_b32_dpp v%d, v%d wave_ror:1 %s" % (H + 2 * u + p, vS + 4 * (u - 1) + 2 + p, dpp))
    for u in range(4):
        for p in range(2):
            a.I("v_mov_b32_dpp v%d, v%d wave_shr:1 %s" % (H + 2 * u + p, vS + 4 * u + 2 + p, dpp))
    a.I("v_cmp_eq_u32 vcc, 0, v1")
    a.I("v_mov_b32 v2, s%d" % sT3)
    a.I("v_cndmask_b32 v2, 0, v2, vcc")
    a.I("v_lshlrev_b32 v3, 16, v%d" % vS)
    a.I("v_add_f32 v3, v3, v2")
    a.I("v_cvt_pk_bf16_f32 v3, v3, v3")
    a.I("s_mov_b32 s3, 0xffff")
    a.I("v_bfi_b32 v%d, s3, v3, v%d" % (vS, vS))
    a.I("s_mul_i32 s3, s%d, %d" % (sCH, TS))
    a.I("s_add_u32 s3, s3, %d" % (T_OFF + 32))
    a.I("v_lshl_add_u32 v2, v1, 4, s3")
    for u in range(4):
        def d(k):
            return vS + 4 * u + k if k >= 0 else H + 2 * u + 2 + k
        a.I("ds_write_b128 v2, %s offset:%d" % (v4(d(0)), 1024 * u))
        o = vW + 8 + 12 * (u & 1)
        for k in range(4):
            a.I("v_alignbit_b32 v%d, v%d, v%d, 16" % (o + k, d(k), d(k - 1)))
        a.I("ds_write_b128 v2, %s offset:%d" % (v4(o), CS + 1024 * u))
        for k in range(4):
            a.I("v_mov_b32 v%d, v%d" % (o + 4 + k, d(k - 1)))
        a.I("ds_write_b128 v2, %s offset:%d" % (v4(o + 4), 2 * CS + 1024 * u))
        for k in range(4):
            a.I("v_alignbit_b32 v%d, v%d, v%d, 16" % (o + 8 + k, d(k - 1), d(k - 2)))
        a.I("ds_write_b128 v2, %s offset:%d" % (v4(o + 8), 3 * CS + 1024 * u))


def gen_B2(a):
    a.label("L_B")
    vS = 64
    PO, WR_, W32, W10 = 16, 48, 50, 51
    ACCK, VU, G, IN = 100, 116, 144, 152
    vTo, vTo2, vTh, vKR, vVR, vST, vIL, vRW, vPA, vPV = 52, 53, 54, 55, 12, 13, 14, 15, 60, 61
    SRD_W = 72
    s4K, s8K, s12K = 76, 77, 78
    pin = cfg["nt_in"]

    def qe_signal():
        a.I("s_lshl_b32 s3, s%d, 2" % sCH)
        a.I("s_add_u32 s3, s3, %d" % GATE_OFF)
        a.I("v_mov_b32 v2, s3")
        a.I("v_mov_b32 v3, 1")
        a.I("s_mov_b64 exec, 1")
        a.I("ds_write_b32 v2, v3")
        a.I("s_mov_b64 exec, -1")
    a.I("s_lshl_b32 s3, s%d, 7" % sSUB)
    a.I("s_lshl_b32 s%d, s%d, 4" % (sT0, sW))
    a.I("s_add_u32 s3, s3, s%d" % sT0)
    a.I("s_mul_i32 s3, s3, 896")
    a.I("s_lshl_b32 s%d, s%d, 7" % (sT0, sX))
    a.I("s_add_u32 s3, s3, s%d" % sT0)
    a.I("v_lshrrev_b32 v6, 3, v1")
    a.I("v_mul_u32_u24 v6, 896, v6")
    a.I("v_and_b32 v7, 7, v1")
    a.I("v_lshl_add_u32 v6, v7, 4, v6")
    a.I("v_add_u32 v%d, s3, v6" % vTo)
    a.I("v_add_u32 v%d, 7168, v%d" % (vTo2, vTo))
    a.I("v_add_u32 v%d, %d, v%d" % (vTh, -7168, vTo))
    a.I("s_mul_i32 s%d, s%d, 3072" % (sT4, sW))
    a.I("s_lshl_b32 s%d, s%d, 11" % (sT2, sW))
    a.I("s_add_u32 s%d, s%d, %d" % (sT2, sT2, STG_V))
    a.I("s_lshl_b32 s%d, s%d, 9" % (sT1, sX))
    a.I("v_lshl_add_u32 v5, v1, 3, s%d" % sT1)
    a.I("s_waitcnt lgkmcnt(0)")
    srd(a, SRD_K, K, IN_BYTES)
    srd(a, SRD_V, V, IN_BYTES)
    a.I("s_add_u32 m0, s%d, 1024" % sT4)
    a.I("buffer_load_dwordx4 v%d, %s, 0 offen %s lds" % (vTo, s4(SRD_K), pin))
    a.I("s_mov_b32 m0, s%d" % sT2)
    a.I("buffer_load_dwordx4 v%d, %s, 0 offen %s lds" % (vTo, s4(SRD_V), pin))
    a.I("s_add_u32 m0, s%d, 2048" % sT4)
    a.I("buffer_load_dwordx4 v%d, %s, 0 offen %s lds" % (vTo2, s4(SRD_K), pin))
    a.I("s_add_u32 m0, s%d, 1024" % sT2)
    a.I("buffer_load_dwordx4 v%d, %s, 0 offen %s lds" % (vTo2, s4(SRD_V), pin))
    a.I("s_mov_b32 m0, s%d" % sT4)
    a.I("s_mov_b32 exec_lo, 0")
    a.I("s_mov_b32 exec_hi, 0xffffff00")
    a.I("buffer_load_dwordx4 v%d, %s, 0 offen %s lds" % (vTh, s4(SRD_K), pin))
    a.I("s_mov_b64 exec, -1")
    a.I("global_load_dwordx2 %s, v5, %s" % (vp(WR_), sp(SHK)))
    a.I("v_bfe_u32 v2, v1, 2, 2")
    a.I("v_lshlrev_b32 v2, 7, v2")
    a.I("v_lshrrev_b32 v3, 4, v1")
    a.I("v_lshl_add_u32 v2, v3, 5, v2")
    a.I("v_and_b32 v3, 3, v1")
    a.I("v_lshl_add_u32 v2, v3, 3, v2")
    a.I("s_add_u32 s3, s%d, 640" % sT4)
    a.I("v_add_u32 v%d, s3, v2" % vKR)
    a.I("v_add_u32 v%d, s%d, v2" % (vVR, sT2))
    a.I("s_lshr_b32 s%d, s%d, 1" % (sT0, sC))
    a.I("s_lshl_b32 s%d, s%d, 2" % (sT0, sT0))
    a.I("s_load_dword s%d, %s, s%d" % (sT3, sp(SSD), sT0))
    a.I("s_getreg_b32 s%d, hwreg(HW_REG_XCC_ID, 0, 4)" % sXCC)
    a.I("s_add_u32 s%d, s%d, 1" % (sXCC, sXCC))
    a.I("s_lshl_b32 s3, s%d, 4" % sSUB)
    a.I("s_lshl_b32 s%d, s%d, 1" % (sT0, sW))
    a.I("s_add_u32 s3, s3, s%d" % sT0)
    a.I("s_lshl_b32 s3, s3, 6")
    a.I("s_lshl_b32 s%d, s%d, 18" % (sT0, sX))
    a.I("s_add_u32 s3, s3, s%d" % sT0)
    a.I("v_lshrrev_b32 v6, 2, v1")
    a.I("v_lshlrev_b32 v6, 14, v6")
    a.I("v_lshl_add_u32 v6, v3, 4, v6")
    a.I("v_add_u32 v%d, s3, v6" % vST)
    a.I("s_lshl_b32 s3, s%d, 14" % sGRP)
    a.I("v_lshl_add_u32 v%d, v0, 4, s3" % vIL)
    a.I("s_lshl_b32 s%d, s%d, 11" % (sT0, sW))
    a.I("s_add_u32 s3, s3, s%d" % sT0)
    a.I("v_and_b32 v2, 15, v1")
    a.I("v_lshl_add_u32 v9, v2, 7, s3")
    a.I("s_lshl_b32 s3, s%d, 5" % sX)
    a.I("v_mov_b32 v10, s3")
    a.I("s_add_u32 s3, s3, s%d" % sCH)
    a.I("v_lshl_add_u32 v%d, v3, 2, s3" % vPA)
    a.I("v_mul_u32_u24 v6, %d, v3" % RS)
    a.I("v_bfe_u32 v7, v0, 2, 6")
    a.I("v_lshlrev_b32 v7, 4, v7")
    a.I("v_sub_u32 v6, v6, v7")
    a.I("v_add_u32 v%d, %d, v6" % (vRW, R_OFF + 4080 - 3072))
    a.I("s_barrier")
    ipf = cfg.get("ipf", 0)
    th = cfg.get("th", 0)
    if th:
        a.I("s_lshl_b32 s3, s%d, 14" % sGRP)
        a.I("s_lshl_b32 s%d, s%d, 12" % (sT0, sCH))
        a.I("s_add_u32 s3, s3, s%d" % sT0)
        a.I("v_and_b32 v11, 31, v1")
        a.I("v_lshl_add_u32 v11, v11, 7, s3")
        a.I("global_load_dword v%d, v10, %s" % (vDUMMY, sp(DBG)))
        a.I("s_cmp_eq_u32 s%d, 0" % sHB)
        a.I("s_cbranch_scc1 L_B_t0")
        if th == 1:
            load_T4(a, 64)
        a.I("s_branch L_B_t1")
        a.label("L_B_t0")
        if cfg.get("thpf", 1) == 1:
            a.I("global_load_dword v%d, v11, %s %s" % (vDUMMY, sp(WS), cfg["nt_pf"]))
        a.label("L_B_t1")
    nlate = 4
    if ipf == 0 and not th:
        a.I("global_load_dword v%d, v9, %s %s" % (vDUMMY, sp(WS), cfg["nt_pf"]))
        nlate = 5
    if not th:
        a.I("global_load_dword v%d, v10, %s" % (vDUMMY, sp(DBG)))
        load_T_global(a, vS)
    if ipf == 2 and not th:
        a.I("global_load_dword v%d, v9, %s %s" % (vDUMMY, sp(WS), cfg["nt_pf"]))
        nlate = 5
    if ipf == 1:
        a.I("s_lshl_b32 s3, s%d, 14" % sGRP)
        a.I("s_lshl_b32 s%d, s%d, 12" % (sT0, sCH))
        a.I("s_add_u32 s3, s3, s%d" % sT0)
        a.I("v_and_b32 v11, 31, v1")
        a.I("v_lshl_add_u32 v11, v11, 7, s3")
    stamp(a, 0)
    srd(a, SRD_IN, Q, IN_BYTES)
    srd(a, SRD_OUT, OUT, OUT_BYTES)
    srd(a, SRD_W, WS, IN_BYTES)
    a.I("s_mov_b32 s%d, 4096" % s4K)
    a.I("s_mov_b32 s%d, 8192" % s8K)
    a.I("s_mov_b32 s%d, 12288" % s12K)
    zero_quad(a, 56)
    zero_counters(a, 56, 4)
    zero_T_pads(a, 56, 9, 10)
    a.I("s_and_b32 s3, s%d, 1" % sC)
    a.I("s_lshl_b32 s3, s3, 4")
    a.I("s_waitcnt lgkmcnt(0)")
    a.I("s_lshr_b32 s%d, s%d, s3" % (sT3, sT3))
    a.I("s_lshl_b32 s%d, s%d, 16" % (sT3, sT3))
    if th:
        n0 = 1 + (1 if cfg.get("thpf", 1) == 1 else 0)
        n1 = 1 + (4 if th == 1 else 0)
        if n0 != n1:
            a.I("s_cmp_eq_u32 s%d, 0" % sHB)
            a.I("s_cbranch_scc1 L_B_w0")
            a.I("s_waitcnt vmcnt(%d)" % n1)
            a.I("s_branch L_B_w1")
            a.label("L_B_w0")
        a.I("s_waitcnt vmcnt(%d)" % n0)
        a.label("L_B_w1")
    else:
        a.I("s_waitcnt vmcnt(%d)" % nlate)
    stamp(a, 1)
    q = LdsQueue(a)
    idx = {}

    def reads(p):
        b = PO + 16 * p
        for j in range(3):
            q.op("ds_read_b64_tr_b16 %s, v%d offset:%d" % (vp(b + 2 * j), vKR, 1024 * p + 512 * j))
            idx[(p, "k", j)] = q.op("ds_read_b64_tr_b16 %s, v%d offset:%d" % (vp(b + 6 + 2 * j), vKR, 1024 * p + 512 * j + 128))
            if j < 2:
                idx[(p, "v", j)] = q.op("ds_read_b64_tr_b16 %s, v%d offset:%d" % (vp(b + 12 + 2 * j), vVR, 1024 * p + 512 * j))
    reads(0)
    a.I("v_alignbit_b32 v%d, v%d, v%d, 16" % (W32, WR_ + 1, WR_ + 1))
    a.I("v_alignbit_b32 v%d, v%d, v%d, 16" % (W10, WR_, WR_))
    for p in range(2):
        b = PO + 16 * p
        A_, U_, G_ = ACCK + 8 * p, VU + 8 * p, G + 4 * p
        for j in range(4):
            q.wait_for(max(idx[(p, "k", (j + 1) // 2)], idx[(p, "v", j // 2)]))
            a.I("v_dot2_f32_bf16 v%d, v%d, v%d, 0" % (A_ + 2 * j, b + j, W32))
            a.I("v_dot2_f32_bf16 v%d, v%d, v%d, 0" % (A_ + 2 * j + 1, b + 6 + j, W32))
            a.I("v_lshlrev_b32 v%d, 16, v%d" % (U_ + 2 * j, b + 12 + j))
            a.I("v_dot2_f32_bf16 v%d, v%d, v%d, v%d" % (A_ + 2 * j, b + j + 1, W10, A_ + 2 * j))
            a.I("v_dot2_f32_bf16 v%d, v%d, v%d, v%d" % (A_ + 2 * j + 1, b + 6 + j + 1, W10, A_ + 2 * j + 1))
            a.I("v_and_b32 v%d, 0xffff0000, v%d" % (U_ + 2 * j + 1, b + 12 + j))
            if p == 0 and j == 0:
                reads(1)
            a.I("s_nop 1")
            a.I("v_pk_mul_f32 %s, %s, %s" % (vp(A_ + 2 * j), vp(A_ + 2 * j), vp(U_ + 2 * j)))
            a.I("v_cvt_pk_bf16_f32 v%d, v%d, v%d" % (G_ + 3 - j, A_ + 2 * j + 1, A_ + 2 * j))
        a.I("buffer_store_dwordx4 %s, v%d, %s, 0 offen offset:%d" % (v4(G_), vST, s4(SRD_W), 64 * p))
    stamp(a, 2)
    if th:
        a.I("s_cmp_eq_u32 s%d, 0" % sHB)
        a.I("s_cbranch_scc1 L_B_i0")
        n = 0
        if th == 2:
            load_T4(a, 64)
            n += 4
        if cfg.get("thpf", 1) == 2:
            a.I("global_load_dword v%d, v11, %s %s" % (vDUMMY, sp(WS), cfg["nt_pf"]))
            n += 1
        a.I("s_waitcnt vmcnt(%d)" % n)
        a.I("s_branch L_B_i1")
        a.label("L_B_i0")
        a.I("s_waitcnt vmcnt(0)")
        a.label("L_B_i1")
        a.I("s_barrier")
    if not th:
        a.I("s_waitcnt vmcnt(%d)" % (3 if ipf == 2 else 2))
    if th:
        pass
    elif ipf == 1:
        a.I("s_cmp_eq_u32 s%d, 0" % sHB)
        a.I("s_cbranch_scc1 L_B_i0")
        a.I("global_load_dword v%d, v11, %s %s" % (vDUMMY, sp(WS), cfg["nt_pf"]))
        build_T_from_global(a, vS)
        a.I("s_waitcnt vmcnt(1)")
        a.I("s_branch L_B_i1")
        a.label("L_B_i0")
    if not th:
        build_T_from_global(a, vS)
        a.I("s_waitcnt vmcnt(0)")
        a.label("L_B_i1")
        a.I("s_barrier")
    a.I("s_cmp_lg_u32 s%d, 0" % sW)
    a.I("s_cbranch_scc1 L_B_nf")
    a.I("s_lshl_b32 s3, s%d, 5" % sX)
    a.I("s_add_u32 s3, s3, s%d" % sSUB)
    a.I("v_mov_b32 v2, s3")
    a.I("v_mov_b32 v3, s%d" % sXCC)
    a.I("global_store_byte v2, v3, %s" % sp(DBG))
    a.label("L_B_nf")
    stamp(a, 3)
    a.I("s_cmp_eq_u32 s%d, 0" % sHB)
    a.I("s_cbranch_scc1 L_B_j2")
    if th:
        a.I("s_waitcnt vmcnt(%d)" % (1 if cfg.get("thpf", 1) == 2 else 0))
        build_T4(a, 64, 80)
        stamp(a, 8)
    help_rows(a)
    a.I("v_and_b32 v2, 3, v1")
    a.I("v_lshlrev_b32 v2, 2, v2")
    a.I("v_add_u32 v2, %d, v2" % GATE_OFF)
    a.label("L_B_qw")
    a.I("ds_read_b32 v3, v2")
    a.I("s_waitcnt lgkmcnt(0)")
    a.I("v_cmp_eq_u32 vcc, 0, v3")
    a.I("s_nop 1")
    a.I("s_cbranch_vccz L_B_qg")
    a.I("s_sleep 1")
    a.I("s_branch L_B_qw")
    a.label("L_B_qg")
    help_qloads(a, 0, cfg["qe"])
    a.I("v_mov_b32 v2, 0")
    a.I("s_branch L_B_join")
    a.label("L_B_j2")
    a.I("global_load_ubyte v%d, v%d, %s sc1" % (vPV, vPA, sp(DBG)))
    zero_R_pad(a, 56, 2)
    conv_addr(a)
    if cfg.get("hoist") and not th:
        for t in conv_pre_ops():
            a.I(t)
    a.I("s_movk_i32 s%d, %d" % (sPOLL, cfg.get("polls", 64)))
    a.I("s_branch L_B_p1")
    a.label("L_B_poll")
    a.I("global_load_ubyte v%d, v%d, %s sc1" % (vPV, vPA, sp(DBG)))
    a.label("L_B_p1")
    a.I("s_waitcnt vmcnt(0)")
    a.I("v_cmp_ne_u32 vcc, s%d, v%d" % (sXCC, vPV))
    a.I("s_nop 1")
    a.I("s_cbranch_vccz L_B_got")
    a.I("s_sub_u32 s%d, s%d, 1" % (sPOLL, sPOLL))
    a.I("s_cmp_lg_u32 s%d, 0" % sPOLL)
    a.I("s_cbranch_scc1 L_B_poll")
    qe_signal()
    a.I("v_mov_b32 v2, 1")
    a.I("s_branch L_B_join")
    a.label("L_B_got")
    stamp(a, 8)
    for j, so in enumerate(("0", "s%d" % s4K, "s%d" % s8K, "s%d" % s12K)):
        a.I("buffer_load_dwordx4 %s, v%d, %s, %s offen sc1" % (v4(IN + 4 * j), vIL, s4(SRD_W), so))
    qe_signal()
    a.I("v_mov_b32 v2, %d" % cfg.get("forcefb", 0))
    for j in range(4):
        a.I("s_waitcnt vmcnt(%d)" % (3 - j))
        a.I("ds_write_b128 v%d, %s offset:%d" % (vRW, v4(IN + 4 * j), 1024 * (3 - j)))
    a.label("L_B_join")
    a.I("s_lshl_b32 s3, s%d, 8" % sW)
    a.I("s_add_u32 s3, s3, %d" % OKS_OFF)
    a.I("v_lshl_add_u32 v3, v1, 2, s3")
    a.I("ds_write_b32 v3, v2")
    a.I("v_and_b32 v3, 7, v1")
    a.I("v_lshlrev_b32 v3, 8, v3")
    a.I("v_add_u32 v3, %d, v3" % OKS_OFF)
    a.I("s_waitcnt lgkmcnt(0)")
    a.I("s_barrier")
    a.I("ds_read_b32 v2, v3")
    a.I("s_waitcnt lgkmcnt(0)")
    a.I("v_cmp_ne_u32 vcc, 0, v2")
    a.I("s_nop 1")
    a.I("s_cbranch_vccnz L_B_fb")
    a.label("L_B_go")
    stamp(a, 4)
    a.I("s_cmp_eq_u32 s%d, 0" % sHB)
    if th and cfg.get("hoist"):
        a.I("s_cbranch_scc0 L_B_gh")
        for t in conv_pre_ops():
            a.I(t)
        a.I("s_branch L_CONV")
        a.label("L_B_gh")
    else:
        a.I("s_cbranch_scc1 L_CONV")
    help_qloads(a, cfg["qe"], 8)
    a.I("s_branch L_HELP2")
    gen_B_fallback(a)


def gen_B_fallback(a):
    a.label("L_B_fb")
    vK, vVv, vO, vOH, vR = 144, 158, 40, 41, 42
    a.I("s_lshl_b32 s3, s%d, 5" % sGRP)
    a.I("s_load_dwordx8 s[%d:%d], %s, s3" % (16, 23, sp(SHK)))
    a.I("s_lshl_b32 s3, s%d, 3" % sGRP)
    a.I("v_mul_u32_u24 v24, 3584, v0")
    a.I("v_add_u32 v%d, s3, v24" % vO)
    a.I("v_add_u32 v%d, %d, v%d" % (vOH, -2688, vO))
    a.I("v_cmp_eq_u32 vcc, 0, v0")
    a.I("v_bfrev_b32 v2, 1")
    a.I("v_cndmask_b32 v%d, v%d, v2, vcc" % (vOH, vOH))
    a.I("v_lshlrev_b32 v3, 3, v0")
    a.I("v_sub_u32 v%d, %d, v3" % (vR, R_OFF + 4088))
    kv_loads(a, vK, vVv, vO, vOH)
    a.I("s_waitcnt lgkmcnt(0)")
    unpack_weights_uniform(a)
    a.I("s_waitcnt vmcnt(4)")
    kv_halo(a, vK)
    cfg["_vwait"] = 0
    kv_compute(a, vK, vVv, vR)
    a.I("s_waitcnt lgkmcnt(0)")
    a.I("s_barrier")
    a.I("s_branch L_B_go")


HEADER = open("cdna_kernels/%s.s.ref" % NAME).read().split("; Override launch geometry")[0]


DOC = '''; ---------------------------------------------------------------------------------------------------
; The x mapping only serves L2 locality; nothing relies on it for correctness.
;
;   D_skip / ssm_D are folded into tap 0.  Waves 4..7 transpose finished tiles (ds_read_b64_tr_b16),
;   d_ws.  A consumer uses it only when every producer's flag in d_debug carries the consumer's own XCC id
; ---------------------------------------------------------------------------------------------------
'''


def build():
    if cfg.get("hoist"):
        gen_conv(Asm())
        if cfg.get("A"):
            with With():
                gen_conv(Asm(), "A")
    a = Asm()
    gen_entry(a)
    gen_A(a)
    (gen_B2 if cfg.get("trkv") else gen_B)(a)
    gen_conv(a)
    if cfg.get("A"):
        with With():
            gen_conv(a, "A")
    gen_help(a)
    if cfg.get("dirty"):
        a.label("L_idle")
        a.I("s_waitcnt lgkmcnt(0)")
        a.I("s_lshr_b32 s3, s2, 3")
        a.I("s_mul_i32 s3, s3, %d" % (cfg["dirty"] * 8192))
        a.I("s_add_u32 s3, s3, 0x2000000")
        a.I("v_lshl_add_u32 v1, v0, 4, s3")
        for j in range(cfg["dirty"]):
            a.I("global_store_dwordx4 v1, v[4:7], %s" % sp(WS))
            a.I("v_add_u32 v1, 8192, v1")
    a.label("L_end")
    a.I("s_endpgm")
    a.label("L_codeend")
    body = a.finalize()
    txt = HEADER
    txt += "; @launch grid=(256,1,1) block=(512,1,1) lds=%d\n" % LDS_SIZE
    txt += DOC
    txt += '.amdgcn_target "amdgcn-amd-amdhsa--gfx950"\n.text\n.globl %s_kernel\n.p2align 8\n.type %s_kernel,@function\n%s_kernel:\n' % (NAME, NAME, NAME)
    txt += body
    txt += """.section .rodata,"a"
.p2align 6
.amdhsa_kernel %s_kernel
  .amdhsa_next_free_vgpr %d
  .amdhsa_next_free_sgpr 102
  .amdhsa_accum_offset %d
  .amdhsa_group_segment_fixed_size 0
  .amdhsa_kernarg_size 128
  .amdhsa_user_sgpr_count 2
  .amdhsa_user_sgpr_kernarg_segment_ptr 1
  .amdhsa_system_sgpr_workgroup_id_x 1
  .amdhsa_float_denorm_mode_32 3
.end_amdhsa_kernel
""" % (NAME, NVGPR, NVGPR)
    return txt, a


if __name__ == "__main__":
    out = sys.argv[1]
    for kv in sys.argv[2:]:
        k, v = kv.split("=", 1)
        try:
            v = json.loads(v)
        except Exception:
            pass
        cfg[k] = v
    txt, a = build()
    open(out, "w").write(txt)
    print("instructions:", a.count(), "auto nops:", a.nops)
```
